```python
import torch

def _softmax(x, axis=-1):
    return torch.softmax(x, dim=axis)

def _gelu(x):
    return torch.nn.functional.gelu(x, approximate='tanh')

def _silu(x):
    return torch.nn.functional.silu(x)

def _sigmoid(x):
    return torch.sigmoid(x)

def _layernorm(x, axis=-1, eps=1e-05):
    m = x.mean(dim=axis, keepdim=True)
    v = x.var(dim=axis, keepdim=True, unbiased=False)
    return (x - m) / torch.sqrt(v + eps)

def _scatter_add(tgt, idx, src, axis=0):
    return tgt.clone().index_add_(axis, idx, src)

def _segment_sum(src, seg, n):
    out = torch.zeros((n,) + src.shape[1:], dtype=src.dtype)
    return out.index_add_(0, seg, src)

def _pad(x, pw):
    flat = tuple((v for pair in reversed(pw) for v in pair))
    return torch.nn.functional.pad(x, flat)
kernel_name = 'gather_scatter__tensor_product_equiv_tfn__graph'

def setup_inputs():

    _w = lambda a: (lambda t: t.to(torch.bfloat16) if t.is_floating_point() else t)(torch.as_tensor(a))
    N, deg, C, L, DE = (10000, 16, 128, 1, 4)
    E = N * deg
    M = (L + 1) ** 2
    src = (lambda lo, hi, *s: torch.randint(lo, hi, s))(0, N, E).to(torch.int64)
    dst = (lambda lo, hi, *s: torch.randint(lo, hi, s))(0, N, E).to(torch.int64)
    r = (lambda *s: torch.randn(*s, dtype=torch.bfloat16) * 0.05)(E, 3)
    r = r / (torch.linalg.norm(r, dim=-1, keepdim=True) + 1e-09)
    rx, ry, rz = (r[:, 0].clone(), r[:, 1].clone(), r[:, 2].clone())
    Ys = [torch.ones((E, 1), dtype=float)]
    if L >= 1:
        Ys.append(r.to(float))
    if L >= 2:
        Ys.append(torch.stack([2 * rx * ry, 2 * ry * rz, (3 * rz * rz - 1.0) / (lambda _x: torch.sqrt(torch.as_tensor(_x)))(3.0), 2 * rx * rz, rx * rx - ry * ry], dim=-1).to(float))
    for _l in range(3, L + 1):
        Ys.append(((lambda *s: torch.randn(*s, dtype=torch.bfloat16) * 0.05)(E, 2 * _l + 1) * 0.3).to(float))
    Y = torch.cat(Ys, dim=-1)
    cg = torch.zeros((M, M, M), dtype=float)
    off = [_l * _l for _l in range(L + 2)]
    for l1 in range(L + 1):
        for l2 in range(L + 1):
            for l3 in range(abs(l1 - l2), min(L, l1 + l2) + 1):
                d1, d2, d3 = (2 * l1 + 1, 2 * l2 + 1, 2 * l3 + 1)
                cg[off[l1]:off[l1 + 1], off[l2]:off[l2 + 1], off[l3]:off[l3 + 1]] = (lambda *s: torch.randn(*s, dtype=torch.bfloat16) * 0.05)(d1, d2, d3) / (lambda _x: torch.sqrt(torch.as_tensor(_x)))(float(d1 * d2))
    return {'x': _w((lambda *s: torch.randn(*s, dtype=torch.bfloat16) * 0.05)(N, C, M) * 0.2), 'src': _w(src), 'dst': _w(dst), 'Y': _w(Y), 'edge_feat': _w((lambda *s: torch.randn(*s, dtype=torch.bfloat16) * 0.05)(E, DE)), 'w_rad': _w((lambda *s: torch.randn(*s, dtype=torch.bfloat16) * 0.05)(DE, C) * (1.0 / max(1.0, DE) ** 0.5)), 'cg': _w(cg), 'w_mix': _w((lambda *s: torch.randn(*s, dtype=torch.bfloat16) * 0.05)(C, C) * (1.0 / max(1.0, C) ** 0.5))}

def reference(x, src, dst, Y, edge_feat, w_rad, cg, w_mix):
    N, C, M = (x.shape[0], x.shape[1], x.shape[2])
    R = _silu(edge_feat @ w_rad)
    xs = x[src]
    tp = torch.einsum('eci,ef,ifo->eco', xs, Y, cg)
    msg = R[:, :, None] * tp
    agg = _segment_sum(msg.reshape(-1, C * M), dst, N).reshape(N, C, M)
    return torch.einsum('ncm,cd->ndm', agg, w_mix)
```

```python
import re

TRANS = ('v_exp_f32', 'v_log_f32', 'v_rcp_f32', 'v_rsq_f32', 'v_sqrt_f32', 'v_sin_f32', 'v_cos_f32', 'v_rcp_iflag_f32')


def v(n, cnt=1):
    return f'v{n}' if cnt == 1 else f'v[{n}:{n + cnt - 1}]'


def s(n, cnt=1):
    return f's{n}' if cnt == 1 else f's[{n}:{n + cnt - 1}]'


def regs_of(op):
    op = op.strip()
    op = op.lstrip('-').replace('|', '')
    m = re.fullmatch(r'abs\((.*)\)', op)
    if m:
        op = m.group(1)
    m = re.fullmatch(r'([vsa])(\d+)', op)
    if m:
        return {(m.group(1), int(m.group(2)))}
    m = re.fullmatch(r'([vsa])\[(\d+):(\d+)\]', op)
    if m:
        return {(m.group(1), i) for i in range(int(m.group(2)), int(m.group(3)) + 1)}
    if op == 'vcc':
        return {('s', 'vcc_lo'), ('s', 'vcc_hi')}
    if op in ('vcc_lo', 'vcc_hi', 'm0', 'exec_lo', 'exec_hi'):
        return {('s', op)}
    if op == 'exec':
        return {('s', 'exec_lo'), ('s', 'exec_hi')}
    return set()


class Ins:
    def __init__(self, text, idx_range=None):
        self.text = text
        t = text.split(';')[0].strip()
        self.label = t[:-1] if t.endswith(':') else None
        self.directive = t.startswith('.') and not self.label
        self.op = ''
        self.ops = []
        self.mods = ''
        self.dst = set()
        self.src = set()
        self.kind = 'none'
        if self.label or self.directive or not t:
            return
        parts = t.split(None, 1)
        self.op = parts[0]
        rest = parts[1] if len(parts) > 1 else ''
        depth = 0
        cur = ''
        ops = []
        for ch in rest:
            if ch in '[(':
                depth += 1
            if ch in '])':
                depth -= 1
            if ch == ',' and depth == 0:
                ops.append(cur.strip())
                cur = ''
            else:
                cur += ch
        if cur.strip():
            last = cur.strip().split(None, 1)
            ops.append(last[0])
            self.mods = last[1] if len(last) > 1 else ''
        self.ops = ops
        op = self.op
        R = [regs_of(o) for o in ops]
        allr = set().union(*R) if R else set()
        if op.startswith('v_mfma'):
            self.kind = 'mfma'
            self.dst = R[0]
            self.srcab = R[1] | R[2]
            self.srcc = R[3]
            self.src = self.srcab | self.srcc
            self.passes = 2 if '4x4x4' in op else 4 if '16x16x' in op else 8
        elif op.startswith('v_'):
            self.kind = 'valu'
            ndst = 1
            if re.match(r'v_(add|sub|subrev|addc|subb|subbrev)_co_u32|v_mad_u64_u32|v_div_scale', op):
                ndst = 2
            self.dst = set().union(*R[:ndst])
            self.src = set().union(*R[ndst:]) if len(R) > ndst else set()
            if re.match(r'v_(fmac|pk_fmac|dot2c)', op) or op.startswith('v_writelane') or 'dpp' in op or 'row_' in self.mods or 'quad_perm' in self.mods:
                self.src |= R[0]
            if op.startswith('v_permlane'):
                self.dst = allr
                self.src = allr
            if op.startswith('v_cmpx'):
                self.dst |= regs_of('exec')
            if idx_range is not None:
                rr = {('v', i) for i in range(*idx_range)}
                self.dst |= rr
                self.src |= rr
        elif op.startswith(('buffer_', 'global_', 'flat_')):
            self.kind = 'vmem'
            if 'load' in op and ' lds' not in (' ' + self.mods) and '_lds_' not in op:
                self.dst = R[0]
                self.src = set().union(*R[1:])
                if 'd16' in op:
                    self.src |= R[0]
            elif 'atomic' in op and 'sc0' in self.mods and op.startswith('global_'):
                self.dst = R[0]
                self.src = set().union(*R[1:])
            else:
                self.src = allr
                if 'store' in op and ('x3' in op or 'x4' in op):
                    self.wide = R[0] if op.startswith('buffer_') else R[1]
        elif op.startswith('ds_'):
            self.kind = 'ds'
            if 'read' in op or 'rtn' in op or 'permute' in op or 'swizzle' in op:
                self.dst = R[0]
                self.src = set().union(*R[1:]) if len(R) > 1 else set()
            else:
                self.src = allr
        elif op.startswith('s_'):
            self.kind = 'salu'
            if op.startswith(('s_cmp', 's_bitcmp', 's_cbranch', 's_branch', 's_waitcnt', 's_nop', 's_barrier', 's_endpgm', 's_setprio', 's_sleep', 's_set_gpr_idx', 's_setpc')):
                self.src = allr
            else:
                self.dst = R[0] if R else set()
                self.src = set().union(*R[1:]) if len(R) > 1 else set()
                if 'saveexec' in op:
                    self.dst |= regs_of('exec')

    def states(self):
        if self.kind == 'none':
            return 0
        if self.op == 's_nop':
            return int(self.ops[0]) + 1
        return 1


def need(p, c):
    n = 0
    pv = {r for r in p.dst if r[0] in 'va'}
    ps = {r for r in p.dst if r[0] == 's'}
    if p.kind == 'valu':
        if c.kind == 'mfma' and pv & c.src:
            n = max(n, 2)
        if c.kind == 'mfma' and ('s', 'exec_lo') in ps:
            n = max(n, 4)
        if c.kind == 'valu':
            if p.op.startswith(TRANS) and not c.op.startswith(TRANS) and pv & c.src:
                n = max(n, 1)
            if c.op.startswith(('v_readlane', 'v_readfirstlane')) and pv & c.src:
                n = max(n, 1)
            isdpp = 'dpp' in c.op or 'row_' in c.mods or 'quad_perm' in c.mods or 'wave_' in c.mods
            if (isdpp or c.op.startswith('v_permlane')) and pv & c.src:
                n = max(n, 2)
            if ps & c.src:
                n = max(n, 4 if c.op.startswith(('v_readlane', 'v_writelane')) else 2)
            if ('sdwa' in p.op and 'dst_sel' in p.mods) and pv & (c.src | c.dst):
                n = max(n, 1)
            if p.op.startswith('v_dot') and pv & (c.src | c.dst):
                n = max(n, 3)
        if c.kind == 'vmem' and ps & c.src:
            n = max(n, 5)
    if p.kind == 'mfma':
        t = {2: 5, 4: 8, 8: 12}[p.passes]
        if c.kind == 'valu' and p.dst & (c.src | c.dst):
            n = max(n, t)
        if c.kind in ('vmem', 'ds') and p.dst & (c.src | c.dst):
            n = max(n, t)
        if c.kind == 'mfma':
            if p.dst & c.srcab:
                n = max(n, t)
            if p.dst & c.srcc:
                if p.dst == c.srcc and p.passes == c.passes:
                    n = max(n, 2 if p.passes == 2 else 0)
                else:
                    n = max(n, {2: 4, 4: 6, 8: 10}[p.passes])
            elif p.dst & c.dst:
                n = max(n, {2: 4, 4: 6, 8: 10}[p.passes])
        if c.kind == 'valu' and p.srcc & c.dst:
            n = max(n, {2: 1, 4: 3, 8: 7}[p.passes])
    if p.kind == 'vmem' and hasattr(p, 'wide'):
        if p.wide & c.dst:
            n = max(n, 2)
    if p.kind == 'salu' and ('s', 'm0') in p.dst and c.kind == 'vmem' and 'lds' in (c.op + ' ' + c.mods):
        n = max(n, 1)
    return n


class Asm:
    def __init__(self):
        self.ins = []
        self.idx_range = None
        self.uid = 0

    def __call__(self, text):
        for line in text.split('\n'):
            if line.strip():
                self.ins.append(Ins(line.strip(), self.idx_range))

    def label(self, name):
        self.ins.append(Ins(name + ':'))

    def newlabel(self, base='L'):
        self.uid += 1
        return f'{base}_{self.uid}'

    def _preds(self):
        lab = {i.label: k for k, i in enumerate(self.ins) if i.label}
        preds = [[] for _ in self.ins]
        for k, i in enumerate(self.ins):
            uncond = i.op in ('s_branch', 's_endpgm', 's_setpc_b64')
            if not uncond and k + 1 < len(self.ins):
                preds[k + 1].append(k)
            if i.op.startswith(('s_branch', 's_cbranch')):
                preds[lab[i.ops[0]]].append(k)
        return preds

    def fix_hazards(self, verbose=False):
        inserted = 0
        while True:
            preds = self._preds()
            found = None
            for k, c in enumerate(self.ins):
                if c.kind == 'none':
                    continue
                worst = 0
                stack = [(p, 0) for p in preds[k]]
                seen = {}
                while stack:
                    j, d = stack.pop()
                    if d >= 12 or seen.get(j, 99) <= d:
                        continue
                    seen[j] = d
                    p = self.ins[j]
                    if p.kind != 'none':
                        n = need(p, c)
                        if n - d > worst:
                            worst = n - d
                            why = p
                    for q in preds[j]:
                        stack.append((q, d + p.states()))
                if worst > 0:
                    found = (k, worst, why)
                    break
            if not found:
                return inserted
            k, worst, why = found
            if verbose:
                print(f'nop {worst} before "{self.ins[k].text}" after "{why.text}"')
            self.ins.insert(k, Ins(f's_nop {worst - 1}'))
            inserted += 1

    def max_regs(self):
        mv = ms = -1
        for i in self.ins:
            for r in i.dst | i.src:
                if r[0] == 'v':
                    mv = max(mv, r[1])
                if r[0] == 's' and isinstance(r[1], int):
                    ms = max(ms, r[1])
        return mv + 1, ms + 1

    def text(self):
        out = []
        for i in self.ins:
            out.append(i.text if (i.label or i.directive) else '    ' + i.text)
        return '\n'.join(out) + '\n'


def kernel_text(name, asm):
    return f'.globl {name}\n.p2align 8\n.type {name},@function\n{name}:\n' + asm.text()


def descriptor(name, nv, ns):
    acc = max(4, (nv + 3) // 4 * 4)
    return f'''.p2align 6
.amdhsa_kernel {name}
  .amdhsa_next_free_vgpr {nv}
  .amdhsa_next_free_sgpr {ns}
  .amdhsa_accum_offset {acc}
  .amdhsa_group_segment_fixed_size 0
  .amdhsa_kernarg_size 88
  .amdhsa_user_sgpr_count 2
  .amdhsa_user_sgpr_kernarg_segment_ptr 1
  .amdhsa_system_sgpr_workgroup_id_x 1
  .amdhsa_float_denorm_mode_32 3
.end_amdhsa_kernel
'''
```

```python
import sys
from asmlib import *

NAME = 'gather_scatter__tensor_product_equiv_tfn__graph'
N, E = 10000, 160000
PAY_OFF = 4 << 20
NULLW = 0x7FFF0000
OPT = dict(extra_empty=0, stamps=0)
for a in sys.argv[2:]:
    k, x = a.split('=')
    OPT[k] = int(x)


def srd(a, d, b, nbytes):
    a(f's_mov_b32 {s(d)}, {s(b)}')
    a(f's_mov_b32 {s(d + 1)}, {s(b + 1)}')
    a(f's_mov_b32 {s(d + 2)}, {nbytes}')
    a(f's_mov_b32 {s(d + 3)}, 0x20000')


def scan64(a, r):
    for sh in (1, 2, 4, 8):
        a(f'v_add_u32_dpp {v(r)}, {v(r)}, {v(r)} row_shr:{sh} row_mask:0xf bank_mask:0xf')
    a(f'v_add_u32_dpp {v(r)}, {v(r)}, {v(r)} row_bcast:15 row_mask:0xa bank_mask:0xf')
    a(f'v_add_u32_dpp {v(r)}, {v(r)}, {v(r)} row_bcast:31 row_mask:0xc bank_mask:0xf')


def k1():
    a = Asm()
    CNT, OFF = 16384, 17408
    a('s_cmp_ge_u32 s2, 256')
    a('s_cbranch_scc1 K1_END')
    a('s_load_dwordx4 s[4:7], s[0:1], 8')
    a('s_load_dwordx4 s[8:11], s[0:1], 24')
    a('s_load_dwordx2 s[12:13], s[0:1], 80')
    a('s_mul_i32 s3, s2, 625')
    a('v_min_u32 v1, 624, v0')
    a('v_add_u32 v1, s3, v1')
    a('v_lshlrev_b32 v2, 2, v1')
    a('v_lshlrev_b32 v3, 3, v1')
    a('s_waitcnt lgkmcnt(0)')
    a('global_load_dword v4, v2, s[6:7]')
    a('global_load_dword v5, v2, s[4:5]')
    a('global_load_dwordx2 v[8:9], v3, s[8:9]')
    a('global_load_dwordx2 v[10:11], v3, s[10:11]')
    for r in range(12, 16):
        a(f'v_mov_b32 v{r}, 0')
    a('v_lshlrev_b32 v6, 4, v0')
    a('ds_write_b128 v6, v[12:15]')
    a('v_cmp_gt_u32 vcc, 448, v0')
    a('s_and_saveexec_b64 s[14:15], vcc')
    a('ds_write_b128 v6, v[12:15] offset:10240')
    a('s_mov_b64 exec, s[14:15]')
    a('v_mov_b32 v12, 1')
    a('v_cmp_gt_u32 vcc, 625, v0')
    a('s_mov_b64 s[16:17], vcc')
    a('s_waitcnt lgkmcnt(0)')
    a('s_barrier')
    a('s_mov_b64 exec, s[16:17]')
    a('s_waitcnt vmcnt(3)')
    a('v_and_b32 v7, 255, v4')
    a('v_lshlrev_b32 v13, 2, v7')
    a(f'ds_add_rtn_u32 v14, v13, v12 offset:{CNT}')
    a('s_mov_b64 exec, -1')
    a('s_waitcnt lgkmcnt(0)')
    a('s_barrier')
    a('v_cmp_gt_u32 vcc, 64, v0')
    a('s_cbranch_vccz K1_NOSCAN')
    a(f'ds_read_b128 v[16:19], v6 offset:{CNT}')
    a('s_waitcnt lgkmcnt(0)')
    a('v_add_u32 v21, v16, v17')
    a('v_add_u32 v22, v21, v18')
    a('v_add_u32 v23, v22, v19')
    a('v_mov_b32 v24, v23')
    scan64(a, 24)
    a('v_sub_u32 v20, v24, v23')
    a('v_add_u32 v23, v20, v22')
    a('v_add_u32 v22, v20, v21')
    a('v_add_u32 v21, v20, v16')
    a(f'ds_write_b128 v6, v[20:23] offset:{OFF}')
    a('s_waitcnt lgkmcnt(0)')
    a.label('K1_NOSCAN')
    a('s_barrier')
    a('s_mov_b64 exec, s[16:17]')
    a(f'ds_read_b32 v15, v13 offset:{OFF}')
    a('s_waitcnt vmcnt(2)')
    a('v_lshrrev_b32 v16, 8, v4')
    a('v_lshl_or_b32 v16, v16, 14, v5')
    a('v_or_b32 v16, 0x40000000, v16')
    a('v_and_b32 v17, 3, v14')
    a('v_lshlrev_b32 v17, 4, v17')
    a('v_and_b32 v18, 12, v14')
    a('v_add_u32 v17, v17, v18')
    a('v_cmp_gt_u32 vcc, 16, v14')
    a('v_mov_b32 v19, 0x80000000')
    a('s_mul_i32 s3, s2, 10240')
    a(f's_add_u32 s3, s3, {PAY_OFF}')
    a('s_waitcnt lgkmcnt(0)')
    a('v_add_u32 v15, v15, v14')
    a('v_lshl_or_b32 v16, v15, 20, v16')
    a('v_cndmask_b32 v16, v19, v16, vcc')
    a('v_cndmask_b32 v17, 0, v17, vcc')
    a('v_lshl_add_u32 v17, v7, 6, v17')
    a('ds_or_b32 v17, v16')
    a('v_lshl_add_u32 v15, v15, 4, s3')
    a('s_waitcnt vmcnt(0)')
    a('global_store_dwordx4 v15, v[8:11], s[12:13]')
    a('s_mov_b64 exec, -1')
    a('s_waitcnt lgkmcnt(0)')
    a('s_barrier')
    a('ds_read_b128 v[16:19], v6')
    a('ds_read_b128 v[20:23], v6 offset:10240')
    a('s_lshl_b32 s3, s2, 14')
    a('v_add_u32 v7, s3, v6')
    a('v_add_u32 v13, 10240, v7')
    a('v_cmp_gt_u32 vcc, 384, v0')
    a('s_waitcnt lgkmcnt(1)')
    a('global_store_dwordx4 v7, v[16:19], s[12:13]')
    a('s_and_saveexec_b64 s[14:15], vcc')
    a('s_cbranch_execz K1_END')
    a('s_waitcnt lgkmcnt(0)')
    a('global_store_dwordx4 v13, v[20:23], s[12:13]')
    a.label('K1_END')
    a('s_endpgm')
    return a, 20480 + 256


def k2():
    a = Asm()
    WMIX = 0
    AGG, AGG_W, AGG_ROW = 32768, 20 * 272, 272
    REC, REC_W = AGG + 8 * AGG_W, 192 * 16
    TT, TT_W = REC + 8 * REC_W, 128 * 32
    CNT = TT + 8 * TT_W + 1024
    FLAG = CNT + 64
    LDS = CNT + 128
    sX, sC, sP, sE, sO = 8, 12, 16, 20, 24
    sPTR = 28
    pX, pSRC, pDST, pY, pEF, pWR, pCG, pWM, pOUT, pDBG, pWS = [sPTR + 2 * i for i in range(11)]
    sBK, sW, sMODE, sBASE, sSH, sCNT, sT0, sT1, sOFF = 52, 53, 54, 55, 56, 57, 58, 59, 60
    sM = 62
    sWD = 64
    sV = 72
    sPERM0, sPERM1 = 80, 81
    vLN, vL16 = 1, 2
    vACC = 4
    vX = 44
    vTP = 76
    vZ = 84
    vR = 100
    vE = 116
    vTA, vTB = 120, 122
    vRA, vRB = 124, 128
    vWH, vWL = 132, 136
    vCG = 140
    vAT, vAR = 142, 143
    vONE = 144
    vC = 148
    vB0, vB1 = 156, 157
    vG = 160
    vWM = 224

    a('s_cmp_ge_u32 s2, 256')
    a('s_cbranch_scc1 K2_END')
    a(f's_load_dwordx16 {s(sPTR, 16)}, s[0:1], 0')
    a(f's_load_dwordx4 {s(pOUT, 4)}, s[0:1], 64')
    a(f's_load_dwordx2 {s(pWS, 2)}, s[0:1], 80')
    a(f's_and_b32 {s(sT0)}, s2, 7')
    a(f's_lshl_b32 {s(sT0)}, {s(sT0)}, 5')
    a(f's_lshr_b32 {s(sBK)}, s2, 3')
    a(f's_add_u32 {s(sBK)}, {s(sBK)}, {s(sT0)}')
    a(f'v_lshrrev_b32 v3, 6, v0')
    a(f'v_and_b32 {v(vLN)}, 63, v0')
    a(f'v_readfirstlane_b32 {s(sW)}, v3')
    a(f'v_lshlrev_b32 {v(vL16)}, 4, {v(vLN)}')
    a(f'v_lshrrev_b32 {v(vG)}, 2, v0')
    a(f'v_and_b32 {v(vG + 1)}, 3, v0')
    a(f'v_lshlrev_b32 {v(vG + 1)}, 4, {v(vG + 1)}')
    a(f'v_lshl_add_u32 {v(vG + 1)}, {v(vG)}, 14, {v(vG + 1)}')
    a(f's_lshl_b32 {s(sT0)}, {s(sBK)}, 6')
    a(f's_add_u32 {s(sT1)}, {s(sT0)}, {128 * 16384}')
    a(f'v_mul_u32_u24 {v(vB0)}, 10240, {v(vG)}')
    a(f'v_add_u32 {v(vB1)}, {128 * 10240}, {v(vB0)}')
    a('s_waitcnt lgkmcnt(0)')
    srd(a, sC, pWS, PAY_OFF)
    a(f'buffer_load_dwordx4 {v(vC, 4)}, {v(vG + 1)}, {s(sC, 4)}, {s(sT0)} offen')
    a(f'buffer_load_dwordx4 {v(vC + 4, 4)}, {v(vG + 1)}, {s(sC, 4)}, {s(sT1)} offen')
    a(f'v_lshlrev_b32 {v(vG + 2)}, 2, {v(vLN)}')
    for k in range(4):
        a(f'global_load_dword {v(vG + 8 + k)}, {v(vG + 2)}, {s(pWR, 2)} offset:{k * 256}')
    a(f'v_and_b32 {v(vG + 3)}, 3, v0')
    a(f'v_lshlrev_b32 {v(vG + 3)}, 5, {v(vG + 3)}')
    a(f'v_bfe_u32 {v(vG + 4)}, v0, 2, 2')
    a(f'v_lshl_add_u32 {v(vG + 3)}, {v(vG + 4)}, 1, {v(vG + 3)}')
    for f in range(4):
        a(f'global_load_ushort {v(vG + 12 + f)}, {v(vG + 3)}, {s(pCG, 2)} offset:{f * 8}')
    a(f'v_lshrrev_b32 {v(vG + 4)}, 5, v0')
    a(f'v_and_b32 {v(vG + 5)}, 31, v0')
    a(f'v_lshlrev_b32 {v(vG + 5)}, 2, {v(vG + 5)}')
    a(f'v_lshl_add_u32 {v(vG + 5)}, {v(vG + 4)}, 11, {v(vG + 5)}')
    for q in range(2):
        for i in range(8):
            a(f'global_load_dword {v(vWM + q * 8 + i)}, {v(vG + 5)}, {s(pWM, 2)} offset:{i * 256 + q * 128}')
    srd(a, sX, pX, N * 1024)
    srd(a, sO, pOUT, N * 1024)
    a(f's_add_u32 {s(sP)}, {s(pWS)}, {PAY_OFF}')
    a(f's_addc_u32 {s(sP + 1)}, {s(pWS + 1)}, 0')
    a(f's_mov_b32 {s(sP + 2)}, {256 * 10240}')
    a(f's_mov_b32 {s(sP + 3)}, 0x20000')
    srd(a, sE, pEF, E * 8)
    a(f's_mov_b32 {s(sMODE)}, 0')
    a(f's_mov_b32 {s(sBASE)}, 0')
    a(f's_mov_b32 {s(sSH)}, 4')
    a(f's_mov_b32 {s(sPERM0)}, 0x05040100')
    a(f's_mov_b32 {s(sPERM1)}, 0x07060302')
    for r in range(40):
        a(f'v_mov_b32 {v(vACC + r)}, 0')
    a(f'v_mov_b32 {v(vONE)}, 1.0')
    a(f'v_mov_b32 {v(vONE + 1)}, 1.0')

    a.label('BATCH')
    a(f's_mul_i32 {s(sT0)}, {s(sW)}, {REC_W}')
    a(f's_add_u32 {s(sT0)}, {s(sT0)}, {REC}')
    a(f'v_add_u32 {v(vAR)}, {s(sT0)}, {v(vL16)}')
    a(f'v_mov_b32 {v(vG + 16)}, 0')
    a(f'v_mov_b32 {v(vG + 17)}, 0')
    a(f'v_mov_b32 {v(vG + 18)}, {NULLW}')
    a(f'v_mov_b32 {v(vG + 19)}, {NULLW}')
    for k in range(3):
        a(f'ds_write_b128 {v(vAR)}, {v(vG + 16, 4)} offset:{k * 1024}')
    a(f'v_and_b32 {v(vG + 20)}, 31, v0')
    a(f'v_lshlrev_b32 {v(vG + 20)}, 2, {v(vG + 20)}')
    a(f'v_add_u32 {v(vG + 20)}, {CNT}, {v(vG + 20)}')
    a(f'ds_write_b32 {v(vG + 20)}, {v(vG + 16)}')
    a('s_waitcnt lgkmcnt(0)')
    a('s_barrier')
    a('s_waitcnt vmcnt(24)')
    dense = [vC, vC + 1, vC + 4, vC + 5]
    rare = [vC + 2, vC + 3, vC + 6, vC + 7]
    a(f'v_or_b32 {v(vG + 21)}, {v(vC)}, {v(vC + 4)}')
    a(f'v_cmp_gt_i32 vcc, 0, {v(vG + 21)}')
    a('s_cbranch_vccz NOFLAG')
    a(f'v_mov_b32 {v(vG + 21)}, {FLAG}')
    a(f'ds_write_b32 {v(vG + 21)}, {v(vG + 18)}')
    a.label('NOFLAG')
    rt = [vG + 24 + 8 * r for r in range(4)]
    for r, e in enumerate(dense):
        t = rt[r]
        a(f'v_cmp_ne_u32 {s(sV + 2 * r, 2)}, 0, {v(e)}')
        a(f'v_and_b32 {v(t)}, 0x3fff, {v(e)}')
        a(f'v_mul_u32_u24 {v(t + 1)}, 26844, {v(t)}')
        a(f'v_lshrrev_b32 {v(t + 1)}, 23, {v(t + 1)}')
        a(f'v_and_b32 {v(t + 1)}, 24, {v(t + 1)}')
        a(f'v_lshlrev_b32 {v(t + 2)}, {v(t + 1)}, 1')
        a(f'v_mov_b32 {v(t + 3)}, 1')
        a(f'v_bfe_u32 {v(t + 5)}, {v(e)}, 14, 3')
        a(f'v_lshlrev_b32 {v(t + 4)}, 3, {v(t + 5)}')
        a(f'v_add_u32 {v(t + 4)}, {CNT}, {v(t + 4)}')
        a(f's_mov_b64 exec, {s(sV + 2 * r, 2)}')
        a(f'ds_add_rtn_u64 {v(t + 6, 2)}, {v(t + 4)}, {v(t + 2, 2)}')
        a('s_mov_b64 exec, -1')
    a('s_waitcnt lgkmcnt(0)')
    a('s_barrier')
    for r in range(4):
        t = rt[r]
        a(f'ds_read_b32 {v(t + 3)}, {v(t + 4)}')
    for r, e in enumerate(dense):
        t = rt[r]
        base = vB0 if r < 2 else vB1
        a(f'v_bfe_u32 {v(t + 6)}, {v(t + 6)}, {v(t + 1)}, 8')
        a(f'v_add_u32 {v(t + 2)}, -1, {v(t + 2)}')
        a(f'v_mul_u32_u24 {v(t + 5)}, {REC_W}, {v(t + 5)}')
        a(f'v_bfe_u32 {v(t + 1)}, {v(e)}, 17, 3')
        a(f'v_lshlrev_b32 {v(t + 1)}, 3, {v(t + 1)}')
        a(f'v_lshl_or_b32 {v(t)}, {v(t)}, 10, {v(t + 1)}')
        a(f'v_bfe_u32 {v(t + 1)}, {v(e)}, 20, 10')
        a(f'v_lshl_add_u32 {v(t + 1)}, {v(t + 1)}, {s(sSH)}, {v(base)}')
        if r == 0:
            a('s_waitcnt lgkmcnt(0)')
        a(f'v_and_b32 {v(t + 3)}, {v(t + 3)}, {v(t + 2)}')
        a(f'v_sad_u8 {v(t + 6)}, {v(t + 3)}, 0, {v(t + 6)}')
        a(f'v_min_u32 {v(t + 6)}, 127, {v(t + 6)}')
        a(f'v_lshl_add_u32 {v(t + 6)}, {v(t + 6)}, 4, {v(t + 5)}')
        a(f'v_add_u32 {v(t + 6)}, {REC + 8}, {v(t + 6)}')
        a(f's_mov_b64 exec, {s(sV + 2 * r, 2)}')
        a(f'ds_write_b64 {v(t + 6)}, {v(t, 2)}')
        a('s_mov_b64 exec, -1')
    a(f'v_or_b32 {v(vG + 21)}, {v(vC + 2)}, {v(vC + 6)}')
    a(f'v_cmp_ne_u32 vcc, 0, {v(vG + 21)}')
    a('s_cbranch_vccz NORARE')
    t = rt[0]
    for r, e in enumerate(rare):
        base = vB0 if r < 2 else vB1
        a(f'v_cmp_ne_u32 vcc, 0, {v(e)}')
        a(f'v_bfe_u32 {v(t + 5)}, {v(e)}, 14, 3')
        a(f'v_lshlrev_b32 {v(t + 4)}, 3, {v(t + 5)}')
        a(f'v_add_u32 {v(t + 4)}, {CNT + 4}, {v(t + 4)}')
        a(f'v_mov_b32 {v(t + 3)}, 1')
        a('s_mov_b64 exec, vcc')
        a(f'ds_add_rtn_u32 {v(t + 6)}, {v(t + 4)}, {v(t + 3)}')
        a(f'v_and_b32 {v(t)}, 0x3fff, {v(e)}')
        a(f'v_mul_u32_u24 {v(t + 5)}, {REC_W}, {v(t + 5)}')
        a(f'v_bfe_u32 {v(t + 1)}, {v(e)}, 17, 3')
        a(f'v_lshlrev_b32 {v(t + 1)}, 3, {v(t + 1)}')
        a(f'v_lshl_or_b32 {v(t)}, {v(t)}, 10, {v(t + 1)}')
        a(f'v_bfe_u32 {v(t + 1)}, {v(e)}, 20, 10')
        a(f'v_lshl_add_u32 {v(t + 1)}, {v(t + 1)}, {s(sSH)}, {v(base)}')
        a('s_waitcnt lgkmcnt(0)')
        a(f'v_min_u32 {v(t + 6)}, 127, {v(t + 6)}')
        a(f'v_lshl_add_u32 {v(t + 6)}, {v(t + 6)}, 4, {v(t + 5)}')
        a(f'v_add_u32 {v(t + 6)}, {REC + 8}, {v(t + 6)}')
        a(f'ds_write_b64 {v(t + 6)}, {v(t, 2)}')
        a('s_mov_b64 exec, -1')
    a.label('NORARE')
    a(f's_cmp_lg_u32 {s(sMODE)}, 0')
    a('s_cbranch_scc1 NOCONST')
    a('s_waitcnt vmcnt(0)')
    a(f's_lshl_b32 {s(sT0)}, {s(sW)}, 11')
    a(f'v_add_u32 {v(vG + 21)}, {s(sT0)}, {v(vL16)}')
    for q in range(2):
        for r in range(2):
            t = vG + 24 + (q * 2 + r) * 4
            for m in range(4):
                a(f'v_perm_b32 {v(t + m)}, {v(vWM + q * 8 + 2 * m + 1)}, {v(vWM + q * 8 + 2 * m)}, {s(sPERM0 + r)}')
            a(f'ds_write_b128 {v(vG + 21)}, {v(t, 4)} offset:{WMIX + q * 16384 + r * 1024}')
    a(f'v_lshl_or_b32 {v(vCG)}, {v(vG + 13)}, 16, {v(vG + 12)}')
    a(f'v_lshl_or_b32 {v(vCG + 1)}, {v(vG + 15)}, 16, {v(vG + 14)}')
    t = vG + 40
    for h in range(2):
        for k in range(4):
            if h == 0:
                a(f'v_lshlrev_b32 {v(t + k)}, 16, {v(vG + 8 + k)}')
            else:
                a(f'v_and_b32 {v(t + k)}, 0xffff0000, {v(vG + 8 + k)}')
            a(f'v_mul_f32 {v(t + k)}, 0xbfb8aa3b, {v(t + k)}')
        for m in range(2):
            a(f'v_cvt_pk_bf16_f32 {v(vWH + 2 * h + m)}, {v(t + 2 * m)}, {v(t + 2 * m + 1)}')
            a(f'v_lshlrev_b32 {v(t + 4)}, 16, {v(vWH + 2 * h + m)}')
            a(f'v_and_b32 {v(t + 5)}, 0xffff0000, {v(vWH + 2 * h + m)}')
            a(f'v_sub_f32 {v(t + 4)}, {v(t + 2 * m)}, {v(t + 4)}')
            a(f'v_sub_f32 {v(t + 5)}, {v(t + 2 * m + 1)}, {v(t + 5)}')
            a(f'v_cvt_pk_bf16_f32 {v(vWL + 2 * h + m)}, {v(t + 4)}, {v(t + 5)}')
    a.label('NOCONST')
    a('s_waitcnt lgkmcnt(0)')
    a('s_barrier')
    a(f'ds_read_b32 {v(vG + 21)}, {v(vG + 20)}')
    a(f'ds_read_b64 {v(vG + 24, 2)}, {v(vAR)} offset:8')
    a(f'ds_read_b64 {v(vG + 26, 2)}, {v(vAR)} offset:{1024 + 8}')
    a(f's_lshl_b32 {s(sT0)}, {s(sW)}, 1')
    a(f's_add_u32 {s(sT0)}, {s(sT0)}, 1')
    a('s_waitcnt lgkmcnt(2)')
    a(f'v_readlane_b32 {s(sCNT)}, {v(vG + 21)}, {s(sT0)}')
    a(f'v_cmp_lt_u32 vcc, 128, {v(vG + 21)}')
    a(f's_and_b32 {s(sT0)}, vcc_lo, 0x1aaaa')
    a('s_cbranch_scc1 SLOW_ENTER')
    a(f's_cmp_eq_u32 {s(sCNT)}, 0')
    a('s_cbranch_scc1 LIST_DONE')
    pay = [vG + 28, vG + 32]
    a('s_waitcnt lgkmcnt(0)')
    a(f's_cmp_lg_u32 {s(sMODE)}, 0')
    a('s_cbranch_scc1 PAY_SLOW')
    a(f'buffer_load_dwordx4 {v(pay[0], 4)}, {v(vG + 25)}, {s(sP, 4)}, 0 offen')
    a(f'buffer_load_dwordx4 {v(pay[1], 4)}, {v(vG + 27)}, {s(sP, 4)}, 0 offen')
    a.label('PAY_JOIN')
    for k in range(8):
        a(f'v_readlane_b32 {s(sWD + k)}, {v(vG + 24)}, {k}')
    for k in range(7):
        a(f's_and_b32 {s(sOFF)}, {s(sWD + k)}, 0xfffffc00')
        a(f'buffer_load_dwordx4 {v(vX + 4 * k, 4)}, {v(vL16)}, {s(sX, 4)}, {s(sOFF)} offen')
    a(f's_lshl_b32 {s(sT0)}, {s(sW)}, 12')
    a(f's_add_u32 {s(sT0)}, {s(sT0)}, {TT}')
    a(f'v_lshl_add_u32 {v(vG + 22)}, {v(vLN)}, 5, {s(sT0)}')
    a(f'v_lshl_add_u32 {v(vAT)}, {v(vLN)}, 3, {s(sT0)}')
    for st in range(2):
        a(f's_waitcnt vmcnt({8 - st})')
        d = vG + 36
        for o in range(4):
            a(f'v_mfma_f32_4x4x4_16b_bf16 {v(d + 4 * o, 4)}, {v(vCG, 2)}, {v(pay[st], 2)}, 0 cbsz:4 abid:{o}')
        a(f'ds_write_b64 {v(vAR)}, {v(pay[st] + 2, 2)} offset:{st * 1024}')
        c = vG + 52
        for o in range(4):
            for m in range(2):
                a(f'v_cvt_pk_bf16_f32 {v(c + 2 * o + m)}, {v(d + 4 * o + 2 * m)}, {v(d + 4 * o + 2 * m + 1)}')
        a(f'ds_write_b128 {v(vG + 22)}, {v(c, 4)} offset:{st * 2048}')
        a(f'ds_write_b128 {v(vG + 22)}, {v(c + 4, 4)} offset:{st * 2048 + 16}')

    def zmfma(buf, j, rec):
        h = j & 1
        d = vZ + 8 * buf + 4 * h
        if j < 2:
            a(f'v_mfma_f32_4x4x4_16b_bf16 {v(d, 4)}, {v(rec, 2)}, {v(vWH + 2 * h, 2)}, 0 cbsz:4 abid:0')
        else:
            a(f'v_mfma_f32_4x4x4_16b_bf16 {v(d, 4)}, {v(rec, 2)}, {v(vWL + 2 * h, 2)}, {v(d, 4)} cbsz:4 abid:0')

    def pair(base, buf, p):
        return base + 8 * buf + 4 * (p & 1) + 2 * (p >> 1)

    a(f'ds_read_b128 {v(vRA, 4)}, {v(vAR)}')
    a(f'ds_read_b128 {v(vRB, 4)}, {v(vAR)} offset:64')
    a(f'ds_read_b64 {v(vTA, 2)}, {v(vAT)}')
    a('s_waitcnt lgkmcnt(1)')
    for j in range(4):
        zmfma(0, j, vRA)
        zmfma(1, j, vRB)
    a(f'ds_read_b128 {v(vRA, 4)}, {v(vAR)} offset:128')
    for p in range(4):
        e = vE + 2 * (p & 1)
        z = pair(vZ, 0, p)
        a(f'v_exp_f32 {v(e)}, {v(z)}')
        a(f'v_exp_f32 {v(e + 1)}, {v(z + 1)}')
        a(f'v_pk_add_f32 {v(e, 2)}, {v(e, 2)}, {v(vONE, 2)}')
        if p < 3:
            a(f'v_rcp_f32 {v(e)}, {v(e)}')
            a(f'v_rcp_f32 {v(e + 1)}, {v(e + 1)}')
            a(f'v_pk_mul_f32 {v(pair(vR, 0, p), 2)}, {v(e, 2)}, {v(z, 2)}')
    a(f's_add_u32 {s(sCNT)}, {s(sCNT)}, 7')
    a(f's_lshr_b32 {s(sCNT)}, {s(sCNT)}, 3')

    a.label('LOOP')
    for g in range(2):
        T, Rc = (vTA, vRA) if g == 0 else (vTB, vRB)
        To, Ro = (vTB, vRB) if g == 0 else (vTA, vRA)
        a('s_waitcnt lgkmcnt(0)')
        a(f'ds_read_b64 {v(To, 2)}, {v(vAT)} offset:{(g + 1) * 128}')
        a(f'ds_read_b128 {v(Ro, 4)}, {v(vAR)} offset:{(g + 3) * 64}')
        for j in range(4):
            k = 4 * g + j
            kp = (k + 7) % 8
            en = vE + 2 * (j & 1)
            eo = vE + 2 * ((j + 1) & 1)
            zn = pair(vZ, (g + 1) & 1, j)
            if j == 0:
                zo, ro = pair(vZ, g, 3), pair(vR, g, 3)
            else:
                zo, ro = pair(vZ, (g + 1) & 1, j - 1), pair(vR, (g + 1) & 1, j - 1)
            a('s_waitcnt vmcnt(6)')
            a(f'v_mfma_f32_4x4x4_16b_bf16 {v(vTP, 4)}, {v(T, 2)}, {v(vX + 4 * k, 2)}, 0 cbsz:4 abid:{j}')
            a(f's_and_b32 {s(sOFF)}, {s(sWD + kp)}, 0xfffffc00')
            a(f'buffer_load_dwordx4 {v(vX + 4 * kp, 4)}, {v(vL16)}, {s(sX, 4)}, {s(sOFF)} offen')
            a(f'v_exp_f32 {v(en)}, {v(zn)}')
            a(f'v_mfma_f32_4x4x4_16b_bf16 {v(vTP + 4, 4)}, {v(T, 2)}, {v(vX + 4 * k + 2, 2)}, 0 cbsz:4 abid:{j}')
            a(f'v_exp_f32 {v(en + 1)}, {v(zn + 1)}')
            zmfma(g, j, Rc)
            a(f'v_rcp_f32 {v(eo)}, {v(eo)}')
            a(f'v_rcp_f32 {v(eo + 1)}, {v(eo + 1)}')
            a(f'v_pk_add_f32 {v(en, 2)}, {v(en, 2)}, {v(vONE, 2)}')
            a(f'v_pk_mul_f32 {v(ro, 2)}, {v(eo, 2)}, {v(zo, 2)}')
            a(f's_set_gpr_idx_on {s(sWD + k)}, gpr_idx(SRC2,DST)')
            a.idx_range = (vACC, vACC + 40)
            sel = j & 1
            for h in range(2):
                rp = vR + 8 * g + 4 * h + 2 * (j >> 1)
                for m in range(2):
                    d = vACC + 4 * h + 2 * m
                    a(f'v_pk_fma_f32 {v(d, 2)}, {v(rp, 2)}, {v(vTP + 4 * h + 2 * m, 2)}, {v(d, 2)} op_sel:[{sel},0,0] op_sel_hi:[{sel},1,1]')
            a.idx_range = None
            a('s_set_gpr_idx_off')
            a(f'v_readlane_b32 {s(sWD + k)}, {v(Rc + 2)}, {j}')
    a(f'v_add_u32 {v(vAT)}, 256, {v(vAT)}')
    a(f'v_add_u32 {v(vAR)}, 128, {v(vAR)}')
    a(f's_sub_u32 {s(sCNT)}, {s(sCNT)}, 1')
    a(f's_cmp_lg_u32 {s(sCNT)}, 0')
    a('s_cbranch_scc1 LOOP')
    a.label('LIST_DONE')
    a('s_waitcnt vmcnt(0) lgkmcnt(0)')
    a(f's_cmp_lg_u32 {s(sMODE)}, 0')
    a('s_cbranch_scc1 SLOW_NEXT')

    a.label('MIX')
    vA = 44
    vBb = 76
    vD = 108
    vS = 172
    vAd = 200
    a(f's_mul_i32 {s(sT0)}, {s(sW)}, {AGG_W}')
    a(f's_add_u32 {s(sT0)}, {s(sT0)}, {AGG}')
    a(f'v_lshl_add_u32 {v(vAd)}, {v(vLN)}, 2, {s(sT0)}')
    a(f'v_and_b32 {v(vAd + 1)}, 31, {v(vLN)}')
    a(f'v_lshrrev_b32 {v(vAd + 2)}, 5, {v(vLN)}')
    a(f'v_mul_u32_u24 {v(vAd + 3)}, {AGG_ROW}, {v(vAd + 1)}')
    a(f'v_lshl_add_u32 {v(vAd + 3)}, {v(vAd + 2)}, 4, {v(vAd + 3)}')
    a(f'v_add_u32 {v(vAd + 3)}, {s(sT0)}, {v(vAd + 3)}')
    a(f'v_mov_b32 {v(vAd + 4)}, 0xbf317218')
    a(f'v_mov_b32 {v(vAd + 5)}, 0xbf317218')
    for i in range(8):
        a(f'ds_read_b128 {v(vBb + 4 * i, 4)}, {v(vL16)} offset:{WMIX + i * 1024}')
    for sl in range(5):
        for m in range(4):
            d = vACC + 8 * sl + 2 * m
            a(f'v_pk_mul_f32 {v(d, 2)}, {v(d, 2)}, {v(vAd + 4, 2)}')
        for o in range(4):
            a(f'v_cvt_pk_bf16_f32 {v(vS + 4 * sl + o)}, {v(vACC + 8 * sl + o)}, {v(vACC + 8 * sl + 4 + o)}')
            a(f'ds_write_b32 {v(vAd)}, {v(vS + 4 * sl + o)} offset:{(4 * sl + o) * AGG_ROW}')
        if sl == 1:
            a('s_waitcnt lgkmcnt(4)')
        if sl == 3:
            a('s_waitcnt lgkmcnt(4)')
    a('s_waitcnt lgkmcnt(0)')
    for kk in range(8):
        a(f'ds_read_b128 {v(vA + 4 * kk, 4)}, {v(vAd + 3)} offset:{kk * 32}')
    a(f'v_lshlrev_b32 {v(vAd + 2)}, 21, {v(vAd + 2)}')
    a(f'v_lshl_add_u32 {v(vAd + 2)}, {v(vAd + 1)}, 4, {v(vAd + 2)}')
    a(f's_lshl_b32 {s(sT0)}, {s(sW)}, 18')
    a(f's_lshl_b32 {s(sT1)}, {s(sBK)}, 10')
    a(f's_add_u32 {s(sT0)}, {s(sT0)}, {s(sT1)}')
    a(f'v_add_u32 {v(vAd + 2)}, {s(sT0)}, {v(vAd + 2)}')
    a(f's_mov_b32 {s(sWD)}, 0')
    a(f's_mov_b32 {s(sWD + 1)}, {1 << 22}')
    a(f's_mov_b32 {s(sWD + 2)}, {2 << 22}')
    a('s_waitcnt lgkmcnt(0)')

    def outq(q, rr):
        st = vS + 12 * q + 4 * rr
        for r in range(2):
            d = vD + 32 * q + 16 * r + 4 * rr
            a(f'v_cvt_pk_bf16_f32 {v(st + 2 * r)}, {v(d)}, {v(d + 1)}')
            a(f'v_cvt_pk_bf16_f32 {v(st + 2 * r + 1)}, {v(d + 2)}, {v(d + 3)}')
        a(f'buffer_store_dwordx4 {v(st, 4)}, {v(vAd + 2)}, {s(sO, 4)}, {s(sWD + rr)} offen offset:{q * 512}')

    for i in range(32):
        q, kk, r = i >> 4, (i >> 1) & 7, i & 1
        d = vD + 32 * q + 16 * r
        b = vBb + 4 * (i & 7)
        if i >= 8:
            a(f's_waitcnt lgkmcnt({min(7, 31 - i)})')
        a(f'v_mfma_f32_32x32x16_bf16 {v(d, 16)}, {v(vA + 4 * kk, 4)}, {v(b, 4)}, {"0" if kk == 0 else v(d, 16)}')
        if i + 8 < 32:
            a(f'ds_read_b128 {v(b, 4)}, {v(vL16)} offset:{WMIX + (i + 8) * 1024}')
        if i in (20, 22, 24):
            outq(0, (i - 20) // 2)
    for rr in range(3):
        outq(1, rr)
    a.label('K2_END')
    a('s_endpgm')

    a.label('PAY_SLOW')
    for st in range(2):
        a(f'buffer_load_dwordx2 {v(pay[st], 2)}, {v(vG + 25 + 2 * st)}, {s(sP, 4)}, 0 offen')
        a(f'buffer_load_dwordx2 {v(pay[st] + 2, 2)}, {v(vG + 25 + 2 * st)}, {s(sE, 4)}, 0 offen')
    a('s_waitcnt vmcnt(0)')
    a('s_branch PAY_JOIN')
    a.label('SLOW_ENTER')
    a(f's_mov_b32 {s(sMODE)}, 1')
    a(f's_mov_b32 {s(sSH)}, 3')
    srd(a, sP, pY, E * 8)
    a('s_branch SLOW_LOAD')
    a.label('SLOW_NEXT')
    a(f's_add_u32 {s(sBASE)}, {s(sBASE)}, 128')
    a(f's_cmp_ge_u32 {s(sBASE)}, {E}')
    a('s_cbranch_scc1 MIX')
    a.label('SLOW_LOAD')
    a('s_waitcnt lgkmcnt(0)')
    a('s_barrier')
    a(f'v_and_b32 {v(vG + 24)}, 127, v0')
    a(f'v_add_lshl_u32 {v(vG + 25)}, {v(vG + 24)}, {s(sBASE)}, 2')
    a(f'global_load_dword {v(vG + 26)}, {v(vG + 25)}, {s(pDST, 2)}')
    a(f'global_load_dword {v(vG + 27)}, {v(vG + 25)}, {s(pSRC, 2)}')
    for r in range(1, 8):
        a(f'v_mov_b32 {v(vC + r)}, 0')
    a(f's_lshl_b32 {s(sT0)}, {s(sBASE)}, 3')
    a(f'v_mov_b32 {v(vB0)}, {s(sT0)}')
    a(f'v_lshrrev_b32 {v(vG + 28)}, 7, v0')
    a('s_waitcnt vmcnt(0)')
    a(f'v_and_b32 {v(vG + 25)}, 255, {v(vG + 26)}')
    a(f'v_lshl_or_b32 {v(vG + 25)}, {v(vG + 28)}, 8, {v(vG + 25)}')
    a(f'v_cmp_eq_u32 vcc, {s(sBK)}, {v(vG + 25)}')
    a(f'v_lshrrev_b32 {v(vG + 26)}, 8, {v(vG + 26)}')
    a(f'v_lshl_or_b32 {v(vG + 26)}, {v(vG + 26)}, 14, {v(vG + 27)}')
    a(f'v_lshl_or_b32 {v(vG + 26)}, {v(vG + 24)}, 20, {v(vG + 26)}')
    a(f'v_or_b32 {v(vG + 26)}, 0x40000000, {v(vG + 26)}')
    a(f'v_cndmask_b32 {v(vC)}, 0, {v(vG + 26)}, vcc')
    a('s_branch BATCH')
    return a, LDS


def main():
    a1, lds1 = k1()
    a2, lds2 = k2()
    n1 = a1.fix_hazards(True)
    n2 = a2.fix_hazards(True)
    ref = open('cdna_kernels/' + NAME + '.s.ref').read().split('\n')
    head = [l for l in ref if l.startswith(';') and '@launch' not in l and 'Override' not in l and 'grid=ceil' not in l]
    out = '\n'.join(head) + '\n'
    for i in range(OPT['extra_empty']):
        out += '; @launch kernel=empty_kernel grid=(256,1,1) block=(64,1,1) lds=0\n'
    out += f'; @launch kernel=sort_kernel grid=(256,1,1) block=(640,1,1) lds={lds1}\n'
    out += f'; @launch kernel={NAME}_kernel grid=(256,1,1) block=(512,1,1) lds={lds2}\n'
    out += '.amdgcn_target "amdgcn-amd-amdhsa--gfx950"\n.text\n'
    out += kernel_text('sort_kernel', a1)
    out += kernel_text(NAME + '_kernel', a2)
    if OPT['extra_empty']:
        e = Asm()
        e('s_endpgm')
        out += kernel_text('empty_kernel', e)
    out += '.section .rodata,"a"\n'
    out += descriptor('sort_kernel', *a1.max_regs())
    out += descriptor(NAME + '_kernel', *a2.max_regs())
    if OPT['extra_empty']:
        out += descriptor('empty_kernel', 4, 8)
    open(sys.argv[1], 'w').write(out)
    print('regs', a1.max_regs(), a2.max_regs(), 'lds', lds1, lds2, 'nops', n1, n2)


main()
```

```python
import sys
from asmlib import *

NAME = 'gather_scatter__tensor_product_equiv_tfn__graph'
N, E = 10000, 160000
PAY_OFF = 4 << 20
NULLW = 0x7FFF0000
OPT = dict(extra_empty=0, stamps=0)
for a in sys.argv[2:]:
    k, x = a.split('=')
    OPT[k] = int(x)


def srd(a, d, b, nbytes):
    a(f's_mov_b32 {s(d)}, {s(b)}')
    a(f's_mov_b32 {s(d + 1)}, {s(b + 1)}')
    a(f's_mov_b32 {s(d + 2)}, {nbytes}')
    a(f's_mov_b32 {s(d + 3)}, 0x20000')


def scan64(a, r):
    for sh in (1, 2, 4, 8):
        a(f'v_add_u32_dpp {v(r)}, {v(r)}, {v(r)} row_shr:{sh} row_mask:0xf bank_mask:0xf')
    a(f'v_add_u32_dpp {v(r)}, {v(r)}, {v(r)} row_bcast:15 row_mask:0xa bank_mask:0xf')
    a(f'v_add_u32_dpp {v(r)}, {v(r)}, {v(r)} row_bcast:31 row_mask:0xc bank_mask:0xf')


def stamp(a, i, base):
    if OPT['stamps']:
        a(f's_memrealtime {s(base + 2 * i, 2)}')
        a('s_waitcnt lgkmcnt(0)')


def emit_stamps(a, ids, base, ptr, off, vt):
    if not OPT['stamps']:
        return
    a('s_mov_b64 exec, -1')
    a(f'v_mov_b32 {v(vt)}, 0')
    for i, w in ids:
        a(f'v_writelane_b32 {v(vt)}, {s(base + 2 * i)}, {w}')
        a(f's_not_b32 {s(base + 2 * i)}, {s(base + 2 * i)}')
        a(f'v_writelane_b32 {v(vt)}, {s(base + 2 * i)}, {8 + w}')
    a(f'v_and_b32 {v(vt + 1)}, 63, v0')
    a(f'v_lshlrev_b32 {v(vt + 1)}, 2, {v(vt + 1)}')
    a(f's_sub_u32 {s(ptr)}, {s(ptr)}, {off}')
    a(f's_subb_u32 {s(ptr + 1)}, {s(ptr + 1)}, 0')
    a('s_mov_b64 exec, 0xffff')
    a(f'global_atomic_umax {v(vt + 1)}, {v(vt)}, {s(ptr, 2)}')
    a('s_waitcnt vmcnt(0)')


def k1():
    a = Asm()
    CNT, OFF = 16384, 17408
    a('s_cmp_ge_u32 s2, 256')
    a('s_cbranch_scc1 K1_END')
    stamp(a, 0, 20)
    a('s_load_dwordx2 s[18:19], s[0:1], 72')
    a('s_load_dwordx4 s[4:7], s[0:1], 8')
    a('s_load_dwordx4 s[8:11], s[0:1], 24')
    a('s_load_dwordx2 s[12:13], s[0:1], 80')
    a('s_mul_i32 s3, s2, 625')
    a('v_min_u32 v1, 624, v0')
    a('v_add_u32 v1, s3, v1')
    a('v_lshlrev_b32 v2, 2, v1')
    a('v_lshlrev_b32 v3, 3, v1')
    a('s_waitcnt lgkmcnt(0)')
    a('global_load_dword v4, v2, s[6:7]')
    a('global_load_dword v5, v2, s[4:5]')
    a('global_load_dwordx2 v[8:9], v3, s[8:9]')
    a('global_load_dwordx2 v[10:11], v3, s[10:11]')
    for r in range(12, 16):
        a(f'v_mov_b32 v{r}, 0')
    a('v_lshlrev_b32 v6, 4, v0')
    a('ds_write_b128 v6, v[12:15]')
    a('v_cmp_gt_u32 vcc, 448, v0')
    a('s_and_saveexec_b64 s[14:15], vcc')
    a('ds_write_b128 v6, v[12:15] offset:10240')
    a('s_mov_b64 exec, s[14:15]')
    a('v_mov_b32 v12, 1')
    a('v_cmp_gt_u32 vcc, 625, v0')
    a('s_mov_b64 s[16:17], vcc')
    a('s_waitcnt lgkmcnt(0)')
    a('s_barrier')
    a('s_mov_b64 exec, s[16:17]')
    a('s_waitcnt vmcnt(3)')
    a('v_and_b32 v7, 255, v4')
    a('v_lshlrev_b32 v13, 2, v7')
    a(f'ds_add_rtn_u32 v14, v13, v12 offset:{CNT}')
    a('s_mov_b64 exec, -1')
    a('s_waitcnt lgkmcnt(0)')
    a('s_barrier')
    a('v_cmp_gt_u32 vcc, 64, v0')
    a('s_cbranch_vccz K1_NOSCAN')
    a(f'ds_read_b128 v[16:19], v6 offset:{CNT}')
    a('s_waitcnt lgkmcnt(0)')
    a('v_add_u32 v21, v16, v17')
    a('v_add_u32 v22, v21, v18')
    a('v_add_u32 v23, v22, v19')
    a('v_mov_b32 v24, v23')
    scan64(a, 24)
    a('v_sub_u32 v20, v24, v23')
    a('v_add_u32 v23, v20, v22')
    a('v_add_u32 v22, v20, v21')
    a('v_add_u32 v21, v20, v16')
    a(f'ds_write_b128 v6, v[20:23] offset:{OFF}')
    a('s_waitcnt lgkmcnt(0)')
    a.label('K1_NOSCAN')
    a('s_barrier')
    a('s_mov_b64 exec, s[16:17]')
    a(f'ds_read_b32 v15, v13 offset:{OFF}')
    a('s_waitcnt vmcnt(2)')
    a('v_lshrrev_b32 v16, 8, v4')
    a('v_lshl_or_b32 v16, v16, 14, v5')
    a('v_or_b32 v16, 0x40000000, v16')
    a('v_and_b32 v17, 3, v14')
    a('v_lshlrev_b32 v17, 4, v17')
    a('v_and_b32 v18, 12, v14')
    a('v_add_u32 v17, v17, v18')
    a('v_cmp_gt_u32 vcc, 16, v14')
    a('v_mov_b32 v19, 0x80000000')
    a('s_mul_i32 s3, s2, 10240')
    a(f's_add_u32 s3, s3, {PAY_OFF}')
    a('s_waitcnt lgkmcnt(0)')
    a('v_add_u32 v15, v15, v14')
    a('v_lshl_or_b32 v16, v15, 20, v16')
    a('v_cndmask_b32 v16, v19, v16, vcc')
    a('v_cndmask_b32 v17, 0, v17, vcc')
    a('v_lshl_add_u32 v17, v7, 6, v17')
    a('ds_or_b32 v17, v16')
    a('v_lshl_add_u32 v15, v15, 4, s3')
    a('s_waitcnt vmcnt(0)')
    a('global_store_dwordx4 v15, v[8:11], s[12:13]')
    a('s_mov_b64 exec, -1')
    a('s_waitcnt lgkmcnt(0)')
    a('s_barrier')
    a('ds_read_b128 v[16:19], v6')
    a('ds_read_b128 v[20:23], v6 offset:10240')
    a('s_lshl_b32 s3, s2, 14')
    a('v_add_u32 v7, s3, v6')
    a('v_add_u32 v13, 10240, v7')
    a('v_cmp_gt_u32 vcc, 384, v0')
    a('s_waitcnt lgkmcnt(1)')
    a('global_store_dwordx4 v7, v[16:19], s[12:13]')
    a('s_and_saveexec_b64 s[14:15], vcc')
    a('s_cbranch_execz K1_FIN')
    a('s_waitcnt lgkmcnt(0)')
    a('global_store_dwordx4 v13, v[20:23], s[12:13]')
    a.label('K1_FIN')
    if OPT['stamps']:
        a('s_waitcnt vmcnt(0)')
        stamp(a, 1, 20)
        a('v_cmp_gt_u32 vcc, 64, v0')
        a('s_cbranch_vccz K1_END')
        emit_stamps(a, [(0, 0), (1, 1)], 20, 18, 0, 26)
    a.label('K1_END')
    a('s_endpgm')
    return a, 20480 + 256


def k2():
    a = Asm()
    WMIX = 0
    AGG, AGG_W, AGG_ROW = 32768, 20 * 272, 272
    REC, REC_W = AGG + 8 * AGG_W, 192 * 16
    TT, TT_W = REC + 8 * REC_W, 128 * 32
    CNT = TT + 8 * TT_W + 1024
    FLAG = CNT + 64
    LDS = CNT + 128
    sX, sC, sP, sE, sO = 8, 12, 16, 20, 24
    sPTR = 28
    pX, pSRC, pDST, pY, pEF, pWR, pCG, pWM, pOUT, pDBG, pWS = [sPTR + 2 * i for i in range(11)]
    sBK, sW, sMODE, sBASE, sSH, sCNT, sT0, sT1, sOFF = 52, 53, 54, 55, 56, 57, 58, 59, 60
    sM = 62
    sWD = 64
    sV = 72
    sPERM0, sPERM1 = 80, 81
    vLN, vL16 = 1, 2
    vACC = 4
    vX = 44
    vTP = 76
    vZ = 84
    vR = 100
    vE = 116
    vTA, vTB = 120, 122
    vRA, vRB = 124, 128
    vWH, vWL = 132, 136
    vCG = 140
    vAT, vAR = 142, 143
    vONE = 144
    vC = 148
    vB0, vB1 = 156, 157
    vG = 160
    vWM = 224

    a('s_cmp_ge_u32 s2, 256')
    a('s_cbranch_scc1 K2_END')
    stamp(a, 0, 84)
    a(f's_load_dwordx16 {s(sPTR, 16)}, s[0:1], 0')
    a(f's_load_dwordx4 {s(pOUT, 4)}, s[0:1], 64')
    a(f's_load_dwordx2 {s(pWS, 2)}, s[0:1], 80')
    a(f's_and_b32 {s(sT0)}, s2, 7')
    a(f's_lshl_b32 {s(sT0)}, {s(sT0)}, 5')
    a(f's_lshr_b32 {s(sBK)}, s2, 3')
    a(f's_add_u32 {s(sBK)}, {s(sBK)}, {s(sT0)}')
    a(f'v_lshrrev_b32 v3, 6, v0')
    a(f'v_and_b32 {v(vLN)}, 63, v0')
    a(f'v_readfirstlane_b32 {s(sW)}, v3')
    a(f'v_lshlrev_b32 {v(vL16)}, 4, {v(vLN)}')
    a(f'v_lshrrev_b32 {v(vG)}, 2, v0')
    a(f'v_and_b32 {v(vG + 1)}, 3, v0')
    a(f'v_lshlrev_b32 {v(vG + 1)}, 4, {v(vG + 1)}')
    a(f'v_lshl_add_u32 {v(vG + 1)}, {v(vG)}, 14, {v(vG + 1)}')
    a(f's_lshl_b32 {s(sT0)}, {s(sBK)}, 6')
    a(f's_add_u32 {s(sT1)}, {s(sT0)}, {128 * 16384}')
    a(f'v_mul_u32_u24 {v(vB0)}, 10240, {v(vG)}')
    a(f'v_add_u32 {v(vB1)}, {128 * 10240}, {v(vB0)}')
    a('s_waitcnt lgkmcnt(0)')
    srd(a, sC, pWS, PAY_OFF)
    a(f'buffer_load_dwordx4 {v(vC, 4)}, {v(vG + 1)}, {s(sC, 4)}, {s(sT0)} offen')
    a(f'buffer_load_dwordx4 {v(vC + 4, 4)}, {v(vG + 1)}, {s(sC, 4)}, {s(sT1)} offen')
    a(f'v_lshlrev_b32 {v(vG + 2)}, 2, {v(vLN)}')
    for k in range(4):
        a(f'global_load_dword {v(vG + 8 + k)}, {v(vG + 2)}, {s(pWR, 2)} offset:{k * 256}')
    a(f'v_and_b32 {v(vG + 3)}, 3, v0')
    a(f'v_lshlrev_b32 {v(vG + 3)}, 5, {v(vG + 3)}')
    a(f'v_bfe_u32 {v(vG + 4)}, v0, 2, 2')
    a(f'v_lshl_add_u32 {v(vG + 3)}, {v(vG + 4)}, 1, {v(vG + 3)}')
    for f in range(4):
        a(f'global_load_ushort {v(vG + 12 + f)}, {v(vG + 3)}, {s(pCG, 2)} offset:{f * 8}')
    a(f'v_lshrrev_b32 {v(vG + 4)}, 5, v0')
    a(f'v_and_b32 {v(vG + 5)}, 31, v0')
    a(f'v_lshlrev_b32 {v(vG + 5)}, 2, {v(vG + 5)}')
    a(f'v_lshl_add_u32 {v(vG + 5)}, {v(vG + 4)}, 11, {v(vG + 5)}')
    for q in range(2):
        for i in range(8):
            a(f'global_load_dword {v(vWM + q * 8 + i)}, {v(vG + 5)}, {s(pWM, 2)} offset:{i * 256 + q * 128}')
    srd(a, sX, pX, N * 1024)
    srd(a, sO, pOUT, N * 1024)
    a(f's_add_u32 {s(sP)}, {s(pWS)}, {PAY_OFF}')
    a(f's_addc_u32 {s(sP + 1)}, {s(pWS + 1)}, 0')
    a(f's_mov_b32 {s(sP + 2)}, {256 * 10240}')
    a(f's_mov_b32 {s(sP + 3)}, 0x20000')
    srd(a, sE, pEF, E * 8)
    a(f's_mov_b32 {s(sMODE)}, 0')
    a(f's_mov_b32 {s(sBASE)}, 0')
    a(f's_mov_b32 {s(sSH)}, 4')
    a(f's_mov_b32 {s(sPERM0)}, 0x05040100')
    a(f's_mov_b32 {s(sPERM1)}, 0x07060302')
    for r in range(40):
        a(f'v_mov_b32 {v(vACC + r)}, 0')
    a(f'v_mov_b32 {v(vONE)}, 1.0')
    a(f'v_mov_b32 {v(vONE + 1)}, 1.0')

    a.label('BATCH')
    a(f's_mul_i32 {s(sT0)}, {s(sW)}, {REC_W}')
    a(f's_add_u32 {s(sT0)}, {s(sT0)}, {REC}')
    a(f'v_add_u32 {v(vAR)}, {s(sT0)}, {v(vL16)}')
    a(f'v_mov_b32 {v(vG + 16)}, 0')
    a(f'v_mov_b32 {v(vG + 17)}, 0')
    a(f'v_mov_b32 {v(vG + 18)}, {NULLW}')
    a(f'v_mov_b32 {v(vG + 19)}, {NULLW}')
    for k in range(3):
        a(f'ds_write_b128 {v(vAR)}, {v(vG + 16, 4)} offset:{k * 1024}')
    a(f'v_and_b32 {v(vG + 20)}, 31, v0')
    a(f'v_lshlrev_b32 {v(vG + 20)}, 2, {v(vG + 20)}')
    a(f'v_add_u32 {v(vG + 20)}, {CNT}, {v(vG + 20)}')
    a(f'ds_write_b32 {v(vG + 20)}, {v(vG + 16)}')
    a('s_waitcnt lgkmcnt(0)')
    a('s_barrier')
    a('s_waitcnt vmcnt(24)')
    stamp(a, 1, 84)
    dense = [vC, vC + 1, vC + 4, vC + 5]
    rare = [vC + 2, vC + 3, vC + 6, vC + 7]
    a(f'v_or_b32 {v(vG + 21)}, {v(vC)}, {v(vC + 4)}')
    a(f'v_cmp_gt_i32 vcc, 0, {v(vG + 21)}')
    a('s_cbranch_vccz NOFLAG')
    a(f'v_mov_b32 {v(vG + 21)}, {FLAG}')
    a(f'ds_write_b32 {v(vG + 21)}, {v(vG + 18)}')
    a.label('NOFLAG')
    rt = [vG + 24 + 8 * r for r in range(4)]
    for r, e in enumerate(dense):
        t = rt[r]
        a(f'v_cmp_ne_u32 {s(sV + 2 * r, 2)}, 0, {v(e)}')
        a(f'v_and_b32 {v(t)}, 0x3fff, {v(e)}')
        a(f'v_mul_u32_u24 {v(t + 1)}, 26844, {v(t)}')
        a(f'v_lshrrev_b32 {v(t + 1)}, 23, {v(t + 1)}')
        a(f'v_and_b32 {v(t + 1)}, 24, {v(t + 1)}')
        a(f'v_lshlrev_b32 {v(t + 2)}, {v(t + 1)}, 1')
        a(f'v_mov_b32 {v(t + 3)}, 1')
        a(f'v_bfe_u32 {v(t + 5)}, {v(e)}, 14, 3')
        a(f'v_lshlrev_b32 {v(t + 4)}, 3, {v(t + 5)}')
        a(f'v_add_u32 {v(t + 4)}, {CNT}, {v(t + 4)}')
        a(f's_mov_b64 exec, {s(sV + 2 * r, 2)}')
        a(f'ds_add_rtn_u64 {v(t + 6, 2)}, {v(t + 4)}, {v(t + 2, 2)}')
        a('s_mov_b64 exec, -1')
    a('s_waitcnt lgkmcnt(0)')
    a('s_barrier')
    for r in range(4):
        t = rt[r]
        a(f'ds_read_b32 {v(t + 3)}, {v(t + 4)}')
    for r, e in enumerate(dense):
        t = rt[r]
        base = vB0 if r < 2 else vB1
        a(f'v_bfe_u32 {v(t + 6)}, {v(t + 6)}, {v(t + 1)}, 8')
        a(f'v_add_u32 {v(t + 2)}, -1, {v(t + 2)}')
        a(f'v_mul_u32_u24 {v(t + 5)}, {REC_W}, {v(t + 5)}')
        a(f'v_bfe_u32 {v(t + 1)}, {v(e)}, 17, 3')
        a(f'v_lshlrev_b32 {v(t + 1)}, 3, {v(t + 1)}')
        a(f'v_lshl_or_b32 {v(t)}, {v(t)}, 10, {v(t + 1)}')
        a(f'v_bfe_u32 {v(t + 1)}, {v(e)}, 20, 10')
        a(f'v_lshl_add_u32 {v(t + 1)}, {v(t + 1)}, {s(sSH)}, {v(base)}')
        if r == 0:
            a('s_waitcnt lgkmcnt(0)')
        a(f'v_and_b32 {v(t + 3)}, {v(t + 3)}, {v(t + 2)}')
        a(f'v_sad_u8 {v(t + 6)}, {v(t + 3)}, 0, {v(t + 6)}')
        a(f'v_min_u32 {v(t + 6)}, 127, {v(t + 6)}')
        a(f'v_lshl_add_u32 {v(t + 6)}, {v(t + 6)}, 4, {v(t + 5)}')
        a(f'v_add_u32 {v(t + 6)}, {REC + 8}, {v(t + 6)}')
        a(f's_mov_b64 exec, {s(sV + 2 * r, 2)}')
        a(f'ds_write_b64 {v(t + 6)}, {v(t, 2)}')
        a('s_mov_b64 exec, -1')
    a(f'v_or_b32 {v(vG + 21)}, {v(vC + 2)}, {v(vC + 6)}')
    a(f'v_cmp_ne_u32 vcc, 0, {v(vG + 21)}')
    a('s_cbranch_vccz NORARE')
    t = rt[0]
    for r, e in enumerate(rare):
        base = vB0 if r < 2 else vB1
        a(f'v_cmp_ne_u32 vcc, 0, {v(e)}')
        a(f'v_bfe_u32 {v(t + 5)}, {v(e)}, 14, 3')
        a(f'v_lshlrev_b32 {v(t + 4)}, 3, {v(t + 5)}')
        a(f'v_add_u32 {v(t + 4)}, {CNT + 4}, {v(t + 4)}')
        a(f'v_mov_b32 {v(t + 3)}, 1')
        a('s_mov_b64 exec, vcc')
        a(f'ds_add_rtn_u32 {v(t + 6)}, {v(t + 4)}, {v(t + 3)}')
        a(f'v_and_b32 {v(t)}, 0x3fff, {v(e)}')
        a(f'v_mul_u32_u24 {v(t + 5)}, {REC_W}, {v(t + 5)}')
        a(f'v_bfe_u32 {v(t + 1)}, {v(e)}, 17, 3')
        a(f'v_lshlrev_b32 {v(t + 1)}, 3, {v(t + 1)}')
        a(f'v_lshl_or_b32 {v(t)}, {v(t)}, 10, {v(t + 1)}')
        a(f'v_bfe_u32 {v(t + 1)}, {v(e)}, 20, 10')
        a(f'v_lshl_add_u32 {v(t + 1)}, {v(t + 1)}, {s(sSH)}, {v(base)}')
        a('s_waitcnt lgkmcnt(0)')
        a(f'v_min_u32 {v(t + 6)}, 127, {v(t + 6)}')
        a(f'v_lshl_add_u32 {v(t + 6)}, {v(t + 6)}, 4, {v(t + 5)}')
        a(f'v_add_u32 {v(t + 6)}, {REC + 8}, {v(t + 6)}')
        a(f'ds_write_b64 {v(t + 6)}, {v(t, 2)}')
        a('s_mov_b64 exec, -1')
    a.label('NORARE')
    a(f's_cmp_lg_u32 {s(sMODE)}, 0')
    a('s_cbranch_scc1 NOCONST')
    a('s_waitcnt vmcnt(0)')
    a(f's_lshl_b32 {s(sT0)}, {s(sW)}, 11')
    a(f'v_add_u32 {v(vG + 21)}, {s(sT0)}, {v(vL16)}')
    for q in range(2):
        for r in range(2):
            t = vG + 24 + (q * 2 + r) * 4
            for m in range(4):
                a(f'v_perm_b32 {v(t + m)}, {v(vWM + q * 8 + 2 * m + 1)}, {v(vWM + q * 8 + 2 * m)}, {s(sPERM0 + r)}')
            a(f'ds_write_b128 {v(vG + 21)}, {v(t, 4)} offset:{WMIX + q * 16384 + r * 1024}')
    a(f'v_lshl_or_b32 {v(vCG)}, {v(vG + 13)}, 16, {v(vG + 12)}')
    a(f'v_lshl_or_b32 {v(vCG + 1)}, {v(vG + 15)}, 16, {v(vG + 14)}')
    t = vG + 40
    for h in range(2):
        for k in range(4):
            if h == 0:
                a(f'v_lshlrev_b32 {v(t + k)}, 16, {v(vG + 8 + k)}')
            else:
                a(f'v_and_b32 {v(t + k)}, 0xffff0000, {v(vG + 8 + k)}')
            a(f'v_mul_f32 {v(t + k)}, 0xbfb8aa3b, {v(t + k)}')
        for m in range(2):
            a(f'v_cvt_pk_bf16_f32 {v(vWH + 2 * h + m)}, {v(t + 2 * m)}, {v(t + 2 * m + 1)}')
            a(f'v_lshlrev_b32 {v(t + 4)}, 16, {v(vWH + 2 * h + m)}')
            a(f'v_and_b32 {v(t + 5)}, 0xffff0000, {v(vWH + 2 * h + m)}')
            a(f'v_sub_f32 {v(t + 4)}, {v(t + 2 * m)}, {v(t + 4)}')
            a(f'v_sub_f32 {v(t + 5)}, {v(t + 2 * m + 1)}, {v(t + 5)}')
            a(f'v_cvt_pk_bf16_f32 {v(vWL + 2 * h + m)}, {v(t + 4)}, {v(t + 5)}')
    a.label('NOCONST')
    a('s_waitcnt lgkmcnt(0)')
    a('s_barrier')
    stamp(a, 2, 84)
    a(f'ds_read_b32 {v(vG + 21)}, {v(vG + 20)}')
    a(f'ds_read_b64 {v(vG + 24, 2)}, {v(vAR)} offset:8')
    a(f'ds_read_b64 {v(vG + 26, 2)}, {v(vAR)} offset:{1024 + 8}')
    a(f's_lshl_b32 {s(sT0)}, {s(sW)}, 1')
    a(f's_add_u32 {s(sT0)}, {s(sT0)}, 1')
    a('s_waitcnt lgkmcnt(2)')
    a(f'v_readlane_b32 {s(sCNT)}, {v(vG + 21)}, {s(sT0)}')
    a(f'v_cmp_lt_u32 vcc, 128, {v(vG + 21)}')
    a(f's_and_b32 {s(sT0)}, vcc_lo, 0x1aaaa')
    a('s_cbranch_scc1 SLOW_ENTER')
    a(f's_cmp_eq_u32 {s(sCNT)}, 0')
    a('s_cbranch_scc1 LIST_DONE')
    pay = [vG + 28, vG + 32]
    a('s_waitcnt lgkmcnt(0)')
    a(f's_cmp_lg_u32 {s(sMODE)}, 0')
    a('s_cbranch_scc1 PAY_SLOW')
    a(f'buffer_load_dwordx4 {v(pay[0], 4)}, {v(vG + 25)}, {s(sP, 4)}, 0 offen')
    a(f'buffer_load_dwordx4 {v(pay[1], 4)}, {v(vG + 27)}, {s(sP, 4)}, 0 offen')
    a.label('PAY_JOIN')
    for k in range(8):
        a(f'v_readlane_b32 {s(sWD + k)}, {v(vG + 24)}, {k}')
    for k in range(7):
        a(f's_and_b32 {s(sOFF)}, {s(sWD + k)}, 0xfffffc00')
        a(f'buffer_load_dwordx4 {v(vX + 4 * k, 4)}, {v(vL16)}, {s(sX, 4)}, {s(sOFF)} offen')
    a(f's_lshl_b32 {s(sT0)}, {s(sW)}, 12')
    a(f's_add_u32 {s(sT0)}, {s(sT0)}, {TT}')
    a(f'v_lshl_add_u32 {v(vG + 22)}, {v(vLN)}, 5, {s(sT0)}')
    a(f'v_lshl_add_u32 {v(vAT)}, {v(vLN)}, 3, {s(sT0)}')
    for st in range(2):
        a(f's_waitcnt vmcnt({8 - st})')
        d = vG + 36
        for o in range(4):
            a(f'v_mfma_f32_4x4x4_16b_bf16 {v(d + 4 * o, 4)}, {v(vCG, 2)}, {v(pay[st], 2)}, 0 cbsz:4 abid:{o}')
        a(f'ds_write_b64 {v(vAR)}, {v(pay[st] + 2, 2)} offset:{st * 1024}')
        c = vG + 52
        for o in range(4):
            for m in range(2):
                a(f'v_cvt_pk_bf16_f32 {v(c + 2 * o + m)}, {v(d + 4 * o + 2 * m)}, {v(d + 4 * o + 2 * m + 1)}')
        a(f'ds_write_b128 {v(vG + 22)}, {v(c, 4)} offset:{st * 2048}')
        a(f'ds_write_b128 {v(vG + 22)}, {v(c + 4, 4)} offset:{st * 2048 + 16}')

    def zmfma(buf, j, rec):
        h = j & 1
        d = vZ + 8 * buf + 4 * h
        if j < 2:
            a(f'v_mfma_f32_4x4x4_16b_bf16 {v(d, 4)}, {v(rec, 2)}, {v(vWH + 2 * h, 2)}, 0 cbsz:4 abid:0')
        else:
            a(f'v_mfma_f32_4x4x4_16b_bf16 {v(d, 4)}, {v(rec, 2)}, {v(vWL + 2 * h, 2)}, {v(d, 4)} cbsz:4 abid:0')

    def pair(base, buf, p):
        return base + 8 * buf + 4 * (p & 1) + 2 * (p >> 1)

    a(f'ds_read_b128 {v(vRA, 4)}, {v(vAR)}')
    a(f'ds_read_b128 {v(vRB, 4)}, {v(vAR)} offset:64')
    a(f'ds_read_b64 {v(vTA, 2)}, {v(vAT)}')
    a('s_waitcnt lgkmcnt(1)')
    for j in range(4):
        zmfma(0, j, vRA)
        zmfma(1, j, vRB)
    a(f'ds_read_b128 {v(vRA, 4)}, {v(vAR)} offset:128')
    for p in range(4):
        e = vE + 2 * (p & 1)
        z = pair(vZ, 0, p)
        a(f'v_exp_f32 {v(e)}, {v(z)}')
        a(f'v_exp_f32 {v(e + 1)}, {v(z + 1)}')
        a(f'v_pk_add_f32 {v(e, 2)}, {v(e, 2)}, {v(vONE, 2)}')
        if p < 3:
            a(f'v_rcp_f32 {v(e)}, {v(e)}')
            a(f'v_rcp_f32 {v(e + 1)}, {v(e + 1)}')
            a(f'v_pk_mul_f32 {v(pair(vR, 0, p), 2)}, {v(e, 2)}, {v(z, 2)}')
    a(f's_add_u32 {s(sCNT)}, {s(sCNT)}, 7')
    a(f's_lshr_b32 {s(sCNT)}, {s(sCNT)}, 3')

    stamp(a, 3, 84)
    a.label('LOOP')
    for g in range(2):
        T, Rc = (vTA, vRA) if g == 0 else (vTB, vRB)
        To, Ro = (vTB, vRB) if g == 0 else (vTA, vRA)
        a('s_waitcnt lgkmcnt(0)')
        a(f'ds_read_b64 {v(To, 2)}, {v(vAT)} offset:{(g + 1) * 128}')
        a(f'ds_read_b128 {v(Ro, 4)}, {v(vAR)} offset:{(g + 3) * 64}')
        for j in range(4):
            k = 4 * g + j
            kp = (k + 7) % 8
            en = vE + 2 * (j & 1)
            eo = vE + 2 * ((j + 1) & 1)
            zn = pair(vZ, (g + 1) & 1, j)
            if j == 0:
                zo, ro = pair(vZ, g, 3), pair(vR, g, 3)
            else:
                zo, ro = pair(vZ, (g + 1) & 1, j - 1), pair(vR, (g + 1) & 1, j - 1)
            a('s_waitcnt vmcnt(6)')
            a(f'v_mfma_f32_4x4x4_16b_bf16 {v(vTP, 4)}, {v(T, 2)}, {v(vX + 4 * k, 2)}, 0 cbsz:4 abid:{j}')
            a(f's_and_b32 {s(sOFF)}, {s(sWD + kp)}, 0xfffffc00')
            a(f'buffer_load_dwordx4 {v(vX + 4 * kp, 4)}, {v(vL16)}, {s(sX, 4)}, {s(sOFF)} offen')
            a(f'v_exp_f32 {v(en)}, {v(zn)}')
            a(f'v_mfma_f32_4x4x4_16b_bf16 {v(vTP + 4, 4)}, {v(T, 2)}, {v(vX + 4 * k + 2, 2)}, 0 cbsz:4 abid:{j}')
            a(f'v_exp_f32 {v(en + 1)}, {v(zn + 1)}')
            zmfma(g, j, Rc)
            a(f'v_rcp_f32 {v(eo)}, {v(eo)}')
            a(f'v_rcp_f32 {v(eo + 1)}, {v(eo + 1)}')
            a(f'v_pk_add_f32 {v(en, 2)}, {v(en, 2)}, {v(vONE, 2)}')
            a(f'v_pk_mul_f32 {v(ro, 2)}, {v(eo, 2)}, {v(zo, 2)}')
            a(f's_set_gpr_idx_on {s(sWD + k)}, gpr_idx(SRC2,DST)')
            a.idx_range = (vACC, vACC + 40)
            sel = j & 1
            for h in range(2):
                rp = vR + 8 * g + 4 * h + 2 * (j >> 1)
                for m in range(2):
                    d = vACC + 4 * h + 2 * m
                    a(f'v_pk_fma_f32 {v(d, 2)}, {v(rp, 2)}, {v(vTP + 4 * h + 2 * m, 2)}, {v(d, 2)} op_sel:[{sel},0,0] op_sel_hi:[{sel},1,1]')
            a.idx_range = None
            a('s_set_gpr_idx_off')
            a(f'v_readlane_b32 {s(sWD + k)}, {v(Rc + 2)}, {j}')
    a(f'v_add_u32 {v(vAT)}, 256, {v(vAT)}')
    a(f'v_add_u32 {v(vAR)}, 128, {v(vAR)}')
    a(f's_sub_u32 {s(sCNT)}, {s(sCNT)}, 1')
    a(f's_cmp_lg_u32 {s(sCNT)}, 0')
    a('s_cbranch_scc1 LOOP')
    a.label('LIST_DONE')
    a('s_waitcnt vmcnt(0) lgkmcnt(0)')
    a(f's_cmp_lg_u32 {s(sMODE)}, 0')
    a('s_cbranch_scc1 SLOW_NEXT')

    a.label('MIX')
    stamp(a, 4, 84)
    vA = 44
    vBb = 76
    vD = 108
    vS = 172
    vAd = 200
    a(f's_mul_i32 {s(sT0)}, {s(sW)}, {AGG_W}')
    a(f's_add_u32 {s(sT0)}, {s(sT0)}, {AGG}')
    a(f'v_lshl_add_u32 {v(vAd)}, {v(vLN)}, 2, {s(sT0)}')
    a(f'v_and_b32 {v(vAd + 1)}, 31, {v(vLN)}')
    a(f'v_lshrrev_b32 {v(vAd + 2)}, 5, {v(vLN)}')
    a(f'v_mul_u32_u24 {v(vAd + 3)}, {AGG_ROW}, {v(vAd + 1)}')
    a(f'v_lshl_add_u32 {v(vAd + 3)}, {v(vAd + 2)}, 4, {v(vAd + 3)}')
    a(f'v_add_u32 {v(vAd + 3)}, {s(sT0)}, {v(vAd + 3)}')
    a(f'v_mov_b32 {v(vAd + 4)}, 0xbf317218')
    a(f'v_mov_b32 {v(vAd + 5)}, 0xbf317218')
    for i in range(8):
        a(f'ds_read_b128 {v(vBb + 4 * i, 4)}, {v(vL16)} offset:{WMIX + i * 1024}')
    for sl in range(5):
        for m in range(4):
            d = vACC + 8 * sl + 2 * m
            a(f'v_pk_mul_f32 {v(d, 2)}, {v(d, 2)}, {v(vAd + 4, 2)}')
        for o in range(4):
            a(f'v_cvt_pk_bf16_f32 {v(vS + 4 * sl + o)}, {v(vACC + 8 * sl + o)}, {v(vACC + 8 * sl + 4 + o)}')
            a(f'ds_write_b32 {v(vAd)}, {v(vS + 4 * sl + o)} offset:{(4 * sl + o) * AGG_ROW}')
        if sl == 1:
            a('s_waitcnt lgkmcnt(4)')
        if sl == 3:
            a('s_waitcnt lgkmcnt(4)')
    a('s_waitcnt lgkmcnt(0)')
    for kk in range(8):
        a(f'ds_read_b128 {v(vA + 4 * kk, 4)}, {v(vAd + 3)} offset:{kk * 32}')
    a(f'v_lshlrev_b32 {v(vAd + 2)}, 21, {v(vAd + 2)}')
    a(f'v_lshl_add_u32 {v(vAd + 2)}, {v(vAd + 1)}, 4, {v(vAd + 2)}')
    a(f's_lshl_b32 {s(sT0)}, {s(sW)}, 18')
    a(f's_lshl_b32 {s(sT1)}, {s(sBK)}, 10')
    a(f's_add_u32 {s(sT0)}, {s(sT0)}, {s(sT1)}')
    a(f'v_add_u32 {v(vAd + 2)}, {s(sT0)}, {v(vAd + 2)}')
    a(f's_mov_b32 {s(sWD)}, 0')
    a(f's_mov_b32 {s(sWD + 1)}, {1 << 22}')
    a(f's_mov_b32 {s(sWD + 2)}, {2 << 22}')
    a('s_waitcnt lgkmcnt(0)')

    def outq(q, rr):
        st = vS + 12 * q + 4 * rr
        for r in range(2):
            d = vD + 32 * q + 16 * r + 4 * rr
            a(f'v_cvt_pk_bf16_f32 {v(st + 2 * r)}, {v(d)}, {v(d + 1)}')
            a(f'v_cvt_pk_bf16_f32 {v(st + 2 * r + 1)}, {v(d + 2)}, {v(d + 3)}')
        a(f'buffer_store_dwordx4 {v(st, 4)}, {v(vAd + 2)}, {s(sO, 4)}, {s(sWD + rr)} offen offset:{q * 512}')

    for i in range(32):
        q, kk, r = i >> 4, (i >> 1) & 7, i & 1
        d = vD + 32 * q + 16 * r
        b = vBb + 4 * (i & 7)
        if i >= 8:
            a(f's_waitcnt lgkmcnt({min(7, 31 - i)})')
        a(f'v_mfma_f32_32x32x16_bf16 {v(d, 16)}, {v(vA + 4 * kk, 4)}, {v(b, 4)}, {"0" if kk == 0 else v(d, 16)}')
        if i + 8 < 32:
            a(f'ds_read_b128 {v(b, 4)}, {v(vL16)} offset:{WMIX + (i + 8) * 1024}')
        if i in (20, 22, 24):
            outq(0, (i - 20) // 2)
    for rr in range(3):
        outq(1, rr)
    if OPT['stamps']:
        a('s_waitcnt vmcnt(0)')
        stamp(a, 5, 84)
        emit_stamps(a, [(i, 2 + i) for i in range(6)], 84, pDBG, 512, 4)
    a.label('K2_END')
    a('s_endpgm')

    a.label('PAY_SLOW')
    for st in range(2):
        a(f'buffer_load_dwordx2 {v(pay[st], 2)}, {v(vG + 25 + 2 * st)}, {s(sP, 4)}, 0 offen')
        a(f'buffer_load_dwordx2 {v(pay[st] + 2, 2)}, {v(vG + 25 + 2 * st)}, {s(sE, 4)}, 0 offen')
    a('s_waitcnt vmcnt(0)')
    a('s_branch PAY_JOIN')
    a.label('SLOW_ENTER')
    a(f's_mov_b32 {s(sMODE)}, 1')
    a(f's_mov_b32 {s(sSH)}, 3')
    srd(a, sP, pY, E * 8)
    a('s_branch SLOW_LOAD')
    a.label('SLOW_NEXT')
    a(f's_add_u32 {s(sBASE)}, {s(sBASE)}, 128')
    a(f's_cmp_ge_u32 {s(sBASE)}, {E}')
    a('s_cbranch_scc1 MIX')
    a.label('SLOW_LOAD')
    a('s_waitcnt lgkmcnt(0)')
    a('s_barrier')
    a(f'v_and_b32 {v(vG + 24)}, 127, v0')
    a(f'v_add_lshl_u32 {v(vG + 25)}, {v(vG + 24)}, {s(sBASE)}, 2')
    a(f'global_load_dword {v(vG + 26)}, {v(vG + 25)}, {s(pDST, 2)}')
    a(f'global_load_dword {v(vG + 27)}, {v(vG + 25)}, {s(pSRC, 2)}')
    for r in range(1, 8):
        a(f'v_mov_b32 {v(vC + r)}, 0')
    a(f's_lshl_b32 {s(sT0)}, {s(sBASE)}, 3')
    a(f'v_mov_b32 {v(vB0)}, {s(sT0)}')
    a(f'v_lshrrev_b32 {v(vG + 28)}, 7, v0')
    a('s_waitcnt vmcnt(0)')
    a(f'v_and_b32 {v(vG + 25)}, 255, {v(vG + 26)}')
    a(f'v_lshl_or_b32 {v(vG + 25)}, {v(vG + 28)}, 8, {v(vG + 25)}')
    a(f'v_cmp_eq_u32 vcc, {s(sBK)}, {v(vG + 25)}')
    a(f'v_lshrrev_b32 {v(vG + 26)}, 8, {v(vG + 26)}')
    a(f'v_lshl_or_b32 {v(vG + 26)}, {v(vG + 26)}, 14, {v(vG + 27)}')
    a(f'v_lshl_or_b32 {v(vG + 26)}, {v(vG + 24)}, 20, {v(vG + 26)}')
    a(f'v_or_b32 {v(vG + 26)}, 0x40000000, {v(vG + 26)}')
    a(f'v_cndmask_b32 {v(vC)}, 0, {v(vG + 26)}, vcc')
    a('s_branch BATCH')
    return a, LDS


def main():
    a1, lds1 = k1()
    a2, lds2 = k2()
    n1 = a1.fix_hazards(True)
    n2 = a2.fix_hazards(True)
    ref = open('cdna_kernels/' + NAME + '.s.ref').read().split('\n')
    head = [l for l in ref if l.startswith(';') and '@launch' not in l and 'Override' not in l and 'grid=ceil' not in l]
    out = '\n'.join(head) + '\n'
    for i in range(OPT['extra_empty']):
        out += '; @launch kernel=empty_kernel grid=(256,1,1) block=(64,1,1) lds=0\n'
    out += f'; @launch kernel=sort_kernel grid=(256,1,1) block=(640,1,1) lds={lds1}\n'
    out += f'; @launch kernel={NAME}_kernel grid=(256,1,1) block=(512,1,1) lds={lds2}\n'
    out += '.amdgcn_target "amdgcn-amd-amdhsa--gfx950"\n.text\n'
    out += kernel_text('sort_kernel', a1)
    out += kernel_text(NAME + '_kernel', a2)
    if OPT['extra_empty']:
        e = Asm()
        e('s_endpgm')
        out += kernel_text('empty_kernel', e)
    out += '.section .rodata,"a"\n'
    out += descriptor('sort_kernel', *a1.max_regs())
    out += descriptor(NAME + '_kernel', *a2.max_regs())
    if OPT['extra_empty']:
        out += descriptor('empty_kernel', 4, 8)
    open(sys.argv[1], 'w').write(out)
    print('regs', a1.max_regs(), a2.max_regs(), 'lds', lds1, lds2, 'nops', n1, n2)


main()
```

```python
import sys
from asmlib import *

NAME = 'gather_scatter__tensor_product_equiv_tfn__graph'
N, E = 10000, 160000
PAY_OFF = 4 << 20
NULLW = 0x7FFF0000
OPT = dict(extra_empty=0, stamps=0)
for a in sys.argv[2:]:
    k, x = a.split('=')
    OPT[k] = int(x)


def srd(a, d, b, nbytes):
    a(f's_mov_b32 {s(d)}, {s(b)}')
    a(f's_mov_b32 {s(d + 1)}, {s(b + 1)}')
    a(f's_mov_b32 {s(d + 2)}, {nbytes}')
    a(f's_mov_b32 {s(d + 3)}, 0x20000')


def scan64(a, r):
    for sh in (1, 2, 4, 8):
        a(f'v_add_u32_dpp {v(r)}, {v(r)}, {v(r)} row_shr:{sh} row_mask:0xf bank_mask:0xf')
    a(f'v_add_u32_dpp {v(r)}, {v(r)}, {v(r)} row_bcast:15 row_mask:0xa bank_mask:0xf')
    a(f'v_add_u32_dpp {v(r)}, {v(r)}, {v(r)} row_bcast:31 row_mask:0xc bank_mask:0xf')


def stamp(a, i, base):
    if OPT['stamps']:
        a(f's_memrealtime {s(base + 2 * i, 2)}')
        a('s_waitcnt lgkmcnt(0)')


def emit_stamps(a, ids, base, ptr, off, vt):
    if not OPT['stamps']:
        return
    a('s_mov_b64 exec, -1')
    a(f'v_mov_b32 {v(vt)}, 0')
    for i, w in ids:
        a(f'v_writelane_b32 {v(vt)}, {s(base + 2 * i)}, {w}')
        a(f's_not_b32 {s(base + 2 * i)}, {s(base + 2 * i)}')
        a(f'v_writelane_b32 {v(vt)}, {s(base + 2 * i)}, {8 + w}')
    a(f'v_and_b32 {v(vt + 1)}, 63, v0')
    a(f'v_lshlrev_b32 {v(vt + 1)}, 2, {v(vt + 1)}')
    a(f's_add_u32 {s(ptr)}, {s(ptr)}, {off}')
    a(f's_addc_u32 {s(ptr + 1)}, {s(ptr + 1)}, 0')
    a('s_mov_b64 exec, 0xffff')
    a(f'global_atomic_umax {v(vt + 1)}, {v(vt)}, {s(ptr, 2)}')
    a('s_waitcnt vmcnt(0)')


def k1():
    a = Asm()
    CNT, OFF = 16384, 17408
    a('s_cmp_ge_u32 s2, 256')
    a('s_cbranch_scc1 K1_END')
    stamp(a, 0, 20)
    a('s_load_dwordx2 s[18:19], s[0:1], 72')
    a('s_load_dwordx4 s[4:7], s[0:1], 8')
    a('s_load_dwordx4 s[8:11], s[0:1], 24')
    a('s_load_dwordx2 s[12:13], s[0:1], 80')
    a('s_mul_i32 s3, s2, 625')
    a('v_min_u32 v1, 624, v0')
    a('v_add_u32 v1, s3, v1')
    a('v_lshlrev_b32 v2, 2, v1')
    a('v_lshlrev_b32 v3, 3, v1')
    a('s_waitcnt lgkmcnt(0)')
    a('global_load_dword v4, v2, s[6:7]')
    a('global_load_dword v5, v2, s[4:5]')
    a('global_load_dwordx2 v[8:9], v3, s[8:9]')
    a('global_load_dwordx2 v[10:11], v3, s[10:11]')
    for r in range(12, 16):
        a(f'v_mov_b32 v{r}, 0')
    a('v_lshlrev_b32 v6, 4, v0')
    a('ds_write_b128 v6, v[12:15]')
    a('v_cmp_gt_u32 vcc, 448, v0')
    a('s_and_saveexec_b64 s[14:15], vcc')
    a('ds_write_b128 v6, v[12:15] offset:10240')
    a('s_mov_b64 exec, s[14:15]')
    a('v_mov_b32 v12, 1')
    a('v_cmp_gt_u32 vcc, 625, v0')
    a('s_mov_b64 s[16:17], vcc')
    a('s_waitcnt lgkmcnt(0)')
    a('s_barrier')
    a('s_mov_b64 exec, s[16:17]')
    a('s_waitcnt vmcnt(3)')
    a('v_and_b32 v7, 255, v4')
    a('v_lshlrev_b32 v13, 2, v7')
    a(f'ds_add_rtn_u32 v14, v13, v12 offset:{CNT}')
    a('s_mov_b64 exec, -1')
    a('s_waitcnt lgkmcnt(0)')
    a('s_barrier')
    a('v_cmp_gt_u32 vcc, 64, v0')
    a('s_cbranch_vccz K1_NOSCAN')
    a(f'ds_read_b128 v[16:19], v6 offset:{CNT}')
    a('s_waitcnt lgkmcnt(0)')
    a('v_add_u32 v21, v16, v17')
    a('v_add_u32 v22, v21, v18')
    a('v_add_u32 v23, v22, v19')
    a('v_mov_b32 v24, v23')
    scan64(a, 24)
    a('v_sub_u32 v20, v24, v23')
    a('v_add_u32 v23, v20, v22')
    a('v_add_u32 v22, v20, v21')
    a('v_add_u32 v21, v20, v16')
    a(f'ds_write_b128 v6, v[20:23] offset:{OFF}')
    a('s_waitcnt lgkmcnt(0)')
    a.label('K1_NOSCAN')
    a('s_barrier')
    a('s_mov_b64 exec, s[16:17]')
    a(f'ds_read_b32 v15, v13 offset:{OFF}')
    a('s_waitcnt vmcnt(2)')
    a('v_lshrrev_b32 v16, 8, v4')
    a('v_lshl_or_b32 v16, v16, 14, v5')
    a('v_or_b32 v16, 0x40000000, v16')
    a('v_and_b32 v17, 3, v14')
    a('v_lshlrev_b32 v17, 4, v17')
    a('v_and_b32 v18, 12, v14')
    a('v_add_u32 v17, v17, v18')
    a('v_cmp_gt_u32 vcc, 16, v14')
    a('v_mov_b32 v19, 0x80000000')
    a('s_mul_i32 s3, s2, 10240')
    a(f's_add_u32 s3, s3, {PAY_OFF}')
    a('s_waitcnt lgkmcnt(0)')
    a('v_add_u32 v15, v15, v14')
    a('v_lshl_or_b32 v16, v15, 20, v16')
    a('v_cndmask_b32 v16, v19, v16, vcc')
    a('v_cndmask_b32 v17, 0, v17, vcc')
    a('v_lshl_add_u32 v17, v7, 6, v17')
    a('ds_or_b32 v17, v16')
    a('v_lshl_add_u32 v15, v15, 4, s3')
    a('s_waitcnt vmcnt(0)')
    a('global_store_dwordx4 v15, v[8:11], s[12:13]')
    a('s_mov_b64 exec, -1')
    a('s_waitcnt lgkmcnt(0)')
    a('s_barrier')
    a('ds_read_b128 v[16:19], v6')
    a('ds_read_b128 v[20:23], v6 offset:10240')
    a('s_lshl_b32 s3, s2, 14')
    a('v_add_u32 v7, s3, v6')
    a('v_add_u32 v13, 10240, v7')
    a('v_cmp_gt_u32 vcc, 384, v0')
    a('s_waitcnt lgkmcnt(1)')
    a('global_store_dwordx4 v7, v[16:19], s[12:13]')
    a('s_and_saveexec_b64 s[14:15], vcc')
    a('s_cbranch_execz K1_FIN')
    a('s_waitcnt lgkmcnt(0)')
    a('global_store_dwordx4 v13, v[20:23], s[12:13]')
    a.label('K1_FIN')
    if OPT['stamps']:
        a('s_waitcnt vmcnt(0)')
        stamp(a, 1, 20)
        a('v_cmp_gt_u32 vcc, 64, v0')
        a('s_cbranch_vccz K1_END')
        emit_stamps(a, [(0, 0), (1, 1)], 20, 18, 512, 26)
    a.label('K1_END')
    a('s_endpgm')
    return a, 20480 + 256


def k2():
    a = Asm()
    WMIX = 0
    AGG, AGG_W, AGG_ROW = 32768, 20 * 272, 272
    REC, REC_W = AGG + 8 * AGG_W, 192 * 16
    TT, TT_W = REC + 8 * REC_W, 128 * 32
    CNT = TT + 8 * TT_W + 1024
    FLAG = CNT + 64
    LDS = CNT + 128
    sX, sC, sP, sE, sO = 8, 12, 16, 20, 24
    sPTR = 28
    pX, pSRC, pDST, pY, pEF, pWR, pCG, pWM, pOUT, pDBG, pWS = [sPTR + 2 * i for i in range(11)]
    sBK, sW, sMODE, sBASE, sSH, sCNT, sT0, sT1, sOFF = 52, 53, 54, 55, 56, 57, 58, 59, 60
    sM = 62
    sWD = 64
    sV = 72
    sPERM0, sPERM1 = 80, 81
    vLN, vL16 = 1, 2
    vACC = 4
    vX = 44
    vTP = 76
    vZ = 84
    vR = 100
    vE = 116
    vTA, vTB = 120, 122
    vRA, vRB = 124, 128
    vWH, vWL = 132, 136
    vCG = 140
    vAT, vAR = 142, 143
    vONE = 144
    vC = 148
    vB0, vB1 = 156, 157
    vG = 160
    vWM = 224

    a('s_cmp_ge_u32 s2, 256')
    a('s_cbranch_scc1 K2_END')
    stamp(a, 0, 84)
    a(f's_load_dwordx16 {s(sPTR, 16)}, s[0:1], 0')
    a(f's_load_dwordx4 {s(pOUT, 4)}, s[0:1], 64')
    a(f's_load_dwordx2 {s(pWS, 2)}, s[0:1], 80')
    a(f's_and_b32 {s(sT0)}, s2, 7')
    a(f's_lshl_b32 {s(sT0)}, {s(sT0)}, 5')
    a(f's_lshr_b32 {s(sBK)}, s2, 3')
    a(f's_add_u32 {s(sBK)}, {s(sBK)}, {s(sT0)}')
    a(f'v_lshrrev_b32 v3, 6, v0')
    a(f'v_and_b32 {v(vLN)}, 63, v0')
    a(f'v_readfirstlane_b32 {s(sW)}, v3')
    a(f'v_lshlrev_b32 {v(vL16)}, 4, {v(vLN)}')
    a(f'v_lshrrev_b32 {v(vG)}, 2, v0')
    a(f'v_and_b32 {v(vG + 1)}, 3, v0')
    a(f'v_lshlrev_b32 {v(vG + 1)}, 4, {v(vG + 1)}')
    a(f'v_lshl_add_u32 {v(vG + 1)}, {v(vG)}, 14, {v(vG + 1)}')
    a(f's_lshl_b32 {s(sT0)}, {s(sBK)}, 6')
    a(f's_add_u32 {s(sT1)}, {s(sT0)}, {128 * 16384}')
    a(f'v_mul_u32_u24 {v(vB0)}, 10240, {v(vG)}')
    a(f'v_add_u32 {v(vB1)}, {128 * 10240}, {v(vB0)}')
    a('s_waitcnt lgkmcnt(0)')
    srd(a, sC, pWS, PAY_OFF)
    a(f'buffer_load_dwordx4 {v(vC, 4)}, {v(vG + 1)}, {s(sC, 4)}, {s(sT0)} offen')
    a(f'buffer_load_dwordx4 {v(vC + 4, 4)}, {v(vG + 1)}, {s(sC, 4)}, {s(sT1)} offen')
    a(f'v_lshlrev_b32 {v(vG + 2)}, 2, {v(vLN)}')
    for k in range(4):
        a(f'global_load_dword {v(vG + 8 + k)}, {v(vG + 2)}, {s(pWR, 2)} offset:{k * 256}')
    a(f'v_and_b32 {v(vG + 3)}, 3, v0')
    a(f'v_lshlrev_b32 {v(vG + 3)}, 5, {v(vG + 3)}')
    a(f'v_bfe_u32 {v(vG + 4)}, v0, 2, 2')
    a(f'v_lshl_add_u32 {v(vG + 3)}, {v(vG + 4)}, 1, {v(vG + 3)}')
    for f in range(4):
        a(f'global_load_ushort {v(vG + 12 + f)}, {v(vG + 3)}, {s(pCG, 2)} offset:{f * 8}')
    a(f'v_lshrrev_b32 {v(vG + 4)}, 5, v0')
    a(f'v_and_b32 {v(vG + 5)}, 31, v0')
    a(f'v_lshlrev_b32 {v(vG + 5)}, 2, {v(vG + 5)}')
    a(f'v_lshl_add_u32 {v(vG + 5)}, {v(vG + 4)}, 11, {v(vG + 5)}')
    for q in range(2):
        for i in range(8):
            a(f'global_load_dword {v(vWM + q * 8 + i)}, {v(vG + 5)}, {s(pWM, 2)} offset:{i * 256 + q * 128}')
    srd(a, sX, pX, N * 1024)
    srd(a, sO, pOUT, N * 1024)
    a(f's_add_u32 {s(sP)}, {s(pWS)}, {PAY_OFF}')
    a(f's_addc_u32 {s(sP + 1)}, {s(pWS + 1)}, 0')
    a(f's_mov_b32 {s(sP + 2)}, {256 * 10240}')
    a(f's_mov_b32 {s(sP + 3)}, 0x20000')
    srd(a, sE, pEF, E * 8)
    a(f's_mov_b32 {s(sMODE)}, 0')
    a(f's_mov_b32 {s(sBASE)}, 0')
    a(f's_mov_b32 {s(sSH)}, 4')
    a(f's_mov_b32 {s(sPERM0)}, 0x05040100')
    a(f's_mov_b32 {s(sPERM1)}, 0x07060302')
    for r in range(40):
        a(f'v_mov_b32 {v(vACC + r)}, 0')
    a(f'v_mov_b32 {v(vONE)}, 1.0')
    a(f'v_mov_b32 {v(vONE + 1)}, 1.0')

    a.label('BATCH')
    a(f's_mul_i32 {s(sT0)}, {s(sW)}, {REC_W}')
    a(f's_add_u32 {s(sT0)}, {s(sT0)}, {REC}')
    a(f'v_add_u32 {v(vAR)}, {s(sT0)}, {v(vL16)}')
    a(f'v_mov_b32 {v(vG + 16)}, 0')
    a(f'v_mov_b32 {v(vG + 17)}, 0')
    a(f'v_mov_b32 {v(vG + 18)}, {NULLW}')
    a(f'v_mov_b32 {v(vG + 19)}, {NULLW}')
    for k in range(3):
        a(f'ds_write_b128 {v(vAR)}, {v(vG + 16, 4)} offset:{k * 1024}')
    a(f'v_and_b32 {v(vG + 20)}, 31, v0')
    a(f'v_lshlrev_b32 {v(vG + 20)}, 2, {v(vG + 20)}')
    a(f'v_add_u32 {v(vG + 20)}, {CNT}, {v(vG + 20)}')
    a(f'ds_write_b32 {v(vG + 20)}, {v(vG + 16)}')
    a('s_waitcnt lgkmcnt(0)')
    a('s_barrier')
    a('s_waitcnt vmcnt(24)')
    stamp(a, 1, 84)
    dense = [vC, vC + 1, vC + 4, vC + 5]
    rare = [vC + 2, vC + 3, vC + 6, vC + 7]
    a(f'v_or_b32 {v(vG + 21)}, {v(vC)}, {v(vC + 4)}')
    a(f'v_cmp_gt_i32 vcc, 0, {v(vG + 21)}')
    a('s_cbranch_vccz NOFLAG')
    a(f'v_mov_b32 {v(vG + 21)}, {FLAG}')
    a(f'ds_write_b32 {v(vG + 21)}, {v(vG + 18)}')
    a.label('NOFLAG')
    rt = [vG + 24 + 8 * r for r in range(4)]
    for r, e in enumerate(dense):
        t = rt[r]
        a(f'v_cmp_ne_u32 {s(sV + 2 * r, 2)}, 0, {v(e)}')
        a(f'v_and_b32 {v(t)}, 0x3fff, {v(e)}')
        a(f'v_mul_u32_u24 {v(t + 1)}, 26844, {v(t)}')
        a(f'v_lshrrev_b32 {v(t + 1)}, 23, {v(t + 1)}')
        a(f'v_and_b32 {v(t + 1)}, 24, {v(t + 1)}')
        a(f'v_lshlrev_b32 {v(t + 2)}, {v(t + 1)}, 1')
        a(f'v_mov_b32 {v(t + 3)}, 1')
        a(f'v_bfe_u32 {v(t + 5)}, {v(e)}, 14, 3')
        a(f'v_lshlrev_b32 {v(t + 4)}, 3, {v(t + 5)}')
        a(f'v_add_u32 {v(t + 4)}, {CNT}, {v(t + 4)}')
        a(f's_mov_b64 exec, {s(sV + 2 * r, 2)}')
        a(f'ds_add_rtn_u64 {v(t + 6, 2)}, {v(t + 4)}, {v(t + 2, 2)}')
        a('s_mov_b64 exec, -1')
    a('s_waitcnt lgkmcnt(0)')
    a('s_barrier')
    for r in range(4):
        t = rt[r]
        a(f'ds_read_b32 {v(t + 3)}, {v(t + 4)}')
    for r, e in enumerate(dense):
        t = rt[r]
        base = vB0 if r < 2 else vB1
        a(f'v_bfe_u32 {v(t + 6)}, {v(t + 6)}, {v(t + 1)}, 8')
        a(f'v_add_u32 {v(t + 2)}, -1, {v(t + 2)}')
        a(f'v_mul_u32_u24 {v(t + 5)}, {REC_W}, {v(t + 5)}')
        a(f'v_bfe_u32 {v(t + 1)}, {v(e)}, 17, 3')
        a(f'v_lshlrev_b32 {v(t + 1)}, 3, {v(t + 1)}')
        a(f'v_lshl_or_b32 {v(t)}, {v(t)}, 10, {v(t + 1)}')
        a(f'v_bfe_u32 {v(t + 1)}, {v(e)}, 20, 10')
        a(f'v_lshl_add_u32 {v(t + 1)}, {v(t + 1)}, {s(sSH)}, {v(base)}')
        if r == 0:
            a('s_waitcnt lgkmcnt(0)')
        a(f'v_and_b32 {v(t + 3)}, {v(t + 3)}, {v(t + 2)}')
        a(f'v_sad_u8 {v(t + 6)}, {v(t + 3)}, 0, {v(t + 6)}')
        a(f'v_min_u32 {v(t + 6)}, 127, {v(t + 6)}')
        a(f'v_lshl_add_u32 {v(t + 6)}, {v(t + 6)}, 4, {v(t + 5)}')
        a(f'v_add_u32 {v(t + 6)}, {REC + 8}, {v(t + 6)}')
        a(f's_mov_b64 exec, {s(sV + 2 * r, 2)}')
        a(f'ds_write_b64 {v(t + 6)}, {v(t, 2)}')
        a('s_mov_b64 exec, -1')
    a(f'v_or_b32 {v(vG + 21)}, {v(vC + 2)}, {v(vC + 6)}')
    a(f'v_cmp_ne_u32 vcc, 0, {v(vG + 21)}')
    a('s_cbranch_vccz NORARE')
    t = rt[0]
    for r, e in enumerate(rare):
        base = vB0 if r < 2 else vB1
        a(f'v_cmp_ne_u32 vcc, 0, {v(e)}')
        a(f'v_bfe_u32 {v(t + 5)}, {v(e)}, 14, 3')
        a(f'v_lshlrev_b32 {v(t + 4)}, 3, {v(t + 5)}')
        a(f'v_add_u32 {v(t + 4)}, {CNT + 4}, {v(t + 4)}')
        a(f'v_mov_b32 {v(t + 3)}, 1')
        a('s_mov_b64 exec, vcc')
        a(f'ds_add_rtn_u32 {v(t + 6)}, {v(t + 4)}, {v(t + 3)}')
        a(f'v_and_b32 {v(t)}, 0x3fff, {v(e)}')
        a(f'v_mul_u32_u24 {v(t + 5)}, {REC_W}, {v(t + 5)}')
        a(f'v_bfe_u32 {v(t + 1)}, {v(e)}, 17, 3')
        a(f'v_lshlrev_b32 {v(t + 1)}, 3, {v(t + 1)}')
        a(f'v_lshl_or_b32 {v(t)}, {v(t)}, 10, {v(t + 1)}')
        a(f'v_bfe_u32 {v(t + 1)}, {v(e)}, 20, 10')
        a(f'v_lshl_add_u32 {v(t + 1)}, {v(t + 1)}, {s(sSH)}, {v(base)}')
        a('s_waitcnt lgkmcnt(0)')
        a(f'v_min_u32 {v(t + 6)}, 127, {v(t + 6)}')
        a(f'v_lshl_add_u32 {v(t + 6)}, {v(t + 6)}, 4, {v(t + 5)}')
        a(f'v_add_u32 {v(t + 6)}, {REC + 8}, {v(t + 6)}')
        a(f'ds_write_b64 {v(t + 6)}, {v(t, 2)}')
        a('s_mov_b64 exec, -1')
    a.label('NORARE')
    a(f's_cmp_lg_u32 {s(sMODE)}, 0')
    a('s_cbranch_scc1 NOCONST')
    a('s_waitcnt vmcnt(0)')
    a(f's_lshl_b32 {s(sT0)}, {s(sW)}, 11')
    a(f'v_add_u32 {v(vG + 21)}, {s(sT0)}, {v(vL16)}')
    for q in range(2):
        for r in range(2):
            t = vG + 24 + (q * 2 + r) * 4
            for m in range(4):
                a(f'v_perm_b32 {v(t + m)}, {v(vWM + q * 8 + 2 * m + 1)}, {v(vWM + q * 8 + 2 * m)}, {s(sPERM0 + r)}')
            a(f'ds_write_b128 {v(vG + 21)}, {v(t, 4)} offset:{WMIX + q * 16384 + r * 1024}')
    a(f'v_lshl_or_b32 {v(vCG)}, {v(vG + 13)}, 16, {v(vG + 12)}')
    a(f'v_lshl_or_b32 {v(vCG + 1)}, {v(vG + 15)}, 16, {v(vG + 14)}')
    t = vG + 40
    for h in range(2):
        for k in range(4):
            if h == 0:
                a(f'v_lshlrev_b32 {v(t + k)}, 16, {v(vG + 8 + k)}')
            else:
                a(f'v_and_b32 {v(t + k)}, 0xffff0000, {v(vG + 8 + k)}')
            a(f'v_mul_f32 {v(t + k)}, 0xbfb8aa3b, {v(t + k)}')
        for m in range(2):
            a(f'v_cvt_pk_bf16_f32 {v(vWH + 2 * h + m)}, {v(t + 2 * m)}, {v(t + 2 * m + 1)}')
            a(f'v_lshlrev_b32 {v(t + 4)}, 16, {v(vWH + 2 * h + m)}')
            a(f'v_and_b32 {v(t + 5)}, 0xffff0000, {v(vWH + 2 * h + m)}')
            a(f'v_sub_f32 {v(t + 4)}, {v(t + 2 * m)}, {v(t + 4)}')
            a(f'v_sub_f32 {v(t + 5)}, {v(t + 2 * m + 1)}, {v(t + 5)}')
            a(f'v_cvt_pk_bf16_f32 {v(vWL + 2 * h + m)}, {v(t + 4)}, {v(t + 5)}')
    a.label('NOCONST')
    a('s_waitcnt lgkmcnt(0)')
    a('s_barrier')
    stamp(a, 2, 84)
    a(f'ds_read_b32 {v(vG + 21)}, {v(vG + 20)}')
    a(f'ds_read_b64 {v(vG + 24, 2)}, {v(vAR)} offset:8')
    a(f'ds_read_b64 {v(vG + 26, 2)}, {v(vAR)} offset:{1024 + 8}')
    a(f's_lshl_b32 {s(sT0)}, {s(sW)}, 1')
    a(f's_add_u32 {s(sT0)}, {s(sT0)}, 1')
    a('s_waitcnt lgkmcnt(2)')
    a(f'v_readlane_b32 {s(sCNT)}, {v(vG + 21)}, {s(sT0)}')
    a(f'v_cmp_lt_u32 vcc, 128, {v(vG + 21)}')
    a(f's_and_b32 {s(sT0)}, vcc_lo, 0x1aaaa')
    a('s_cbranch_scc1 SLOW_ENTER')
    a(f's_cmp_eq_u32 {s(sCNT)}, 0')
    a('s_cbranch_scc1 LIST_DONE')
    pay = [vG + 28, vG + 32]
    a('s_waitcnt lgkmcnt(0)')
    a(f's_cmp_lg_u32 {s(sMODE)}, 0')
    a('s_cbranch_scc1 PAY_SLOW')
    a(f'buffer_load_dwordx4 {v(pay[0], 4)}, {v(vG + 25)}, {s(sP, 4)}, 0 offen')
    a(f'buffer_load_dwordx4 {v(pay[1], 4)}, {v(vG + 27)}, {s(sP, 4)}, 0 offen')
    a.label('PAY_JOIN')
    for k in range(8):
        a(f'v_readlane_b32 {s(sWD + k)}, {v(vG + 24)}, {k}')
    for k in range(7):
        a(f's_and_b32 {s(sOFF)}, {s(sWD + k)}, 0xfffffc00')
        a(f'buffer_load_dwordx4 {v(vX + 4 * k, 4)}, {v(vL16)}, {s(sX, 4)}, {s(sOFF)} offen')
    a(f's_lshl_b32 {s(sT0)}, {s(sW)}, 12')
    a(f's_add_u32 {s(sT0)}, {s(sT0)}, {TT}')
    a(f'v_lshl_add_u32 {v(vG + 22)}, {v(vLN)}, 5, {s(sT0)}')
    a(f'v_lshl_add_u32 {v(vAT)}, {v(vLN)}, 3, {s(sT0)}')
    for st in range(2):
        a(f's_waitcnt vmcnt({8 - st})')
        d = vG + 36
        for o in range(4):
            a(f'v_mfma_f32_4x4x4_16b_bf16 {v(d + 4 * o, 4)}, {v(vCG, 2)}, {v(pay[st], 2)}, 0 cbsz:4 abid:{o}')
        a(f'ds_write_b64 {v(vAR)}, {v(pay[st] + 2, 2)} offset:{st * 1024}')
        c = vG + 52
        for o in range(4):
            for m in range(2):
                a(f'v_cvt_pk_bf16_f32 {v(c + 2 * o + m)}, {v(d + 4 * o + 2 * m)}, {v(d + 4 * o + 2 * m + 1)}')
        a(f'ds_write_b128 {v(vG + 22)}, {v(c, 4)} offset:{st * 2048}')
        a(f'ds_write_b128 {v(vG + 22)}, {v(c + 4, 4)} offset:{st * 2048 + 16}')

    def zmfma(buf, j, rec):
        h = j & 1
        d = vZ + 8 * buf + 4 * h
        if j < 2:
            a(f'v_mfma_f32_4x4x4_16b_bf16 {v(d, 4)}, {v(rec, 2)}, {v(vWH + 2 * h, 2)}, 0 cbsz:4 abid:0')
        else:
            a(f'v_mfma_f32_4x4x4_16b_bf16 {v(d, 4)}, {v(rec, 2)}, {v(vWL + 2 * h, 2)}, {v(d, 4)} cbsz:4 abid:0')

    def pair(base, buf, p):
        return base + 8 * buf + 4 * (p & 1) + 2 * (p >> 1)

    a(f'ds_read_b128 {v(vRA, 4)}, {v(vAR)}')
    a(f'ds_read_b128 {v(vRB, 4)}, {v(vAR)} offset:64')
    a(f'ds_read_b64 {v(vTA, 2)}, {v(vAT)}')
    a('s_waitcnt lgkmcnt(1)')
    for j in range(4):
        zmfma(0, j, vRA)
        zmfma(1, j, vRB)
    a(f'ds_read_b128 {v(vRA, 4)}, {v(vAR)} offset:128')
    for p in range(4):
        e = vE + 2 * (p & 1)
        z = pair(vZ, 0, p)
        a(f'v_exp_f32 {v(e)}, {v(z)}')
        a(f'v_exp_f32 {v(e + 1)}, {v(z + 1)}')
        a(f'v_pk_add_f32 {v(e, 2)}, {v(e, 2)}, {v(vONE, 2)}')
        if p < 3:
            a(f'v_rcp_f32 {v(e)}, {v(e)}')
            a(f'v_rcp_f32 {v(e + 1)}, {v(e + 1)}')
            a(f'v_pk_mul_f32 {v(pair(vR, 0, p), 2)}, {v(e, 2)}, {v(z, 2)}')
    a(f's_add_u32 {s(sCNT)}, {s(sCNT)}, 7')
    a(f's_lshr_b32 {s(sCNT)}, {s(sCNT)}, 3')

    stamp(a, 3, 84)
    a.label('LOOP')
    for g in range(2):
        T, Rc = (vTA, vRA) if g == 0 else (vTB, vRB)
        To, Ro = (vTB, vRB) if g == 0 else (vTA, vRA)
        a('s_waitcnt lgkmcnt(0)')
        a(f'ds_read_b64 {v(To, 2)}, {v(vAT)} offset:{(g + 1) * 128}')
        a(f'ds_read_b128 {v(Ro, 4)}, {v(vAR)} offset:{(g + 3) * 64}')
        for j in range(4):
            k = 4 * g + j
            kp = (k + 7) % 8
            en = vE + 2 * (j & 1)
            eo = vE + 2 * ((j + 1) & 1)
            zn = pair(vZ, (g + 1) & 1, j)
            if j == 0:
                zo, ro = pair(vZ, g, 3), pair(vR, g, 3)
            else:
                zo, ro = pair(vZ, (g + 1) & 1, j - 1), pair(vR, (g + 1) & 1, j - 1)
            a('s_waitcnt vmcnt(6)')
            a(f'v_mfma_f32_4x4x4_16b_bf16 {v(vTP, 4)}, {v(T, 2)}, {v(vX + 4 * k, 2)}, 0 cbsz:4 abid:{j}')
            a(f's_and_b32 {s(sOFF)}, {s(sWD + kp)}, 0xfffffc00')
            a(f'buffer_load_dwordx4 {v(vX + 4 * kp, 4)}, {v(vL16)}, {s(sX, 4)}, {s(sOFF)} offen')
            a(f'v_exp_f32 {v(en)}, {v(zn)}')
            a(f'v_mfma_f32_4x4x4_16b_bf16 {v(vTP + 4, 4)}, {v(T, 2)}, {v(vX + 4 * k + 2, 2)}, 0 cbsz:4 abid:{j}')
            a(f'v_exp_f32 {v(en + 1)}, {v(zn + 1)}')
            zmfma(g, j, Rc)
            a(f'v_rcp_f32 {v(eo)}, {v(eo)}')
            a(f'v_rcp_f32 {v(eo + 1)}, {v(eo + 1)}')
            a(f'v_pk_add_f32 {v(en, 2)}, {v(en, 2)}, {v(vONE, 2)}')
            a(f'v_pk_mul_f32 {v(ro, 2)}, {v(eo, 2)}, {v(zo, 2)}')
            a(f's_set_gpr_idx_on {s(sWD + k)}, gpr_idx(SRC2,DST)')
            a.idx_range = (vACC, vACC + 40)
            sel = j & 1
            for h in range(2):
                rp = vR + 8 * g + 4 * h + 2 * (j >> 1)
                for m in range(2):
                    d = vACC + 4 * h + 2 * m
                    a(f'v_pk_fma_f32 {v(d, 2)}, {v(rp, 2)}, {v(vTP + 4 * h + 2 * m, 2)}, {v(d, 2)} op_sel:[{sel},0,0] op_sel_hi:[{sel},1,1]')
            a.idx_range = None
            a('s_set_gpr_idx_off')
            a(f'v_readlane_b32 {s(sWD + k)}, {v(Rc + 2)}, {j}')
    a(f'v_add_u32 {v(vAT)}, 256, {v(vAT)}')
    a(f'v_add_u32 {v(vAR)}, 128, {v(vAR)}')
    a(f's_sub_u32 {s(sCNT)}, {s(sCNT)}, 1')
    a(f's_cmp_lg_u32 {s(sCNT)}, 0')
    a('s_cbranch_scc1 LOOP')
    a.label('LIST_DONE')
    a('s_waitcnt vmcnt(0) lgkmcnt(0)')
    a(f's_cmp_lg_u32 {s(sMODE)}, 0')
    a('s_cbranch_scc1 SLOW_NEXT')

    a.label('MIX')
    stamp(a, 4, 84)
    vA = 44
    vBb = 76
    vD = 108
    vS = 172
    vAd = 200
    a(f's_mul_i32 {s(sT0)}, {s(sW)}, {AGG_W}')
    a(f's_add_u32 {s(sT0)}, {s(sT0)}, {AGG}')
    a(f'v_lshl_add_u32 {v(vAd)}, {v(vLN)}, 2, {s(sT0)}')
    a(f'v_and_b32 {v(vAd + 1)}, 31, {v(vLN)}')
    a(f'v_lshrrev_b32 {v(vAd + 2)}, 5, {v(vLN)}')
    a(f'v_mul_u32_u24 {v(vAd + 3)}, {AGG_ROW}, {v(vAd + 1)}')
    a(f'v_lshl_add_u32 {v(vAd + 3)}, {v(vAd + 2)}, 4, {v(vAd + 3)}')
    a(f'v_add_u32 {v(vAd + 3)}, {s(sT0)}, {v(vAd + 3)}')
    a(f'v_mov_b32 {v(vAd + 4)}, 0xbf317218')
    a(f'v_mov_b32 {v(vAd + 5)}, 0xbf317218')
    for i in range(8):
        a(f'ds_read_b128 {v(vBb + 4 * i, 4)}, {v(vL16)} offset:{WMIX + i * 1024}')
    for sl in range(5):
        for m in range(4):
            d = vACC + 8 * sl + 2 * m
            a(f'v_pk_mul_f32 {v(d, 2)}, {v(d, 2)}, {v(vAd + 4, 2)}')
        for o in range(4):
            a(f'v_cvt_pk_bf16_f32 {v(vS + 4 * sl + o)}, {v(vACC + 8 * sl + o)}, {v(vACC + 8 * sl + 4 + o)}')
            a(f'ds_write_b32 {v(vAd)}, {v(vS + 4 * sl + o)} offset:{(4 * sl + o) * AGG_ROW}')
        if sl == 1:
            a('s_waitcnt lgkmcnt(4)')
        if sl == 3:
            a('s_waitcnt lgkmcnt(4)')
    a('s_waitcnt lgkmcnt(0)')
    for kk in range(8):
        a(f'ds_read_b128 {v(vA + 4 * kk, 4)}, {v(vAd + 3)} offset:{kk * 32}')
    a(f'v_lshlrev_b32 {v(vAd + 2)}, 21, {v(vAd + 2)}')
    a(f'v_lshl_add_u32 {v(vAd + 2)}, {v(vAd + 1)}, 4, {v(vAd + 2)}')
    a(f's_lshl_b32 {s(sT0)}, {s(sW)}, 18')
    a(f's_lshl_b32 {s(sT1)}, {s(sBK)}, 10')
    a(f's_add_u32 {s(sT0)}, {s(sT0)}, {s(sT1)}')
    a(f'v_add_u32 {v(vAd + 2)}, {s(sT0)}, {v(vAd + 2)}')
    a(f's_mov_b32 {s(sWD)}, 0')
    a(f's_mov_b32 {s(sWD + 1)}, {1 << 22}')
    a(f's_mov_b32 {s(sWD + 2)}, {2 << 22}')
    a('s_waitcnt lgkmcnt(0)')

    def outq(q, rr):
        st = vS + 12 * q + 4 * rr
        for r in range(2):
            d = vD + 32 * q + 16 * r + 4 * rr
            a(f'v_cvt_pk_bf16_f32 {v(st + 2 * r)}, {v(d)}, {v(d + 1)}')
            a(f'v_cvt_pk_bf16_f32 {v(st + 2 * r + 1)}, {v(d + 2)}, {v(d + 3)}')
        a(f'buffer_store_dwordx4 {v(st, 4)}, {v(vAd + 2)}, {s(sO, 4)}, {s(sWD + rr)} offen offset:{q * 512}')

    for i in range(32):
        q, kk, r = i >> 4, (i >> 1) & 7, i & 1
        d = vD + 32 * q + 16 * r
        b = vBb + 4 * (i & 7)
        if i >= 8:
            a(f's_waitcnt lgkmcnt({min(7, 31 - i)})')
        a(f'v_mfma_f32_32x32x16_bf16 {v(d, 16)}, {v(vA + 4 * kk, 4)}, {v(b, 4)}, {"0" if kk == 0 else v(d, 16)}')
        if i + 8 < 32:
            a(f'ds_read_b128 {v(b, 4)}, {v(vL16)} offset:{WMIX + (i + 8) * 1024}')
        if i in (20, 22, 24):
            outq(0, (i - 20) // 2)
    for rr in range(3):
        outq(1, rr)
    if OPT['stamps']:
        a('s_waitcnt vmcnt(0)')
        stamp(a, 5, 84)
        emit_stamps(a, [(i, 2 + i) for i in range(6)], 84, pDBG, 0, 4)
    a.label('K2_END')
    a('s_endpgm')

    a.label('PAY_SLOW')
    for st in range(2):
        a(f'buffer_load_dwordx2 {v(pay[st], 2)}, {v(vG + 25 + 2 * st)}, {s(sP, 4)}, 0 offen')
        a(f'buffer_load_dwordx2 {v(pay[st] + 2, 2)}, {v(vG + 25 + 2 * st)}, {s(sE, 4)}, 0 offen')
    a('s_waitcnt vmcnt(0)')
    a('s_branch PAY_JOIN')
    a.label('SLOW_ENTER')
    a(f's_mov_b32 {s(sMODE)}, 1')
    a(f's_mov_b32 {s(sSH)}, 3')
    srd(a, sP, pY, E * 8)
    a('s_branch SLOW_LOAD')
    a.label('SLOW_NEXT')
    a(f's_add_u32 {s(sBASE)}, {s(sBASE)}, 128')
    a(f's_cmp_ge_u32 {s(sBASE)}, {E}')
    a('s_cbranch_scc1 MIX')
    a.label('SLOW_LOAD')
    a('s_waitcnt lgkmcnt(0)')
    a('s_barrier')
    a(f'v_and_b32 {v(vG + 24)}, 127, v0')
    a(f'v_add_lshl_u32 {v(vG + 25)}, {v(vG + 24)}, {s(sBASE)}, 2')
    a(f'global_load_dword {v(vG + 26)}, {v(vG + 25)}, {s(pDST, 2)}')
    a(f'global_load_dword {v(vG + 27)}, {v(vG + 25)}, {s(pSRC, 2)}')
    for r in range(1, 8):
        a(f'v_mov_b32 {v(vC + r)}, 0')
    a(f's_lshl_b32 {s(sT0)}, {s(sBASE)}, 3')
    a(f'v_mov_b32 {v(vB0)}, {s(sT0)}')
    a(f'v_lshrrev_b32 {v(vG + 28)}, 7, v0')
    a('s_waitcnt vmcnt(0)')
    a(f'v_and_b32 {v(vG + 25)}, 255, {v(vG + 26)}')
    a(f'v_lshl_or_b32 {v(vG + 25)}, {v(vG + 28)}, 8, {v(vG + 25)}')
    a(f'v_cmp_eq_u32 vcc, {s(sBK)}, {v(vG + 25)}')
    a(f'v_lshrrev_b32 {v(vG + 26)}, 8, {v(vG + 26)}')
    a(f'v_lshl_or_b32 {v(vG + 26)}, {v(vG + 26)}, 14, {v(vG + 27)}')
    a(f'v_lshl_or_b32 {v(vG + 26)}, {v(vG + 24)}, 20, {v(vG + 26)}')
    a(f'v_or_b32 {v(vG + 26)}, 0x40000000, {v(vG + 26)}')
    a(f'v_cndmask_b32 {v(vC)}, 0, {v(vG + 26)}, vcc')
    a('s_branch BATCH')
    return a, LDS


def main():
    a1, lds1 = k1()
    a2, lds2 = k2()
    n1 = a1.fix_hazards(True)
    n2 = a2.fix_hazards(True)
    ref = open('cdna_kernels/' + NAME + '.s.ref').read().split('\n')
    head = [l for l in ref if l.startswith(';') and '@launch' not in l and 'Override' not in l and 'grid=ceil' not in l]
    out = '\n'.join(head) + '\n'
    for i in range(OPT['extra_empty']):
        out += '; @launch kernel=empty_kernel grid=(256,1,1) block=(64,1,1) lds=0\n'
    out += f'; @launch kernel=sort_kernel grid=(256,1,1) block=(640,1,1) lds={lds1}\n'
    out += f'; @launch kernel={NAME}_kernel grid=(256,1,1) block=(512,1,1) lds={lds2}\n'
    out += '.amdgcn_target "amdgcn-amd-amdhsa--gfx950"\n.text\n'
    out += kernel_text('sort_kernel', a1)
    out += kernel_text(NAME + '_kernel', a2)
    if OPT['extra_empty']:
        e = Asm()
        e('s_endpgm')
        out += kernel_text('empty_kernel', e)
    out += '.section .rodata,"a"\n'
    out += descriptor('sort_kernel', *a1.max_regs())
    out += descriptor(NAME + '_kernel', *a2.max_regs())
    if OPT['extra_empty']:
        out += descriptor('empty_kernel', 4, 8)
    open(sys.argv[1], 'w').write(out)
    print('regs', a1.max_regs(), a2.max_regs(), 'lds', lds1, lds2, 'nops', n1, n2)


main()
```

```python
import sys
from asmlib import *

NAME = 'gather_scatter__tensor_product_equiv_tfn__graph'
N, E = 10000, 160000
PAY_OFF = 4 << 20
NULLW = 0x7FFF0000
OPT = dict(extra_empty=0, stamps=0, probe=-1)
for a in sys.argv[2:]:
    k, x = a.split('=')
    OPT[k] = int(x)


def srd(a, d, b, nbytes):
    a(f's_mov_b32 {s(d)}, {s(b)}')
    a(f's_mov_b32 {s(d + 1)}, {s(b + 1)}')
    a(f's_mov_b32 {s(d + 2)}, {nbytes}')
    a(f's_mov_b32 {s(d + 3)}, 0x20000')


def scan64(a, r):
    for sh in (1, 2, 4, 8):
        a(f'v_add_u32_dpp {v(r)}, {v(r)}, {v(r)} row_shr:{sh} row_mask:0xf bank_mask:0xf')
    a(f'v_add_u32_dpp {v(r)}, {v(r)}, {v(r)} row_bcast:15 row_mask:0xa bank_mask:0xf')
    a(f'v_add_u32_dpp {v(r)}, {v(r)}, {v(r)} row_bcast:31 row_mask:0xc bank_mask:0xf')


def stamp(a, i, base):
    if OPT['stamps']:
        a(f's_memrealtime {s(base + 2 * i, 2)}')
        a('s_waitcnt lgkmcnt(0)')


STAMP_OFF = 16 << 20


def emit_stamps(a, ids, base, ptr, kern, vt):
    if not OPT['stamps']:
        return
    a('s_mov_b64 exec, -1')
    a(f'v_mov_b32 {v(vt)}, 0')
    for i, w in ids:
        a(f'v_writelane_b32 {v(vt)}, {s(base + 2 * i)}, {w}')
    a(f'v_and_b32 {v(vt + 1)}, 63, v0')
    a(f'v_lshrrev_b32 {v(vt + 2)}, 6, v0')
    a(f'v_lshlrev_b32 {v(vt + 2)}, 5, {v(vt + 2)}')
    a(f'v_lshl_add_u32 {v(vt + 1)}, {v(vt + 1)}, 2, {v(vt + 2)}')
    a(f's_lshl_b32 {s(base)}, s2, 9')
    a(f's_add_u32 {s(base)}, {s(base)}, {STAMP_OFF + kern * 256 * 512}')
    a(f'v_add_u32 {v(vt + 1)}, {s(base)}, {v(vt + 1)}')
    a('s_mov_b64 exec, 0xff')
    a(f'global_store_dword {v(vt + 1)}, {v(vt)}, {s(ptr, 2)}')


def probe(ka, ia, kb, ib, usemin):
    a = Asm()
    a('s_cmp_ge_u32 s2, 1')
    a('s_cbranch_scc1 P_END')
    a('s_load_dwordx2 s[4:5], s[0:1], 80')
    a('v_lshlrev_b32 v1, 9, v0')
    a(f'v_add_u32 v2, {STAMP_OFF + ka * 256 * 512 + ia * 4}, v1')
    a(f'v_add_u32 v3, {STAMP_OFF + kb * 256 * 512 + ib * 4}, v1')
    a('s_waitcnt lgkmcnt(0)')
    a('s_memrealtime s[8:9]')
    a('v_mov_b32 v4, 0')
    a(f'v_mov_b32 v5, {0 if usemin else -1}')
    a('s_waitcnt lgkmcnt(0)')
    for q in range(4):
        for w in range(8):
            a(f'global_load_dword v{10 + w}, v2, s[4:5] offset:{w * 32}')
            a(f'global_load_dword v{20 + w}, v3, s[4:5] offset:{w * 32}')
        a('s_waitcnt vmcnt(0)')
        for w in range(8):
            a(f'v_sub_u32 v{10 + w}, s8, v{10 + w}')
            a(f'v_sub_u32 v{20 + w}, s8, v{20 + w}')
            a(f'v_max_u32 v4, v4, v{10 + w}')
            a(f'v_{"max" if usemin else "min"}_u32 v5, v5, v{20 + w}')
        a('v_add_u32 v2, 32768, v2')
        a('v_add_u32 v3, 32768, v3')
    a('s_mov_b32 s10, 0')
    a(f's_mov_b32 s11, {0 if usemin else -1}')
    for l in range(64):
        a(f'v_readlane_b32 s12, v4, {l}')
        a(f'v_readlane_b32 s13, v5, {l}')
        a('s_max_u32 s10, s10, s12')
        a(f's_{"max" if usemin else "min"}_u32 s11, s11, s13')
    a('s_sub_u32 s10, s10, s11')
    a('s_min_u32 s10, s10, 10000')
    a('s_mul_i32 s10, s10, 20')
    a('s_memrealtime s[8:9]')
    a('s_waitcnt lgkmcnt(0)')
    a.label('P_SPIN')
    a('s_memrealtime s[12:13]')
    a('s_waitcnt lgkmcnt(0)')
    a('s_sub_u32 s12, s12, s8')
    a('s_cmp_lt_u32 s12, s10')
    a('s_cbranch_scc1 P_SPIN')
    a.label('P_END')
    a('s_endpgm')
    return a


def k1():
    a = Asm()
    CNT, OFF = 16384, 17408
    a('s_cmp_ge_u32 s2, 256')
    a('s_cbranch_scc1 K1_END')
    stamp(a, 0, 20)
    a('s_load_dwordx4 s[4:7], s[0:1], 8')
    a('s_load_dwordx4 s[8:11], s[0:1], 24')
    a('s_load_dwordx2 s[12:13], s[0:1], 80')
    a('s_mul_i32 s3, s2, 625')
    a('v_min_u32 v1, 624, v0')
    a('v_add_u32 v1, s3, v1')
    a('v_lshlrev_b32 v2, 2, v1')
    a('v_lshlrev_b32 v3, 3, v1')
    a('s_waitcnt lgkmcnt(0)')
    a('global_load_dword v4, v2, s[6:7]')
    a('global_load_dword v5, v2, s[4:5]')
    a('global_load_dwordx2 v[8:9], v3, s[8:9]')
    a('global_load_dwordx2 v[10:11], v3, s[10:11]')
    for r in range(12, 16):
        a(f'v_mov_b32 v{r}, 0')
    a('v_lshlrev_b32 v6, 4, v0')
    a('ds_write_b128 v6, v[12:15]')
    a('v_cmp_gt_u32 vcc, 448, v0')
    a('s_and_saveexec_b64 s[14:15], vcc')
    a('ds_write_b128 v6, v[12:15] offset:10240')
    a('s_mov_b64 exec, s[14:15]')
    a('v_mov_b32 v12, 1')
    a('v_cmp_gt_u32 vcc, 625, v0')
    a('s_mov_b64 s[16:17], vcc')
    a('s_waitcnt lgkmcnt(0)')
    a('s_barrier')
    a('s_mov_b64 exec, s[16:17]')
    a('s_waitcnt vmcnt(3)')
    a('v_and_b32 v7, 255, v4')
    a('v_lshlrev_b32 v13, 2, v7')
    a(f'ds_add_rtn_u32 v14, v13, v12 offset:{CNT}')
    a('s_mov_b64 exec, -1')
    a('s_waitcnt lgkmcnt(0)')
    a('s_barrier')
    a('v_cmp_gt_u32 vcc, 64, v0')
    a('s_cbranch_vccz K1_NOSCAN')
    a(f'ds_read_b128 v[16:19], v6 offset:{CNT}')
    a('s_waitcnt lgkmcnt(0)')
    a('v_add_u32 v21, v16, v17')
    a('v_add_u32 v22, v21, v18')
    a('v_add_u32 v23, v22, v19')
    a('v_mov_b32 v24, v23')
    scan64(a, 24)
    a('v_sub_u32 v20, v24, v23')
    a('v_add_u32 v23, v20, v22')
    a('v_add_u32 v22, v20, v21')
    a('v_add_u32 v21, v20, v16')
    a(f'ds_write_b128 v6, v[20:23] offset:{OFF}')
    a('s_waitcnt lgkmcnt(0)')
    a.label('K1_NOSCAN')
    a('s_barrier')
    a('s_mov_b64 exec, s[16:17]')
    a(f'ds_read_b32 v15, v13 offset:{OFF}')
    a('s_waitcnt vmcnt(2)')
    a('v_lshrrev_b32 v16, 8, v4')
    a('v_lshl_or_b32 v16, v16, 14, v5')
    a('v_or_b32 v16, 0x40000000, v16')
    a('v_and_b32 v17, 3, v14')
    a('v_lshlrev_b32 v17, 4, v17')
    a('v_and_b32 v18, 12, v14')
    a('v_add_u32 v17, v17, v18')
    a('v_cmp_gt_u32 vcc, 16, v14')
    a('v_mov_b32 v19, 0x80000000')
    a('s_mul_i32 s3, s2, 10240')
    a(f's_add_u32 s3, s3, {PAY_OFF}')
    a('s_waitcnt lgkmcnt(0)')
    a('v_add_u32 v15, v15, v14')
    a('v_lshl_or_b32 v16, v15, 20, v16')
    a('v_cndmask_b32 v16, v19, v16, vcc')
    a('v_cndmask_b32 v17, 0, v17, vcc')
    a('v_lshl_add_u32 v17, v7, 6, v17')
    a('ds_or_b32 v17, v16')
    a('v_lshl_add_u32 v15, v15, 4, s3')
    a('s_waitcnt vmcnt(0)')
    a('global_store_dwordx4 v15, v[8:11], s[12:13]')
    a('s_mov_b64 exec, -1')
    a('s_waitcnt lgkmcnt(0)')
    a('s_barrier')
    a('ds_read_b128 v[16:19], v6')
    a('ds_read_b128 v[20:23], v6 offset:10240')
    a('s_lshl_b32 s3, s2, 14')
    a('v_add_u32 v7, s3, v6')
    a('v_add_u32 v13, 10240, v7')
    a('v_cmp_gt_u32 vcc, 384, v0')
    a('s_waitcnt lgkmcnt(1)')
    a('global_store_dwordx4 v7, v[16:19], s[12:13]')
    a('s_and_saveexec_b64 s[14:15], vcc')
    a('s_cbranch_execz K1_FIN')
    a('s_waitcnt lgkmcnt(0)')
    a('global_store_dwordx4 v13, v[20:23], s[12:13]')
    a.label('K1_FIN')
    if OPT['stamps']:
        a('s_waitcnt vmcnt(0)')
        stamp(a, 1, 20)
        emit_stamps(a, [(0, 0), (1, 1)], 20, 12, 0, 26)
    a.label('K1_END')
    a('s_endpgm')
    return a, 20480 + 256


def k2():
    a = Asm()
    WMIX = 0
    AGG, AGG_W, AGG_ROW = 32768, 20 * 272, 272
    REC, REC_W = AGG + 8 * AGG_W, 192 * 16
    TT, TT_W = REC + 8 * REC_W, 128 * 32
    CNT = TT + 8 * TT_W + 1024
    FLAG = CNT + 64
    LDS = CNT + 128
    sX, sC, sP, sE, sO = 8, 12, 16, 20, 24
    sPTR = 28
    pX, pSRC, pDST, pY, pEF, pWR, pCG, pWM, pOUT, pDBG, pWS = [sPTR + 2 * i for i in range(11)]
    sBK, sW, sMODE, sBASE, sSH, sCNT, sT0, sT1, sOFF = 52, 53, 54, 55, 56, 57, 58, 59, 60
    sM = 62
    sWD = 64
    sV = 72
    sPERM0, sPERM1 = 80, 81
    vLN, vL16 = 1, 2
    vACC = 4
    vX = 44
    vTP = 76
    vZ = 84
    vR = 100
    vE = 116
    vTA, vTB = 120, 122
    vRA, vRB = 124, 128
    vWH, vWL = 132, 136
    vCG = 140
    vAT, vAR = 142, 143
    vONE = 144
    vC = 148
    vB0, vB1 = 156, 157
    vG = 160
    vWM = 224

    a('s_cmp_ge_u32 s2, 256')
    a('s_cbranch_scc1 K2_END')
    stamp(a, 0, 84)
    a(f's_load_dwordx16 {s(sPTR, 16)}, s[0:1], 0')
    a(f's_load_dwordx4 {s(pOUT, 4)}, s[0:1], 64')
    a(f's_load_dwordx2 {s(pWS, 2)}, s[0:1], 80')
    a(f's_and_b32 {s(sT0)}, s2, 7')
    a(f's_lshl_b32 {s(sT0)}, {s(sT0)}, 5')
    a(f's_lshr_b32 {s(sBK)}, s2, 3')
    a(f's_add_u32 {s(sBK)}, {s(sBK)}, {s(sT0)}')
    a(f'v_lshrrev_b32 v3, 6, v0')
    a(f'v_and_b32 {v(vLN)}, 63, v0')
    a(f'v_readfirstlane_b32 {s(sW)}, v3')
    a(f'v_lshlrev_b32 {v(vL16)}, 4, {v(vLN)}')
    a(f'v_lshrrev_b32 {v(vG)}, 2, v0')
    a(f'v_and_b32 {v(vG + 1)}, 3, v0')
    a(f'v_lshlrev_b32 {v(vG + 1)}, 4, {v(vG + 1)}')
    a(f'v_lshl_add_u32 {v(vG + 1)}, {v(vG)}, 14, {v(vG + 1)}')
    a(f's_lshl_b32 {s(sT0)}, {s(sBK)}, 6')
    a(f's_add_u32 {s(sT1)}, {s(sT0)}, {128 * 16384}')
    a(f'v_mul_u32_u24 {v(vB0)}, 10240, {v(vG)}')
    a(f'v_add_u32 {v(vB1)}, {128 * 10240}, {v(vB0)}')
    a('s_waitcnt lgkmcnt(0)')
    srd(a, sC, pWS, PAY_OFF)
    a(f'buffer_load_dwordx4 {v(vC, 4)}, {v(vG + 1)}, {s(sC, 4)}, {s(sT0)} offen')
    a(f'buffer_load_dwordx4 {v(vC + 4, 4)}, {v(vG + 1)}, {s(sC, 4)}, {s(sT1)} offen')
    a(f'v_lshlrev_b32 {v(vG + 2)}, 2, {v(vLN)}')
    for k in range(4):
        a(f'global_load_dword {v(vG + 8 + k)}, {v(vG + 2)}, {s(pWR, 2)} offset:{k * 256}')
    a(f'v_and_b32 {v(vG + 3)}, 3, v0')
    a(f'v_lshlrev_b32 {v(vG + 3)}, 5, {v(vG + 3)}')
    a(f'v_bfe_u32 {v(vG + 4)}, v0, 2, 2')
    a(f'v_lshl_add_u32 {v(vG + 3)}, {v(vG + 4)}, 1, {v(vG + 3)}')
    for f in range(4):
        a(f'global_load_ushort {v(vG + 12 + f)}, {v(vG + 3)}, {s(pCG, 2)} offset:{f * 8}')
    a(f'v_lshrrev_b32 {v(vG + 4)}, 5, v0')
    a(f'v_and_b32 {v(vG + 5)}, 31, v0')
    a(f'v_lshlrev_b32 {v(vG + 5)}, 2, {v(vG + 5)}')
    a(f'v_lshl_add_u32 {v(vG + 5)}, {v(vG + 4)}, 11, {v(vG + 5)}')
    for q in range(2):
        for i in range(8):
            a(f'global_load_dword {v(vWM + q * 8 + i)}, {v(vG + 5)}, {s(pWM, 2)} offset:{i * 256 + q * 128}')
    srd(a, sX, pX, N * 1024)
    srd(a, sO, pOUT, N * 1024)
    a(f's_add_u32 {s(sP)}, {s(pWS)}, {PAY_OFF}')
    a(f's_addc_u32 {s(sP + 1)}, {s(pWS + 1)}, 0')
    a(f's_mov_b32 {s(sP + 2)}, {256 * 10240}')
    a(f's_mov_b32 {s(sP + 3)}, 0x20000')
    srd(a, sE, pEF, E * 8)
    a(f's_mov_b32 {s(sMODE)}, 0')
    a(f's_mov_b32 {s(sBASE)}, 0')
    a(f's_mov_b32 {s(sSH)}, 4')
    a(f's_mov_b32 {s(sPERM0)}, 0x05040100')
    a(f's_mov_b32 {s(sPERM1)}, 0x07060302')
    for r in range(40):
        a(f'v_mov_b32 {v(vACC + r)}, 0')
    a(f'v_mov_b32 {v(vONE)}, 1.0')
    a(f'v_mov_b32 {v(vONE + 1)}, 1.0')

    a.label('BATCH')
    a(f's_mul_i32 {s(sT0)}, {s(sW)}, {REC_W}')
    a(f's_add_u32 {s(sT0)}, {s(sT0)}, {REC}')
    a(f'v_add_u32 {v(vAR)}, {s(sT0)}, {v(vL16)}')
    a(f'v_mov_b32 {v(vG + 16)}, 0')
    a(f'v_mov_b32 {v(vG + 17)}, 0')
    a(f'v_mov_b32 {v(vG + 18)}, {NULLW}')
    a(f'v_mov_b32 {v(vG + 19)}, {NULLW}')
    for k in range(3):
        a(f'ds_write_b128 {v(vAR)}, {v(vG + 16, 4)} offset:{k * 1024}')
    a(f'v_and_b32 {v(vG + 20)}, 31, v0')
    a(f'v_lshlrev_b32 {v(vG + 20)}, 2, {v(vG + 20)}')
    a(f'v_add_u32 {v(vG + 20)}, {CNT}, {v(vG + 20)}')
    a(f'ds_write_b32 {v(vG + 20)}, {v(vG + 16)}')
    a('s_waitcnt lgkmcnt(0)')
    a('s_barrier')
    a('s_waitcnt vmcnt(24)')
    stamp(a, 1, 84)
    dense = [vC, vC + 1, vC + 4, vC + 5]
    rare = [vC + 2, vC + 3, vC + 6, vC + 7]
    a(f'v_or_b32 {v(vG + 21)}, {v(vC)}, {v(vC + 4)}')
    a(f'v_cmp_gt_i32 vcc, 0, {v(vG + 21)}')
    a('s_cbranch_vccz NOFLAG')
    a(f'v_mov_b32 {v(vG + 21)}, {FLAG}')
    a(f'ds_write_b32 {v(vG + 21)}, {v(vG + 18)}')
    a.label('NOFLAG')
    rt = [vG + 24 + 8 * r for r in range(4)]
    for r, e in enumerate(dense):
        t = rt[r]
        a(f'v_cmp_ne_u32 {s(sV + 2 * r, 2)}, 0, {v(e)}')
        a(f'v_and_b32 {v(t)}, 0x3fff, {v(e)}')
        a(f'v_mul_u32_u24 {v(t + 1)}, 26844, {v(t)}')
        a(f'v_lshrrev_b32 {v(t + 1)}, 23, {v(t + 1)}')
        a(f'v_and_b32 {v(t + 1)}, 24, {v(t + 1)}')
        a(f'v_lshlrev_b32 {v(t + 2)}, {v(t + 1)}, 1')
        a(f'v_mov_b32 {v(t + 3)}, 1')
        a(f'v_bfe_u32 {v(t + 5)}, {v(e)}, 14, 3')
        a(f'v_lshlrev_b32 {v(t + 4)}, 3, {v(t + 5)}')
        a(f'v_add_u32 {v(t + 4)}, {CNT}, {v(t + 4)}')
        a(f's_mov_b64 exec, {s(sV + 2 * r, 2)}')
        a(f'ds_add_rtn_u64 {v(t + 6, 2)}, {v(t + 4)}, {v(t + 2, 2)}')
        a('s_mov_b64 exec, -1')
    a('s_waitcnt lgkmcnt(0)')
    a('s_barrier')
    for r in range(4):
        t = rt[r]
        a(f'ds_read_b32 {v(t + 3)}, {v(t + 4)}')
    for r, e in enumerate(dense):
        t = rt[r]
        base = vB0 if r < 2 else vB1
        a(f'v_bfe_u32 {v(t + 6)}, {v(t + 6)}, {v(t + 1)}, 8')
        a(f'v_add_u32 {v(t + 2)}, -1, {v(t + 2)}')
        a(f'v_mul_u32_u24 {v(t + 5)}, {REC_W}, {v(t + 5)}')
        a(f'v_bfe_u32 {v(t + 1)}, {v(e)}, 17, 3')
        a(f'v_lshlrev_b32 {v(t + 1)}, 3, {v(t + 1)}')
        a(f'v_lshl_or_b32 {v(t)}, {v(t)}, 10, {v(t + 1)}')
        a(f'v_bfe_u32 {v(t + 1)}, {v(e)}, 20, 10')
        a(f'v_lshl_add_u32 {v(t + 1)}, {v(t + 1)}, {s(sSH)}, {v(base)}')
        if r == 0:
            a('s_waitcnt lgkmcnt(0)')
        a(f'v_and_b32 {v(t + 3)}, {v(t + 3)}, {v(t + 2)}')
        a(f'v_sad_u8 {v(t + 6)}, {v(t + 3)}, 0, {v(t + 6)}')
        a(f'v_min_u32 {v(t + 6)}, 127, {v(t + 6)}')
        a(f'v_lshl_add_u32 {v(t + 6)}, {v(t + 6)}, 4, {v(t + 5)}')
        a(f'v_add_u32 {v(t + 6)}, {REC + 8}, {v(t + 6)}')
        a(f's_mov_b64 exec, {s(sV + 2 * r, 2)}')
        a(f'ds_write_b64 {v(t + 6)}, {v(t, 2)}')
        a('s_mov_b64 exec, -1')
    a(f'v_or_b32 {v(vG + 21)}, {v(vC + 2)}, {v(vC + 6)}')
    a(f'v_cmp_ne_u32 vcc, 0, {v(vG + 21)}')
    a('s_cbranch_vccz NORARE')
    t = rt[0]
    for r, e in enumerate(rare):
        base = vB0 if r < 2 else vB1
        a(f'v_cmp_ne_u32 vcc, 0, {v(e)}')
        a(f'v_bfe_u32 {v(t + 5)}, {v(e)}, 14, 3')
        a(f'v_lshlrev_b32 {v(t + 4)}, 3, {v(t + 5)}')
        a(f'v_add_u32 {v(t + 4)}, {CNT + 4}, {v(t + 4)}')
        a(f'v_mov_b32 {v(t + 3)}, 1')
        a('s_mov_b64 exec, vcc')
        a(f'ds_add_rtn_u32 {v(t + 6)}, {v(t + 4)}, {v(t + 3)}')
        a(f'v_and_b32 {v(t)}, 0x3fff, {v(e)}')
        a(f'v_mul_u32_u24 {v(t + 5)}, {REC_W}, {v(t + 5)}')
        a(f'v_bfe_u32 {v(t + 1)}, {v(e)}, 17, 3')
        a(f'v_lshlrev_b32 {v(t + 1)}, 3, {v(t + 1)}')
        a(f'v_lshl_or_b32 {v(t)}, {v(t)}, 10, {v(t + 1)}')
        a(f'v_bfe_u32 {v(t + 1)}, {v(e)}, 20, 10')
        a(f'v_lshl_add_u32 {v(t + 1)}, {v(t + 1)}, {s(sSH)}, {v(base)}')
        a('s_waitcnt lgkmcnt(0)')
        a(f'v_min_u32 {v(t + 6)}, 127, {v(t + 6)}')
        a(f'v_lshl_add_u32 {v(t + 6)}, {v(t + 6)}, 4, {v(t + 5)}')
        a(f'v_add_u32 {v(t + 6)}, {REC + 8}, {v(t + 6)}')
        a(f'ds_write_b64 {v(t + 6)}, {v(t, 2)}')
        a('s_mov_b64 exec, -1')
    a.label('NORARE')
    a(f's_cmp_lg_u32 {s(sMODE)}, 0')
    a('s_cbranch_scc1 NOCONST')
    a('s_waitcnt vmcnt(0)')
    a(f's_lshl_b32 {s(sT0)}, {s(sW)}, 11')
    a(f'v_add_u32 {v(vG + 21)}, {s(sT0)}, {v(vL16)}')
    for q in range(2):
        for r in range(2):
            t = vG + 24 + (q * 2 + r) * 4
            for m in range(4):
                a(f'v_perm_b32 {v(t + m)}, {v(vWM + q * 8 + 2 * m + 1)}, {v(vWM + q * 8 + 2 * m)}, {s(sPERM0 + r)}')
            a(f'ds_write_b128 {v(vG + 21)}, {v(t, 4)} offset:{WMIX + q * 16384 + r * 1024}')
    a(f'v_lshl_or_b32 {v(vCG)}, {v(vG + 13)}, 16, {v(vG + 12)}')
    a(f'v_lshl_or_b32 {v(vCG + 1)}, {v(vG + 15)}, 16, {v(vG + 14)}')
    t = vG + 40
    for h in range(2):
        for k in range(4):
            if h == 0:
                a(f'v_lshlrev_b32 {v(t + k)}, 16, {v(vG + 8 + k)}')
            else:
                a(f'v_and_b32 {v(t + k)}, 0xffff0000, {v(vG + 8 + k)}')
            a(f'v_mul_f32 {v(t + k)}, 0xbfb8aa3b, {v(t + k)}')
        for m in range(2):
            a(f'v_cvt_pk_bf16_f32 {v(vWH + 2 * h + m)}, {v(t + 2 * m)}, {v(t + 2 * m + 1)}')
            a(f'v_lshlrev_b32 {v(t + 4)}, 16, {v(vWH + 2 * h + m)}')
            a(f'v_and_b32 {v(t + 5)}, 0xffff0000, {v(vWH + 2 * h + m)}')
            a(f'v_sub_f32 {v(t + 4)}, {v(t + 2 * m)}, {v(t + 4)}')
            a(f'v_sub_f32 {v(t + 5)}, {v(t + 2 * m + 1)}, {v(t + 5)}')
            a(f'v_cvt_pk_bf16_f32 {v(vWL + 2 * h + m)}, {v(t + 4)}, {v(t + 5)}')
    a.label('NOCONST')
    a('s_waitcnt lgkmcnt(0)')
    a('s_barrier')
    stamp(a, 2, 84)
    a(f'ds_read_b32 {v(vG + 21)}, {v(vG + 20)}')
    a(f'ds_read_b64 {v(vG + 24, 2)}, {v(vAR)} offset:8')
    a(f'ds_read_b64 {v(vG + 26, 2)}, {v(vAR)} offset:{1024 + 8}')
    a(f's_lshl_b32 {s(sT0)}, {s(sW)}, 1')
    a(f's_add_u32 {s(sT0)}, {s(sT0)}, 1')
    a('s_waitcnt lgkmcnt(2)')
    a(f'v_readlane_b32 {s(sCNT)}, {v(vG + 21)}, {s(sT0)}')
    a(f'v_cmp_lt_u32 vcc, 128, {v(vG + 21)}')
    a(f's_and_b32 {s(sT0)}, vcc_lo, 0x1aaaa')
    a('s_cbranch_scc1 SLOW_ENTER')
    a(f's_cmp_eq_u32 {s(sCNT)}, 0')
    a('s_cbranch_scc1 LIST_DONE')
    pay = [vG + 28, vG + 32]
    a('s_waitcnt lgkmcnt(0)')
    a(f's_cmp_lg_u32 {s(sMODE)}, 0')
    a('s_cbranch_scc1 PAY_SLOW')
    a(f'buffer_load_dwordx4 {v(pay[0], 4)}, {v(vG + 25)}, {s(sP, 4)}, 0 offen')
    a(f'buffer_load_dwordx4 {v(pay[1], 4)}, {v(vG + 27)}, {s(sP, 4)}, 0 offen')
    a.label('PAY_JOIN')
    for k in range(8):
        a(f'v_readlane_b32 {s(sWD + k)}, {v(vG + 24)}, {k}')
    for k in range(7):
        a(f's_and_b32 {s(sOFF)}, {s(sWD + k)}, 0xfffffc00')
        a(f'buffer_load_dwordx4 {v(vX + 4 * k, 4)}, {v(vL16)}, {s(sX, 4)}, {s(sOFF)} offen')
    a(f's_lshl_b32 {s(sT0)}, {s(sW)}, 12')
    a(f's_add_u32 {s(sT0)}, {s(sT0)}, {TT}')
    a(f'v_lshl_add_u32 {v(vG + 22)}, {v(vLN)}, 5, {s(sT0)}')
    a(f'v_lshl_add_u32 {v(vAT)}, {v(vLN)}, 3, {s(sT0)}')
    for st in range(2):
        a(f's_waitcnt vmcnt({8 - st})')
        d = vG + 36
        for o in range(4):
            a(f'v_mfma_f32_4x4x4_16b_bf16 {v(d + 4 * o, 4)}, {v(vCG, 2)}, {v(pay[st], 2)}, 0 cbsz:4 abid:{o}')
        a(f'ds_write_b64 {v(vAR)}, {v(pay[st] + 2, 2)} offset:{st * 1024}')
        c = vG + 52
        for o in range(4):
            for m in range(2):
                a(f'v_cvt_pk_bf16_f32 {v(c + 2 * o + m)}, {v(d + 4 * o + 2 * m)}, {v(d + 4 * o + 2 * m + 1)}')
        a(f'ds_write_b128 {v(vG + 22)}, {v(c, 4)} offset:{st * 2048}')
        a(f'ds_write_b128 {v(vG + 22)}, {v(c + 4, 4)} offset:{st * 2048 + 16}')

    def zmfma(buf, j, rec):
        h = j & 1
        d = vZ + 8 * buf + 4 * h
        if j < 2:
            a(f'v_mfma_f32_4x4x4_16b_bf16 {v(d, 4)}, {v(rec, 2)}, {v(vWH + 2 * h, 2)}, 0 cbsz:4 abid:0')
        else:
            a(f'v_mfma_f32_4x4x4_16b_bf16 {v(d, 4)}, {v(rec, 2)}, {v(vWL + 2 * h, 2)}, {v(d, 4)} cbsz:4 abid:0')

    def pair(base, buf, p):
        return base + 8 * buf + 4 * (p & 1) + 2 * (p >> 1)

    a(f'ds_read_b128 {v(vRA, 4)}, {v(vAR)}')
    a(f'ds_read_b128 {v(vRB, 4)}, {v(vAR)} offset:64')
    a(f'ds_read_b64 {v(vTA, 2)}, {v(vAT)}')
    a('s_waitcnt lgkmcnt(1)')
    for j in range(4):
        zmfma(0, j, vRA)
        zmfma(1, j, vRB)
    a(f'ds_read_b128 {v(vRA, 4)}, {v(vAR)} offset:128')
    for p in range(4):
        e = vE + 2 * (p & 1)
        z = pair(vZ, 0, p)
        a(f'v_exp_f32 {v(e)}, {v(z)}')
        a(f'v_exp_f32 {v(e + 1)}, {v(z + 1)}')
        a(f'v_pk_add_f32 {v(e, 2)}, {v(e, 2)}, {v(vONE, 2)}')
        if p < 3:
            a(f'v_rcp_f32 {v(e)}, {v(e)}')
            a(f'v_rcp_f32 {v(e + 1)}, {v(e + 1)}')
            a(f'v_pk_mul_f32 {v(pair(vR, 0, p), 2)}, {v(e, 2)}, {v(z, 2)}')
    a(f's_add_u32 {s(sCNT)}, {s(sCNT)}, 7')
    a(f's_lshr_b32 {s(sCNT)}, {s(sCNT)}, 3')

    stamp(a, 3, 84)
    a.label('LOOP')
    for g in range(2):
        T, Rc = (vTA, vRA) if g == 0 else (vTB, vRB)
        To, Ro = (vTB, vRB) if g == 0 else (vTA, vRA)
        a('s_waitcnt lgkmcnt(0)')
        a(f'ds_read_b64 {v(To, 2)}, {v(vAT)} offset:{(g + 1) * 128}')
        a(f'ds_read_b128 {v(Ro, 4)}, {v(vAR)} offset:{(g + 3) * 64}')
        for j in range(4):
            k = 4 * g + j
            kp = (k + 7) % 8
            en = vE + 2 * (j & 1)
            eo = vE + 2 * ((j + 1) & 1)
            zn = pair(vZ, (g + 1) & 1, j)
            if j == 0:
                zo, ro = pair(vZ, g, 3), pair(vR, g, 3)
            else:
                zo, ro = pair(vZ, (g + 1) & 1, j - 1), pair(vR, (g + 1) & 1, j - 1)
            a('s_waitcnt vmcnt(6)')
            a(f'v_mfma_f32_4x4x4_16b_bf16 {v(vTP, 4)}, {v(T, 2)}, {v(vX + 4 * k, 2)}, 0 cbsz:4 abid:{j}')
            a(f's_and_b32 {s(sOFF)}, {s(sWD + kp)}, 0xfffffc00')
            a(f'buffer_load_dwordx4 {v(vX + 4 * kp, 4)}, {v(vL16)}, {s(sX, 4)}, {s(sOFF)} offen')
            a(f'v_exp_f32 {v(en)}, {v(zn)}')
            a(f'v_mfma_f32_4x4x4_16b_bf16 {v(vTP + 4, 4)}, {v(T, 2)}, {v(vX + 4 * k + 2, 2)}, 0 cbsz:4 abid:{j}')
            a(f'v_exp_f32 {v(en + 1)}, {v(zn + 1)}')
            zmfma(g, j, Rc)
            a(f'v_rcp_f32 {v(eo)}, {v(eo)}')
            a(f'v_rcp_f32 {v(eo + 1)}, {v(eo + 1)}')
            a(f'v_pk_add_f32 {v(en, 2)}, {v(en, 2)}, {v(vONE, 2)}')
            a(f'v_pk_mul_f32 {v(ro, 2)}, {v(eo, 2)}, {v(zo, 2)}')
            a(f's_set_gpr_idx_on {s(sWD + k)}, gpr_idx(SRC2,DST)')
            a.idx_range = (vACC, vACC + 40)
            sel = j & 1
            for h in range(2):
                rp = vR + 8 * g + 4 * h + 2 * (j >> 1)
                for m in range(2):
                    d = vACC + 4 * h + 2 * m
                    a(f'v_pk_fma_f32 {v(d, 2)}, {v(rp, 2)}, {v(vTP + 4 * h + 2 * m, 2)}, {v(d, 2)} op_sel:[{sel},0,0] op_sel_hi:[{sel},1,1]')
            a.idx_range = None
            a('s_set_gpr_idx_off')
            a(f'v_readlane_b32 {s(sWD + k)}, {v(Rc + 2)}, {j}')
    a(f'v_add_u32 {v(vAT)}, 256, {v(vAT)}')
    a(f'v_add_u32 {v(vAR)}, 128, {v(vAR)}')
    a(f's_sub_u32 {s(sCNT)}, {s(sCNT)}, 1')
    a(f's_cmp_lg_u32 {s(sCNT)}, 0')
    a('s_cbranch_scc1 LOOP')
    a.label('LIST_DONE')
    a('s_waitcnt vmcnt(0) lgkmcnt(0)')
    a(f's_cmp_lg_u32 {s(sMODE)}, 0')
    a('s_cbranch_scc1 SLOW_NEXT')

    a.label('MIX')
    stamp(a, 4, 84)
    vA = 44
    vBb = 76
    vD = 108
    vS = 172
    vAd = 200
    a(f's_mul_i32 {s(sT0)}, {s(sW)}, {AGG_W}')
    a(f's_add_u32 {s(sT0)}, {s(sT0)}, {AGG}')
    a(f'v_lshl_add_u32 {v(vAd)}, {v(vLN)}, 2, {s(sT0)}')
    a(f'v_and_b32 {v(vAd + 1)}, 31, {v(vLN)}')
    a(f'v_lshrrev_b32 {v(vAd + 2)}, 5, {v(vLN)}')
    a(f'v_mul_u32_u24 {v(vAd + 3)}, {AGG_ROW}, {v(vAd + 1)}')
    a(f'v_lshl_add_u32 {v(vAd + 3)}, {v(vAd + 2)}, 4, {v(vAd + 3)}')
    a(f'v_add_u32 {v(vAd + 3)}, {s(sT0)}, {v(vAd + 3)}')
    a(f'v_mov_b32 {v(vAd + 4)}, 0xbf317218')
    a(f'v_mov_b32 {v(vAd + 5)}, 0xbf317218')
    for i in range(8):
        a(f'ds_read_b128 {v(vBb + 4 * i, 4)}, {v(vL16)} offset:{WMIX + i * 1024}')
    for sl in range(5):
        for m in range(4):
            d = vACC + 8 * sl + 2 * m
            a(f'v_pk_mul_f32 {v(d, 2)}, {v(d, 2)}, {v(vAd + 4, 2)}')
        for o in range(4):
            a(f'v_cvt_pk_bf16_f32 {v(vS + 4 * sl + o)}, {v(vACC + 8 * sl + o)}, {v(vACC + 8 * sl + 4 + o)}')
            a(f'ds_write_b32 {v(vAd)}, {v(vS + 4 * sl + o)} offset:{(4 * sl + o) * AGG_ROW}')
        if sl == 1:
            a('s_waitcnt lgkmcnt(4)')
        if sl == 3:
            a('s_waitcnt lgkmcnt(4)')
    a('s_waitcnt lgkmcnt(0)')
    for kk in range(8):
        a(f'ds_read_b128 {v(vA + 4 * kk, 4)}, {v(vAd + 3)} offset:{kk * 32}')
    a(f'v_lshlrev_b32 {v(vAd + 2)}, 21, {v(vAd + 2)}')
    a(f'v_lshl_add_u32 {v(vAd + 2)}, {v(vAd + 1)}, 4, {v(vAd + 2)}')
    a(f's_lshl_b32 {s(sT0)}, {s(sW)}, 18')
    a(f's_lshl_b32 {s(sT1)}, {s(sBK)}, 10')
    a(f's_add_u32 {s(sT0)}, {s(sT0)}, {s(sT1)}')
    a(f'v_add_u32 {v(vAd + 2)}, {s(sT0)}, {v(vAd + 2)}')
    a(f's_mov_b32 {s(sWD)}, 0')
    a(f's_mov_b32 {s(sWD + 1)}, {1 << 22}')
    a(f's_mov_b32 {s(sWD + 2)}, {2 << 22}')
    a('s_waitcnt lgkmcnt(0)')

    def outq(q, rr):
        st = vS + 12 * q + 4 * rr
        for r in range(2):
            d = vD + 32 * q + 16 * r + 4 * rr
            a(f'v_cvt_pk_bf16_f32 {v(st + 2 * r)}, {v(d)}, {v(d + 1)}')
            a(f'v_cvt_pk_bf16_f32 {v(st + 2 * r + 1)}, {v(d + 2)}, {v(d + 3)}')
        a(f'buffer_store_dwordx4 {v(st, 4)}, {v(vAd + 2)}, {s(sO, 4)}, {s(sWD + rr)} offen offset:{q * 512}')

    for i in range(32):
        q, kk, r = i >> 4, (i >> 1) & 7, i & 1
        d = vD + 32 * q + 16 * r
        b = vBb + 4 * (i & 7)
        if i >= 8:
            a(f's_waitcnt lgkmcnt({min(7, 31 - i)})')
        a(f'v_mfma_f32_32x32x16_bf16 {v(d, 16)}, {v(vA + 4 * kk, 4)}, {v(b, 4)}, {"0" if kk == 0 else v(d, 16)}')
        if i + 8 < 32:
            a(f'ds_read_b128 {v(b, 4)}, {v(vL16)} offset:{WMIX + (i + 8) * 1024}')
        if i in (20, 22, 24):
            outq(0, (i - 20) // 2)
    for rr in range(3):
        outq(1, rr)
    if OPT['stamps']:
        a('s_waitcnt vmcnt(0)')
        stamp(a, 5, 84)
        emit_stamps(a, [(i, i) for i in range(6)], 84, pWS, 1, 4)
    a.label('K2_END')
    a('s_endpgm')

    a.label('PAY_SLOW')
    for st in range(2):
        a(f'buffer_load_dwordx2 {v(pay[st], 2)}, {v(vG + 25 + 2 * st)}, {s(sP, 4)}, 0 offen')
        a(f'buffer_load_dwordx2 {v(pay[st] + 2, 2)}, {v(vG + 25 + 2 * st)}, {s(sE, 4)}, 0 offen')
    a('s_waitcnt vmcnt(0)')
    a('s_branch PAY_JOIN')
    a.label('SLOW_ENTER')
    a(f's_mov_b32 {s(sMODE)}, 1')
    a(f's_mov_b32 {s(sSH)}, 3')
    srd(a, sP, pY, E * 8)
    a('s_branch SLOW_LOAD')
    a.label('SLOW_NEXT')
    a(f's_add_u32 {s(sBASE)}, {s(sBASE)}, 128')
    a(f's_cmp_ge_u32 {s(sBASE)}, {E}')
    a('s_cbranch_scc1 MIX')
    a.label('SLOW_LOAD')
    a('s_waitcnt lgkmcnt(0)')
    a('s_barrier')
    a(f'v_and_b32 {v(vG + 24)}, 127, v0')
    a(f'v_add_lshl_u32 {v(vG + 25)}, {v(vG + 24)}, {s(sBASE)}, 2')
    a(f'global_load_dword {v(vG + 26)}, {v(vG + 25)}, {s(pDST, 2)}')
    a(f'global_load_dword {v(vG + 27)}, {v(vG + 25)}, {s(pSRC, 2)}')
    for r in range(1, 8):
        a(f'v_mov_b32 {v(vC + r)}, 0')
    a(f's_lshl_b32 {s(sT0)}, {s(sBASE)}, 3')
    a(f'v_mov_b32 {v(vB0)}, {s(sT0)}')
    a(f'v_lshrrev_b32 {v(vG + 28)}, 7, v0')
    a('s_waitcnt vmcnt(0)')
    a(f'v_and_b32 {v(vG + 25)}, 255, {v(vG + 26)}')
    a(f'v_lshl_or_b32 {v(vG + 25)}, {v(vG + 28)}, 8, {v(vG + 25)}')
    a(f'v_cmp_eq_u32 vcc, {s(sBK)}, {v(vG + 25)}')
    a(f'v_lshrrev_b32 {v(vG + 26)}, 8, {v(vG + 26)}')
    a(f'v_lshl_or_b32 {v(vG + 26)}, {v(vG + 26)}, 14, {v(vG + 27)}')
    a(f'v_lshl_or_b32 {v(vG + 26)}, {v(vG + 24)}, 20, {v(vG + 26)}')
    a(f'v_or_b32 {v(vG + 26)}, 0x40000000, {v(vG + 26)}')
    a(f'v_cndmask_b32 {v(vC)}, 0, {v(vG + 26)}, vcc')
    a('s_branch BATCH')
    return a, LDS


def main():
    a1, lds1 = k1()
    a2, lds2 = k2()
    n1 = a1.fix_hazards(True)
    n2 = a2.fix_hazards(True)
    ref = open('cdna_kernels/' + NAME + '.s.ref').read().split('\n')
    head = [l for l in ref if l.startswith(';') and '@launch' not in l and 'Override' not in l and 'grid=ceil' not in l]
    out = '\n'.join(head) + '\n'
    for i in range(OPT['extra_empty']):
        out += '; @launch kernel=empty_kernel grid=(256,1,1) block=(64,1,1) lds=0\n'
    out += f'; @launch kernel=sort_kernel grid=(256,1,1) block=(640,1,1) lds={lds1}\n'
    out += f'; @launch kernel={NAME}_kernel grid=(256,1,1) block=(512,1,1) lds={lds2}\n'
    if OPT['probe'] >= 0:
        out += '; @launch kernel=probe_kernel grid=(1,1,1) block=(64,1,1) lds=0\n'
    out += '.amdgcn_target "amdgcn-amd-amdhsa--gfx950"\n.text\n'
    out += kernel_text('sort_kernel', a1)
    out += kernel_text(NAME + '_kernel', a2)
    if OPT['extra_empty']:
        e = Asm()
        e('s_endpgm')
        out += kernel_text('empty_kernel', e)
    if OPT['probe'] >= 0:
        p = OPT['probe']
        pk = probe(p // 10000, p // 1000 % 10, p // 100 % 10, p // 10 % 10, p % 10)
        pk.fix_hazards()
        out += kernel_text('probe_kernel', pk)
    out += '.section .rodata,"a"\n'
    if OPT['probe'] >= 0:
        out += descriptor('probe_kernel', 32, 16)
    out += descriptor('sort_kernel', *a1.max_regs())
    out += descriptor(NAME + '_kernel', *a2.max_regs())
    if OPT['extra_empty']:
        out += descriptor('empty_kernel', 4, 8)
    open(sys.argv[1], 'w').write(out)
    print('regs', a1.max_regs(), a2.max_regs(), 'lds', lds1, lds2, 'nops', n1, n2)


main()
```

```python
import sys
from asmlib import *

NAME = 'gather_scatter__tensor_product_equiv_tfn__graph'
N, E = 10000, 160000
NULLW = 0x7FFF0000
OPT = dict(stamps=0, probe=-1, snake=0, dev=1, pf=0, pfstep=3, wsoff=0, outpol=1, spin=16)
for a_ in sys.argv[2:]:
    k_, x_ = a_.split('=')
    OPT[k_] = int(x_)

PSTR = 16384 + 256
CELL_OFF = 4096
PAY_OFF = 5 << 20
FLAG_OFF = 10 << 20
WS_SPAN = 11 << 20
STAMP_OFF = 16 << 20


def srd(a, d, b, nbytes):
    a(f's_mov_b32 {s(d)}, {s(b)}')
    a(f's_mov_b32 {s(d + 1)}, {s(b + 1)}')
    a(f's_mov_b32 {s(d + 2)}, {nbytes}')
    a(f's_mov_b32 {s(d + 3)}, 0x20000')


def stamp(a, i, base):
    if OPT['stamps']:
        a(f's_memrealtime {s(base, 2)}')
        a('s_waitcnt lgkmcnt(0)')
        a(f'v_writelane_b32 v255, {s(base)}, {i}')


def emit_stamps(a, base, ptr, vt):
    if not OPT['stamps']:
        return
    a('s_mov_b64 exec, -1')
    a(f'v_and_b32 {v(vt + 1)}, 63, v0')
    a(f'v_lshrrev_b32 {v(vt + 2)}, 6, v0')
    a(f'v_lshlrev_b32 {v(vt + 2)}, 6, {v(vt + 2)}')
    a(f'v_lshl_add_u32 {v(vt + 1)}, {v(vt + 1)}, 2, {v(vt + 2)}')
    a(f's_lshl_b32 {s(base)}, s2, 9')
    a(f's_add_u32 {s(base)}, {s(base)}, {STAMP_OFF}')
    a(f'v_add_u32 {v(vt + 1)}, {s(base)}, {v(vt + 1)}')
    a('s_mov_b64 exec, 0xffff')
    a(f'global_store_dword {v(vt + 1)}, v255, {s(ptr, 2)}')


def probe(ia, ib, usemin):
    a = Asm()
    a('s_cmp_ge_u32 s2, 1')
    a('s_cbranch_scc1 P_END')
    a('s_load_dwordx2 s[4:5], s[0:1], 80')
    a('v_lshlrev_b32 v1, 9, v0')
    a(f'v_add_u32 v2, {STAMP_OFF + ia * 4}, v1')
    a(f'v_add_u32 v3, {STAMP_OFF + ib * 4}, v1')
    a('s_waitcnt lgkmcnt(0)')
    a('s_memrealtime s[8:9]')
    a('v_mov_b32 v4, 0')
    a(f'v_mov_b32 v5, {0 if usemin else -1}')
    a('s_waitcnt lgkmcnt(0)')
    for q in range(4):
        for w in range(8):
            a(f'global_load_dword v{10 + w}, v2, s[4:5] offset:{w * 64}')
            a(f'global_load_dword v{20 + w}, v3, s[4:5] offset:{w * 64}')
        a('s_waitcnt vmcnt(0)')
        for w in range(8):
            a(f'v_sub_u32 v{10 + w}, s8, v{10 + w}')
            a(f'v_sub_u32 v{20 + w}, s8, v{20 + w}')
            a(f'v_max_u32 v4, v4, v{10 + w}')
            a(f'v_{"max" if usemin else "min"}_u32 v5, v5, v{20 + w}')
        a('v_add_u32 v2, 32768, v2')
        a('v_add_u32 v3, 32768, v3')
    a('s_mov_b32 s10, 0')
    a(f's_mov_b32 s11, {0 if usemin else -1}')
    for l in range(64):
        a(f'v_readlane_b32 s12, v4, {l}')
        a(f'v_readlane_b32 s13, v5, {l}')
        a('s_max_u32 s10, s10, s12')
        a(f's_{"max" if usemin else "min"}_u32 s11, s11, s13')
    a('s_sub_u32 s10, s10, s11')
    a('s_min_u32 s10, s10, 10000')
    a('s_mul_i32 s10, s10, 20')
    a('s_memrealtime s[8:9]')
    a('s_waitcnt lgkmcnt(0)')
    a.label('P_SPIN')
    a('s_memrealtime s[12:13]')
    a('s_waitcnt lgkmcnt(0)')
    a('s_sub_u32 s12, s12, s8')
    a('s_cmp_lt_u32 s12, s10')
    a('s_cbranch_scc1 P_SPIN')
    a.label('P_END')
    a('s_endpgm')
    return a


def kernel():
    a = Asm()
    SM = 0
    NCNT = SM
    TOT = SM + 512
    FLAG = TOT + 64
    TAB = SM + 768
    NODE = SM + 1280
    PCNT = SM + 1536
    GCNT = PCNT + 1024
    CELL = 4096
    PST = CELL + 16384
    AGG, AGG_W, AGG_ROW = 4096, 20 * 272, 272
    WMIX = AGG + 8 * AGG_W + 3328
    REC, REC_W = WMIX + 32768, 192 * 16
    TT = REC + 8 * REC_W
    LDS = TT + 8 * 4096 + 1024
    sX, sWS, sO, sY, sE, sD, sS = 4, 8, 12, 16, 20, 24, 28
    sPTR = 32
    pX, pSRC, pDST, pY, pEF, pWR, pCG, pWM, pOUT, pDBG, pWS = [sPTR + 2 * i for i in range(11)]
    sBK, sW, sMODE, sBASE, sSH, sCNT, sT0, sT1, sOFF, sEP, sTAGC, sMUL, sSPIN, sG = range(54, 68)
    sWD = 68
    sV = 76
    sPERM0, sPERM1 = 84, 85
    sM = 86
    sL3 = 88
    sST = 90
    vLN, vL16, vT16 = 1, 2, 3
    vACC = 4
    vX = 44
    vTP = 76
    vZ = 84
    vR = 100
    vE = 116
    vTA, vTB = 120, 122
    vRA, vRB = 124, 128
    vWH, vWL = 132, 136
    vCG = 140
    vAT, vAR = 142, 143
    vONE = 144
    vCA, vFA = 146, 147
    vC = 148
    vB0, vB1, vFL, vSMA = 156, 157, 158, 159
    vG = 160
    vWM = 224
    vIN = vX
    vP = vTP

    a('s_cmp_ge_u32 s2, 256')
    a('s_cbranch_scc1 K_END')
    stamp(a, 0, sST)
    a(f's_load_dwordx16 {s(sPTR, 16)}, s[0:1], 0')
    a(f's_load_dwordx4 {s(pOUT, 4)}, s[0:1], 64')
    a(f's_load_dwordx2 {s(pWS, 2)}, s[0:1], 80')
    a(f'v_lshrrev_b32 {v(vG)}, 6, v0')
    a(f'v_and_b32 {v(vLN)}, 63, v0')
    a(f'v_readfirstlane_b32 {s(sW)}, {v(vG)}')
    a(f'v_lshlrev_b32 {v(vT16)}, 4, v0')
    a(f'v_mov_b32 {v(vG + 1)}, 0x8000000')
    a(f'v_cmp_gt_u32 vcc, 313, v0')
    a(f's_mul_i32 {s(sT0)}, s2, 2500')
    a(f's_mul_i32 {s(sT1)}, s2, 5000')
    a(f'v_cndmask_b32 {v(vG + 1)}, {v(vG + 1)}, {v(vT16)}, vcc')
    a(f'v_lshrrev_b32 {v(vG + 2)}, 1, {v(vG + 1)}')
    a(f's_mov_b64 {s(sV, 2)}, vcc')
    for d in (sD, sS):
        a(f's_mov_b32 {s(d + 2)}, {E * 4}')
        a(f's_mov_b32 {s(d + 3)}, 0x20000')
    for d in (sY, sE):
        a(f's_mov_b32 {s(d + 2)}, {E * 8}')
        a(f's_mov_b32 {s(d + 3)}, 0x20000')
    a('s_waitcnt lgkmcnt(0)')
    a(f's_mov_b64 {s(sD, 2)}, {s(pDST, 2)}')
    a(f's_mov_b64 {s(sS, 2)}, {s(pSRC, 2)}')
    a(f'buffer_load_dwordx2 {v(vIN, 2)}, {v(vG + 2)}, {s(sD, 4)}, {s(sT0)} offen')
    a(f'buffer_load_dwordx2 {v(vIN + 2, 2)}, {v(vG + 2)}, {s(sS, 4)}, {s(sT0)} offen')
    a(f's_mov_b64 {s(sY, 2)}, {s(pY, 2)}')
    a(f's_mov_b64 {s(sE, 2)}, {s(pEF, 2)}')
    a(f'buffer_load_dwordx4 {v(vIN + 4, 4)}, {v(vG + 1)}, {s(sY, 4)}, {s(sT1)} offen')
    a(f'buffer_load_dwordx4 {v(vIN + 8, 4)}, {v(vG + 1)}, {s(sE, 4)}, {s(sT1)} offen')
    a(f's_add_u32 {s(sWS)}, {s(pWS)}, {OPT["wsoff"] << 20}')
    a(f's_addc_u32 {s(sWS + 1)}, {s(pWS + 1)}, 0')
    a(f's_mov_b32 {s(sWS + 2)}, {WS_SPAN}')
    a(f's_mov_b32 {s(sWS + 3)}, 0x20000')
    a(f's_load_dword {s(sEP)}, {s(sWS, 2)}, 0')
    for r in range(4):
        a(f'v_mov_b32 {v(vG + 16 + r)}, 0')
    a(f'ds_write_b128 {v(vT16)}, {v(vG + 16, 4)} offset:{CELL}')
    a(f'ds_write_b128 {v(vT16)}, {v(vG + 16, 4)} offset:{CELL + 8192}')
    a(f'v_lshlrev_b32 {v(vG + 3)}, 3, v0')
    a(f'ds_write_b64 {v(vG + 3)}, {v(vG + 16, 2)}')
    a(f'v_lshlrev_b32 {v(vL16)}, 4, {v(vLN)}')
    a(f'v_lshlrev_b32 {v(vG + 2)}, 2, {v(vLN)}')
    for k in range(4):
        a(f'global_load_dword {v(vG + 8 + k)}, {v(vG + 2)}, {s(pWR, 2)} offset:{k * 256}')
    a(f'v_and_b32 {v(vG + 6)}, 3, v0')
    a(f'v_lshlrev_b32 {v(vG + 3)}, 5, {v(vG + 6)}')
    a(f'v_bfe_u32 {v(vG + 4)}, v0, 2, 2')
    a(f'v_lshl_add_u32 {v(vG + 3)}, {v(vG + 4)}, 1, {v(vG + 3)}')
    for f in range(4):
        a(f'global_load_ushort {v(vG + 12 + f)}, {v(vG + 3)}, {s(pCG, 2)} offset:{f * 8}')
    a(f'v_lshrrev_b32 {v(vG + 4)}, 5, v0')
    a(f'v_and_b32 {v(vG + 5)}, 31, v0')
    a(f'v_lshlrev_b32 {v(vG + 5)}, 2, {v(vG + 5)}')
    a(f'v_lshl_add_u32 {v(vG + 5)}, {v(vG + 4)}, 11, {v(vG + 5)}')
    for q in range(2):
        for i in range(8):
            a(f'global_load_dword {v(vWM + q * 8 + i)}, {v(vG + 5)}, {s(pWM, 2)} offset:{i * 256 + q * 128}')
    NC = 24
    srd(a, sX, pX, N * 1024)
    if OPT['pf']:
        a(f's_lshr_b32 {s(sT0)}, s2, 3')
        a(f's_mul_i32 {s(sT0)}, {s(sT0)}, {OPT["pf"] * 8}')
        a(f'v_lshrrev_b32 {v(vG + 4)}, 3, v0')
        a(f'v_cmp_gt_u32 vcc, {OPT["pf"] * 8}, {v(vG + 4)}')
        a(f'v_add_u32 {v(vG + 4)}, {s(sT0)}, {v(vG + 4)}')
        a(f'v_mul_u32_u24 {v(vG + 4)}, {OPT["pfstep"]}, {v(vG + 4)}')
        a(f'v_lshrrev_b32 {v(vG + 4)}, 1, {v(vG + 4)}')
        a(f'v_and_b32 {v(vG + 5)}, 7, v0')
        a(f'v_lshlrev_b32 {v(vG + 5)}, 7, {v(vG + 5)}')
        a(f'v_lshl_add_u32 {v(vG + 4)}, {v(vG + 4)}, 10, {v(vG + 5)}')
        a(f'v_mov_b32 {v(vG + 5)}, {NULLW}')
        a(f'v_cndmask_b32 {v(vG + 4)}, {v(vG + 5)}, {v(vG + 4)}, vcc')
        a(f'buffer_load_dword {v(vG + 7)}, {v(vG + 4)}, {s(sX, 4)}, 0 offen')
        NC += 1
    a(f'v_cmp_eq_u32 {s(sL3, 2)}, 3, {v(vG + 6)}')
    a(f'v_cmp_gt_u32 vcc, 312, v0')
    a(f's_and_b32 {s(sG)}, s2, 7')
    a(f's_lshl_b32 {s(sT0)}, {s(sG)}, 5')
    a(f's_lshr_b32 {s(sBK)}, s2, 3')
    a(f's_add_u32 {s(sBK)}, {s(sBK)}, {s(sT0)}')
    a(f's_mov_b64 {s(sV + 2, 2)}, vcc')
    a(f'v_mov_b32 {v(vP)}, 1')
    a('s_waitcnt lgkmcnt(0)')
    a('s_barrier')
    a(f's_waitcnt vmcnt({NC + 3})')
    stamp(a, 1, sST)
    for i in range(2):
        t = vP + 2 + 8 * i
        a(f'v_and_b32 {v(t)}, 255, {v(vIN + i)}')
        a(f'v_lshlrev_b32 {v(t + 1)}, 2, {v(t)}')
        a(f'v_bfe_u32 {v(t + 2)}, {v(vIN + i)}, 5, 3')
        a(f'v_lshlrev_b32 {v(t + 3)}, 2, {v(t + 2)}')
        a(f's_mov_b64 exec, {s(sV + 2 * i, 2)}')
        a(f'ds_add_rtn_u32 {v(t + 4)}, {v(t + 1)}, {v(vP)} offset:{PCNT}')
        a(f'ds_add_rtn_u32 {v(t + 5)}, {v(t + 3)}, {v(vP)} offset:{GCNT}')
        a('s_mov_b64 exec, -1')
    a(f's_add_u32 {s(sEP)}, {s(sEP)}, 1')
    a(f's_lshl_b32 {s(sTAGC)}, {s(sEP)}, 1')
    a(f's_add_u32 {s(sTAGC)}, {s(sTAGC)}, 1')
    a(f'v_mov_b32 {v(vP + 1)}, 0x80000000')
    a(f's_waitcnt vmcnt({NC + 2})')
    for i in range(2):
        t = vP + 2 + 8 * i
        a(f'v_lshrrev_b32 {v(t + 6)}, 8, {v(vIN + i)}')
        a(f'v_lshl_or_b32 {v(t + 6)}, {v(t + 6)}, 14, {v(vIN + 2 + i)}')
        a(f'v_or_b32 {v(t + 6)}, 0x40000000, {v(t + 6)}')
    a('s_waitcnt lgkmcnt(0)')
    for i in range(2):
        t = vP + 2 + 8 * i
        a(f'v_cmp_gt_u32 vcc, 15, {v(t + 4)}')
        a(f'v_lshrrev_b32 {v(t + 7)}, 7, {v(t + 5)}')
        a(f'v_cmp_eq_u32 {s(sM, 2)}, 0, {v(t + 7)}')
        a(f'v_and_b32 {v(t + 5)}, 127, {v(t + 5)}')
        a(f'v_lshl_or_b32 {v(t + 6)}, {v(t + 5)}, 20, {v(t + 6)}')
        a(f'v_and_b32 {v(t + 1)}, 3, {v(t + 4)}')
        a(f'v_lshlrev_b32 {v(t + 1)}, 4, {v(t + 1)}')
        a(f'v_and_b32 {v(t + 4)}, 12, {v(t + 4)}')
        a(f's_and_b64 vcc, vcc, {s(sM, 2)}')
        a(f'v_add_u32 {v(t + 1)}, {v(t + 1)}, {v(t + 4)}')
        a(f'v_cndmask_b32 {v(t + 6)}, {v(vP + 1)}, {v(t + 6)}, vcc')
        a(f'v_cndmask_b32 {v(t + 1)}, 0, {v(t + 1)}, vcc')
        a(f'v_lshl_add_u32 {v(t + 1)}, {v(t)}, 6, {v(t + 1)}')
        a(f's_mov_b64 exec, {s(sV + 2 * i, 2)}')
        a(f'ds_or_b32 {v(t + 1)}, {v(t + 6)} offset:{CELL}')
        a('s_mov_b64 exec, -1')
        a(f's_and_b64 {s(sV + 2 * i, 2)}, {s(sV + 2 * i, 2)}, {s(sM, 2)}')
        a(f'v_lshl_or_b32 {v(t + 5)}, {v(t + 2)}, 7, {v(t + 5)}')
        a(f'v_lshlrev_b32 {v(t + 5)}, 4, {v(t + 5)}')
    a(f's_lshl_b32 {s(sT0)}, {s(sW)}, 11')
    a(f'v_add_u32 {v(vG + 20)}, {s(sT0)}, {v(vL16)}')
    a(f's_mul_i32 {s(sT1)}, s2, {PSTR}')
    a(f's_add_u32 {s(sOFF)}, {s(sT1)}, {CELL_OFF}')
    a('s_waitcnt lgkmcnt(0)')
    a('s_barrier')
    c0 = vG + 24
    for i in range(2):
        a(f'ds_read_b128 {v(c0 + 4 * i, 4)}, {v(vG + 20)} offset:{CELL + 1024 * i}')
    a(f's_lshl_b32 {s(sT0)}, {s(sW)}, 2')
    a(f'v_mov_b32 {v(vG + 21)}, {s(sT0)}')
    a(f'ds_read_b32 {v(vG + 21)}, {v(vG + 21)} offset:{GCNT}')

    def quadsum(d, c):
        a(f'v_add3_u32 {v(d)}, {v(c)}, {v(c + 1)}, {v(c + 2)}')
        a(f'v_add_u32 {v(d)}, {v(d)}, {v(c + 3)}')

    def quadred(d):
        a(f'v_add_u32_dpp {v(d)}, {v(d)}, {v(d)} quad_perm:[1,0,3,2] row_mask:0xf bank_mask:0xf')

    def quadred2(d):
        a(f'v_add_u32_dpp {v(d)}, {v(d)}, {v(d)} quad_perm:[2,3,0,1] row_mask:0xf bank_mask:0xf')

    a('s_waitcnt lgkmcnt(1)')
    quadsum(vG + 22, c0)
    quadsum(vG + 23, c0 + 4)
    quadred(vG + 22)
    quadred(vG + 23)
    quadred2(vG + 22)
    quadred2(vG + 23)
    for i in range(2):
        a(f'v_sub_u32 {v(vG + 22 + i)}, {s(sTAGC)}, {v(vG + 22 + i)}')
        a(f'v_cndmask_b32 {v(c0 + 4 * i + 3)}, {v(c0 + 4 * i + 3)}, {v(vG + 22 + i)}, {s(sL3, 2)}')
        a(f'buffer_store_dwordx4 {v(c0 + 4 * i, 4)}, {v(vG + 20)}, {s(sWS, 4)}, {s(sOFF)} offen offset:{1024 * i} sc1')
    stamp(a, 2, sST)
    a(f's_waitcnt vmcnt({NC + 2})')
    a(f'v_mov_b32 {v(vG + 32)}, {v(vIN + 6)}')
    a(f'v_mov_b32 {v(vG + 33)}, {v(vIN + 7)}')
    a(f'v_mov_b32 {v(vIN + 6)}, {v(vIN + 8)}')
    a(f'v_mov_b32 {v(vIN + 7)}, {v(vIN + 9)}')
    a(f'v_mov_b32 {v(vIN + 8)}, {v(vG + 32)}')
    a(f'v_mov_b32 {v(vIN + 9)}, {v(vG + 33)}')
    for i in range(2):
        a(f's_mov_b64 exec, {s(sV + 2 * i, 2)}')
        a(f'ds_write_b128 {v(vP + 2 + 8 * i + 5)}, {v(vIN + 4 + 4 * i, 4)} offset:{PST}')
    a('s_mov_b64 exec, -1')
    a(f's_add_u32 {s(sOFF)}, {s(sT1)}, {PAY_OFF}')
    a(f'v_and_b32 {v(vG + 22)}, 56, {v(vLN)}')
    a(f'v_add_u32 {v(vG + 23)}, 64, {v(vG + 22)}')
    a(f'v_mov_b32 {v(vG + 32)}, {NULLW}')
    a('s_waitcnt lgkmcnt(0)')
    a('s_barrier')
    p0 = vG + 36
    for i in range(2):
        a(f'ds_read_b128 {v(p0 + 4 * i, 4)}, {v(vG + 20)} offset:{PST + 1024 * i}')
    for i in range(2):
        a(f'v_cmp_lt_u32 vcc, {v(vG + 22 + i)}, {v(vG + 21)}')
        a(f'v_cndmask_b32 {v(vG + 22 + i)}, {v(vG + 32)}, {v(vG + 20)}, vcc')
    for i in range(2):
        a(f's_waitcnt lgkmcnt({1 - i})')
        a(f'buffer_store_dwordx4 {v(p0 + 4 * i, 4)}, {v(vG + 22 + i)}, {s(sWS, 4)}, {s(sOFF)} offen offset:{1024 * i} sc1')
    srd(a, sO, pOUT, N * 1024)
    a(f's_mov_b32 {s(sMODE)}, 0')
    a(f's_mov_b32 {s(sBASE)}, 0')
    a(f's_mov_b32 {s(sSH)}, 4')
    a(f's_mov_b32 {s(sMUL)}, 64')
    a(f's_mov_b32 {s(sPERM0)}, 0x05040100')
    a(f's_mov_b32 {s(sPERM1)}, 0x07060302')
    a(f's_cmp_eq_u32 s2, 0')
    a(f's_cselect_b32 {s(sSPIN)}, {OPT["dev"]}, 1')
    a(f's_mov_b32 {s(sCNT)}, 0')
    a(f'v_lshrrev_b32 {v(vG)}, 2, v0')
    a(f'v_mul_u32_u24 {v(vB0)}, {PSTR}, {v(vG)}')
    a(f'v_lshl_add_u32 {v(vCA)}, {v(vG + 6)}, 4, {v(vB0)}')
    a(f's_lshl_b32 {s(sT0)}, {s(sG)}, 11')
    a(f's_add_u32 {s(sT0)}, {s(sT0)}, {PAY_OFF}')
    a(f'v_add_u32 {v(vB0)}, {s(sT0)}, {v(vB0)}')
    a(f'v_add_u32 {v(vB1)}, {128 * PSTR}, {v(vB0)}')
    a(f'v_and_b32 {v(vFA)}, 255, v0')
    a(f'v_lshlrev_b32 {v(vFA)}, 6, {v(vFA)}')
    a(f's_mul_i32 {s(sT0)}, {s(sW)}, {REC_W}')
    a(f's_add_u32 {s(sT0)}, {s(sT0)}, {REC}')
    a(f'v_add_u32 {v(vAR)}, {s(sT0)}, {v(vL16)}')
    a(f'v_mov_b32 {v(vG + 18)}, {NULLW}')
    a(f'v_mov_b32 {v(vG + 19)}, {NULLW}')
    for k in range(3):
        a(f'ds_write_b128 {v(vAR)}, {v(vG + 16, 4)} offset:{k * 1024}')
    a('s_waitcnt vmcnt(4)')
    a(f'v_add_u32 {v(vG + 21)}, {WMIX}, {v(vG + 20)}')
    for q in range(2):
        for r in range(2):
            t = vG + 44 + (q * 2 + r) * 4
            for m in range(4):
                a(f'v_perm_b32 {v(t + m)}, {v(vWM + q * 8 + 2 * m + 1)}, {v(vWM + q * 8 + 2 * m)}, {s(sPERM0 + r)}')
            a(f'ds_write_b128 {v(vG + 21)}, {v(t, 4)} offset:{q * 16384 + r * 1024}')
    a(f's_lshl_b32 {s(sT0)}, {s(sBK)}, 6')
    a(f's_add_u32 {s(sT0)}, {s(sT0)}, {CELL_OFF}')
    a(f's_add_u32 {s(sT1)}, {s(sT0)}, {128 * PSTR}')
    a('s_waitcnt vmcnt(2)')
    a(f'buffer_load_dwordx4 {v(vC, 4)}, {v(vCA)}, {s(sWS, 4)}, {s(sT0)} offen sc1')
    a(f'buffer_load_dwordx4 {v(vC + 4, 4)}, {v(vCA)}, {s(sWS, 4)}, {s(sT1)} offen sc1')
    a(f's_lshl_b32 {s(sOFF)}, {s(sW)}, 8')
    a(f's_add_u32 {s(sOFF)}, {s(sOFF)}, s2')
    a(f's_lshl_b32 {s(sOFF)}, {s(sOFF)}, 6')
    a(f's_add_u32 {s(sOFF)}, {s(sOFF)}, {FLAG_OFF}')
    a(f'v_mov_b32 {v(vG + 22)}, {s(sEP)}')
    a('s_mov_b64 exec, 1')
    a('s_waitcnt vmcnt(2)')
    a(f'buffer_store_dword {v(vG + 22)}, off, {s(sWS, 4)}, {s(sOFF)} sc1')
    a('s_mov_b64 exec, -1')
    a(f'v_lshl_or_b32 {v(vCG)}, {v(vG + 13)}, 16, {v(vG + 12)}')
    a(f'v_lshl_or_b32 {v(vCG + 1)}, {v(vG + 15)}, 16, {v(vG + 14)}')
    t = vG + 24
    for h in range(2):
        for k in range(4):
            if h == 0:
                a(f'v_lshlrev_b32 {v(t + k)}, 16, {v(vG + 8 + k)}')
            else:
                a(f'v_and_b32 {v(t + k)}, 0xffff0000, {v(vG + 8 + k)}')
            a(f'v_mul_f32 {v(t + k)}, 0xbfb8aa3b, {v(t + k)}')
        for m in range(2):
            a(f'v_cvt_pk_bf16_f32 {v(vWH + 2 * h + m)}, {v(t + 2 * m)}, {v(t + 2 * m + 1)}')
            a(f'v_lshlrev_b32 {v(t + 4)}, 16, {v(vWH + 2 * h + m)}')
            a(f'v_and_b32 {v(t + 5)}, 0xffff0000, {v(vWH + 2 * h + m)}')
            a(f'v_sub_f32 {v(t + 4)}, {v(t + 2 * m)}, {v(t + 4)}')
            a(f'v_sub_f32 {v(t + 5)}, {v(t + 2 * m + 1)}, {v(t + 5)}')
            a(f'v_cvt_pk_bf16_f32 {v(vWL + 2 * h + m)}, {v(t + 4)}, {v(t + 5)}')
    for r in range(0, 40, 2):
        a(f'v_mov_b64 {v(vACC + r, 2)}, 0')
    a(f'v_mov_b32 {v(vONE)}, 1.0')
    a(f'v_mov_b32 {v(vONE + 1)}, 1.0')
    a(f'v_lshlrev_b32 {v(vSMA)}, 3, {v(vLN)}')
    a(f's_lshl_b32 {s(sOFF)}, {s(sG)}, 14')
    a(f's_add_u32 {s(sOFF)}, {s(sOFF)}, {FLAG_OFF}')
    a('s_waitcnt vmcnt(1)')
    a.label('POLL')
    quadsum(vG + 22, vC)
    quadsum(vG + 23, vC + 4)
    quadred(vG + 22)
    quadred(vG + 23)
    quadred2(vG + 22)
    quadred2(vG + 23)
    a(f'v_cmp_ne_u32 vcc, {s(sTAGC)}, {v(vG + 22)}')
    a(f'v_cmp_ne_u32 {s(sM, 2)}, {s(sTAGC)}, {v(vG + 23)}')
    a(f's_or_b64 vcc, vcc, {s(sM, 2)}')
    a('s_cbranch_scc1 REPOLL')
    a(f'buffer_load_dword {v(vFL)}, {v(vFA)}, {s(sWS, 4)}, {s(sOFF)} offen sc1')
    stamp(a, 3, sST)
    a(f'v_cndmask_b32 {v(vC + 3)}, {v(vC + 3)}, 0, {s(sL3, 2)}')
    a(f'v_cndmask_b32 {v(vC + 7)}, {v(vC + 7)}, 0, {s(sL3, 2)}')
    a(f'v_or_b32 {v(vG + 21)}, {v(vC)}, {v(vC + 4)}')
    a(f'v_cmp_gt_i32 vcc, 0, {v(vG + 21)}')
    a('s_cbranch_vccnz SETFLAG')

    a.label('BATCH')
    dense = [vC, vC + 1, vC + 4, vC + 5]
    rare = [vC + 2, vC + 3, vC + 6, vC + 7]
    rt = [vG + 24 + 8 * r for r in range(4)]
    for r, e in enumerate(dense):
        t = rt[r]
        a(f'v_cmp_ne_u32 {s(sV + 2 * r, 2)}, 0, {v(e)}')
        a(f'v_and_b32 {v(t)}, 0x3fff, {v(e)}')
        a(f'v_mul_u32_u24 {v(t + 1)}, 26844, {v(t)}')
        a(f'v_lshrrev_b32 {v(t + 1)}, 23, {v(t + 1)}')
        a(f'v_and_b32 {v(t + 1)}, 24, {v(t + 1)}')
        a(f'v_lshlrev_b32 {v(t + 2)}, {v(t + 1)}, 1')
        a(f'v_mov_b32 {v(t + 3)}, 1')
        a(f'v_lshrrev_b32 {v(t + 4)}, 11, {v(e)}')
        a(f'v_and_b32 {v(t + 4)}, 0x1f8, {v(t + 4)}')
        a(f's_mov_b64 exec, {s(sV + 2 * r, 2)}')
        a(f'ds_add_rtn_u64 {v(t + 6, 2)}, {v(t + 4)}, {v(t + 2, 2)} offset:{NCNT}')
        a('s_mov_b64 exec, -1')
    a(f's_mul_i32 {s(sT0)}, {s(sW)}, 5')
    a(f's_lshl_b64 {s(sM, 2)}, 31, {s(sT0)}')
    a(f'v_sub_u32 {v(vG + 2)}, 63, {v(vLN)}')
    a('s_waitcnt lgkmcnt(0)')
    a('s_barrier')
    a(f'ds_read_b64 {v(vG, 2)}, {v(vSMA)} offset:{NCNT}')
    a(f's_or_b32 {s(sT1)}, {s(sMODE)}, s2')
    a(f's_or_b32 {s(sT1)}, {s(sT1)}, {s(sW)}')
    a('s_cbranch_scc1 NOBUMP')
    a(f'v_mov_b32 {v(vG + 3)}, {s(sEP)}')
    a('s_mov_b64 exec, 1')
    a(f'buffer_store_dword {v(vG + 3)}, off, {s(sWS, 4)}, 0 sc1')
    a('s_mov_b64 exec, -1')
    a.label('NOBUMP')
    for r, e in enumerate(dense):
        t = rt[r]
        base = vB0 if r < 2 else vB1
        a(f'v_bfe_u32 {v(t + 6)}, {v(t + 6)}, {v(t + 1)}, 8')
        a(f'v_add_u32 {v(t + 2)}, -1, {v(t + 2)}')
        a(f'v_lshlrev_b32 {v(t)}, 10, {v(t)}')
        a(f'v_bfe_u32 {v(t + 7)}, {v(e)}, 20, 7')
        a(f'v_lshl_add_u32 {v(t + 7)}, {v(t + 7)}, {s(sSH)}, {v(base)}')
    a('s_waitcnt lgkmcnt(0)')
    a(f'v_min_u32 {v(vG + 3)}, 0xffff, {v(vG + 1)}')
    a(f'v_mad_u32_u24 {v(vG + 2)}, {v(vG + 3)}, {s(sMUL)}, {v(vG + 2)}')
    for j in range(5):
        a(f'v_readlane_b32 {s(sWD + j)}, {v(vG + 2)}, {s(sT0)}')
        a(f's_add_u32 {s(sT0)}, {s(sT0)}, 1')
    a(f's_sub_u32 m0, {s(sT0)}, 5')
    for j in range(5):
        a(f'v_cmp_lt_u32 vcc, {s(sWD + j)}, {v(vG + 2)}')
        a(f's_bcnt1_i32_b64 {s(sT1)}, vcc')
        a(f'v_writelane_b32 {v(vG + 3)}, {s(sT1)}, m0')
        if j < 4:
            a('s_add_u32 m0, m0, 1')
    a(f's_mov_b64 exec, {s(sM, 2)}')
    a(f'v_and_b32 {v(vG + 4)}, 7, {v(vG + 3)}')
    if OPT['snake']:
        a(f'v_lshrrev_b32 {v(vG + 5)}, 3, {v(vG + 3)}')
        a(f'v_lshrrev_b32 {v(vG + 5)}, {v(vG + 5)}, {OPT["snake"]}')
        a(f'v_and_b32 {v(vG + 5)}, 1, {v(vG + 5)}')
        a(f'v_mul_u32_u24 {v(vG + 5)}, 7, {v(vG + 5)}')
        a(f'v_xor_b32 {v(vG + 4)}, {v(vG + 4)}, {v(vG + 5)}')
    a(f'v_lshlrev_b32 {v(vG + 5)}, 3, {v(vG + 4)}')
    a(f'ds_add_rtn_u64 {v(vG + 6, 2)}, {v(vG + 5)}, {v(vG, 2)} offset:{TOT}')
    a(f'v_and_b32 {v(vG + 3)}, 56, {v(vG + 3)}')
    a(f'v_lshrrev_b32 {v(vG + 8)}, 1, {v(vG + 3)}')
    a(f'v_lshl_add_u32 {v(vG + 8)}, {v(vG + 4)}, 5, {v(vG + 8)}')
    a(f'ds_write_b32 {v(vG + 8)}, {v(vLN)} offset:{NODE}')
    a(f'v_lshl_or_b32 {v(vG + 3)}, {v(vG + 5)}, 8, {v(vG + 3)}')
    a('s_waitcnt lgkmcnt(1)')
    a(f'v_mov_b32 {v(vG + 7)}, {v(vG + 3)}')
    a(f'ds_write_b64 {v(vSMA)}, {v(vG + 6, 2)} offset:{TAB}')
    a('s_mov_b64 exec, -1')
    a('s_waitcnt lgkmcnt(0)')
    a('s_barrier')
    tb = [vG + 2 * r for r in range(4)]
    for r in range(4):
        a(f'ds_read_b64 {v(tb[r], 2)}, {v(rt[r] + 4)} offset:{TAB}')
    for r in range(4):
        t = rt[r]
        a(f's_waitcnt lgkmcnt(3)')
        a(f'v_lshrrev_b32 {v(t + 4)}, 8, {v(tb[r] + 1)}')
        a(f'v_and_b32 {v(t + 4)}, 56, {v(t + 4)}')
        a(f'ds_read_b32 {v(t + 3)}, {v(t + 4)} offset:{TOT}')
    for r in range(4):
        t = rt[r]
        a(f'v_bfe_u32 {v(tb[r])}, {v(tb[r])}, {v(t + 1)}, 8')
        a(f'v_add_u32 {v(t + 1)}, {v(tb[r])}, {v(t + 6)}')
        a(f'v_and_b32 {v(t + 6)}, 56, {v(tb[r] + 1)}')
        a(f'v_or_b32 {v(t + 6)}, {v(t + 6)}, {v(t)}')
        a(f'v_mul_u32_u24 {v(t + 4)}, {REC_W // 8}, {v(t + 4)}')
        a(f'v_add_u32 {v(t + 4)}, {REC + 8}, {v(t + 4)}')
    a('s_waitcnt lgkmcnt(0)')
    for r in range(4):
        t = rt[r]
        a(f'v_and_b32 {v(t + 3)}, {v(t + 3)}, {v(t + 2)}')
        a(f'v_sad_u8 {v(t + 1)}, {v(t + 3)}, 0, {v(t + 1)}')
        a(f'v_min_u32 {v(t + 1)}, 127, {v(t + 1)}')
        a(f'v_lshl_add_u32 {v(t + 1)}, {v(t + 1)}, 4, {v(t + 4)}')
        a(f's_mov_b64 exec, {s(sV + 2 * r, 2)}')
        a(f'ds_write_b64 {v(t + 1)}, {v(t + 6, 2)}')
        a('s_mov_b64 exec, -1')
    a(f'v_or_b32 {v(vG + 21)}, {v(vC + 2)}, {v(vC + 6)}')
    a(f'v_cmp_ne_u32 vcc, 0, {v(vG + 21)}')
    a('s_cbranch_vccnz RARE')
    a.label('NORARE')
    a(f's_cmp_lg_u32 {s(sMODE)}, 0')
    a('s_cbranch_scc1 FLAGS_OK')
    a.label('FLAGCHK')
    a('s_waitcnt vmcnt(0)')
    a(f'v_cmp_ne_u32 vcc, {s(sEP)}, {v(vFL)}')
    a('s_cbranch_vccnz REFLAG')
    a.label('FLAGS_OK')
    a(f'v_lshrrev_b32 {v(vG + 20)}, 1, {v(vSMA)}')
    a('s_waitcnt lgkmcnt(0)')
    a('s_barrier')
    stamp(a, 4, sST)
    a(f'ds_read_b64 {v(vG + 24, 2)}, {v(vAR)} offset:8')
    a(f'ds_read_b32 {v(vG + 21)}, {v(vG + 20)} offset:{TOT}')
    a(f'ds_read_b64 {v(vG + 26, 2)}, {v(vAR)} offset:{1024 + 8}')
    a(f's_lshl_b32 {s(sT0)}, {s(sW)}, 1')
    a(f's_add_u32 {s(sT0)}, {s(sT0)}, 1')
    a('s_waitcnt lgkmcnt(1)')
    a(f'v_readlane_b32 {s(sCNT)}, {v(vG + 21)}, {s(sT0)}')
    a(f'v_cmp_lt_u32 vcc, 128, {v(vG + 21)}')
    a(f's_and_b32 {s(sT0)}, vcc_lo, 0x1aaaa')
    a('s_cbranch_scc1 SLOW_ENTER')
    a(f's_cmp_eq_u32 {s(sCNT)}, 0')
    a('s_cbranch_scc1 LIST_DONE')
    pay = [vG + 28, vG + 32]
    a(f's_cmp_lg_u32 {s(sMODE)}, 0')
    a('s_cbranch_scc1 PAY_SLOW')
    a(f'buffer_load_dwordx4 {v(pay[0], 4)}, {v(vG + 25)}, {s(sWS, 4)}, 0 offen sc1')
    a('s_waitcnt lgkmcnt(0)')
    a(f'buffer_load_dwordx4 {v(pay[1], 4)}, {v(vG + 27)}, {s(sWS, 4)}, 0 offen sc1')
    a.label('PAY_JOIN')
    for k in range(8):
        a(f'v_readlane_b32 {s(sWD + k)}, {v(vG + 24)}, {k}')
    for k in range(7):
        a(f's_and_b32 {s(sOFF)}, {s(sWD + k)}, 0xfffffc00')
        a(f'buffer_load_dwordx4 {v(vX + 4 * k, 4)}, {v(vL16)}, {s(sX, 4)}, {s(sOFF)} offen')
    a(f's_lshl_b32 {s(sT0)}, {s(sW)}, 12')
    a(f's_add_u32 {s(sT0)}, {s(sT0)}, {TT}')
    a(f'v_lshl_add_u32 {v(vG + 22)}, {v(vLN)}, 5, {s(sT0)}')
    a(f'v_add_u32 {v(vAT)}, {s(sT0)}, {v(vSMA)}')
    for st in range(2):
        a(f's_waitcnt vmcnt({8 - st})')
        d = vG + 36
        for o in range(4):
            a(f'v_mfma_f32_4x4x4_16b_bf16 {v(d + 4 * o, 4)}, {v(vCG, 2)}, {v(pay[st], 2)}, 0 cbsz:4 abid:{o}')
        a(f'ds_write_b64 {v(vAR)}, {v(pay[st] + 2, 2)} offset:{st * 1024}')
        c = vG + 52
        for o in range(4):
            for m in range(2):
                a(f'v_cvt_pk_bf16_f32 {v(c + 2 * o + m)}, {v(d + 4 * o + 2 * m)}, {v(d + 4 * o + 2 * m + 1)}')
        a(f'ds_write_b128 {v(vG + 22)}, {v(c, 4)} offset:{st * 2048}')
        a(f'ds_write_b128 {v(vG + 22)}, {v(c + 4, 4)} offset:{st * 2048 + 16}')

    def zmfma(buf, j, rec, abid=0):
        h = j & 1
        d = vZ + 8 * buf + 4 * h
        if j < 2:
            a(f'v_mfma_f32_4x4x4_16b_bf16 {v(d, 4)}, {v(rec, 2)}, {v(vWH + 2 * h, 2)}, 0 cbsz:4 abid:{abid}')
        else:
            a(f'v_mfma_f32_4x4x4_16b_bf16 {v(d, 4)}, {v(rec, 2)}, {v(vWL + 2 * h, 2)}, {v(d, 4)} cbsz:4 abid:{abid}')

    def pair(base, buf, p):
        return base + 8 * buf + 4 * (p & 1) + 2 * (p >> 1)

    a(f'ds_read_b64 {v(vTA, 2)}, {v(vAT)}')
    a(f'ds_read_b128 {v(vRA, 4)}, {v(vAR)} offset:128')
    for j in range(4):
        zmfma(0, j, pay[0] + 2, 0)
        zmfma(1, j, pay[0] + 2, 1)
    for p in range(4):
        e = vE + 2 * (p & 1)
        z = pair(vZ, 0, p)
        a(f'v_exp_f32 {v(e)}, {v(z)}')
        a(f'v_exp_f32 {v(e + 1)}, {v(z + 1)}')
        a(f'v_pk_add_f32 {v(e, 2)}, {v(e, 2)}, {v(vONE, 2)}')
        if p < 3:
            a(f'v_rcp_f32 {v(e)}, {v(e)}')
            a(f'v_rcp_f32 {v(e + 1)}, {v(e + 1)}')
            a(f'v_pk_mul_f32 {v(pair(vR, 0, p), 2)}, {v(e, 2)}, {v(z, 2)}')
    stamp(a, 5, sST)

    a.label('LOOP')
    for g in range(2):
        T, Rc = (vTA, vRA) if g == 0 else (vTB, vRB)
        To, Ro = (vTB, vRB) if g == 0 else (vTA, vRA)
        a('s_waitcnt lgkmcnt(0)')
        a(f'ds_read_b64 {v(To, 2)}, {v(vAT)} offset:{(g + 1) * 128}')
        a(f'ds_read_b128 {v(Ro, 4)}, {v(vAR)} offset:{(g + 3) * 64}')
        for j in range(4):
            k = 4 * g + j
            kp = (k + 7) % 8
            en = vE + 2 * (j & 1)
            eo = vE + 2 * ((j + 1) & 1)
            zn = pair(vZ, (g + 1) & 1, j)
            if j == 0:
                zo, ro = pair(vZ, g, 3), pair(vR, g, 3)
            else:
                zo, ro = pair(vZ, (g + 1) & 1, j - 1), pair(vR, (g + 1) & 1, j - 1)
            a('s_waitcnt vmcnt(6)')
            a(f'v_mfma_f32_4x4x4_16b_bf16 {v(vTP, 4)}, {v(T, 2)}, {v(vX + 4 * k, 2)}, 0 cbsz:4 abid:{j}')
            a(f's_and_b32 {s(sOFF)}, {s(sWD + kp)}, 0xfffffc00')
            a(f'buffer_load_dwordx4 {v(vX + 4 * kp, 4)}, {v(vL16)}, {s(sX, 4)}, {s(sOFF)} offen')
            a(f'v_exp_f32 {v(en)}, {v(zn)}')
            a(f'v_mfma_f32_4x4x4_16b_bf16 {v(vTP + 4, 4)}, {v(T, 2)}, {v(vX + 4 * k + 2, 2)}, 0 cbsz:4 abid:{j}')
            a(f'v_exp_f32 {v(en + 1)}, {v(zn + 1)}')
            zmfma(g, j, Rc)
            a(f'v_rcp_f32 {v(eo)}, {v(eo)}')
            a(f'v_rcp_f32 {v(eo + 1)}, {v(eo + 1)}')
            a(f'v_pk_add_f32 {v(en, 2)}, {v(en, 2)}, {v(vONE, 2)}')
            a(f'v_pk_mul_f32 {v(ro, 2)}, {v(eo, 2)}, {v(zo, 2)}')
            a(f's_set_gpr_idx_on {s(sWD + k)}, gpr_idx(SRC2,DST)')
            a.idx_range = (vACC, vACC + 40)
            sel = j & 1
            for h in range(2):
                rp = vR + 8 * g + 4 * h + 2 * (j >> 1)
                for m in range(2):
                    d = vACC + 4 * h + 2 * m
                    a(f'v_pk_fma_f32 {v(d, 2)}, {v(rp, 2)}, {v(vTP + 4 * h + 2 * m, 2)}, {v(d, 2)} op_sel:[{sel},0,0] op_sel_hi:[{sel},1,1]')
            a.idx_range = None
            a('s_set_gpr_idx_off')
            a(f'v_readlane_b32 {s(sWD + k)}, {v(Rc + 2)}, {j}')
        if g == 0:
            a(f's_cmp_le_u32 {s(sCNT)}, 4')
            a('s_cbranch_scc1 LIST_DONE')
    a(f'v_add_u32 {v(vAT)}, 256, {v(vAT)}')
    a(f'v_add_u32 {v(vAR)}, 128, {v(vAR)}')
    a(f's_sub_i32 {s(sCNT)}, {s(sCNT)}, 8')
    a(f's_cmp_gt_i32 {s(sCNT)}, 0')
    a('s_cbranch_scc1 LOOP')
    a.label('LIST_DONE')
    a(f's_cmp_lg_u32 {s(sMODE)}, 0')
    a('s_cbranch_scc1 SLOW_NEXT')

    a.label('MIX')
    vA = 160
    vBb = 76
    vD = 192
    vD1 = 108
    vS = 224
    vAd = 140
    a('s_waitcnt lgkmcnt(0)')
    stamp(a, 6, sST)
    a(f'v_add_u32 {v(vAd + 6)}, {WMIX}, {v(vL16)}')
    for i in range(8):
        a(f'ds_read_b128 {v(vBb + 4 * i, 4)}, {v(vAd + 6)} offset:{i * 1024}')
    a(f's_mul_i32 {s(sT0)}, {s(sW)}, {AGG_W}')
    a(f's_add_u32 {s(sT0)}, {s(sT0)}, {AGG}')
    a(f'v_lshl_add_u32 {v(vAd)}, {v(vLN)}, 2, {s(sT0)}')
    a(f'v_and_b32 {v(vAd + 1)}, 31, {v(vLN)}')
    a(f'v_lshrrev_b32 {v(vAd + 2)}, 5, {v(vLN)}')
    a(f'v_mul_u32_u24 {v(vAd + 3)}, {AGG_ROW}, {v(vAd + 1)}')
    a(f'v_lshl_add_u32 {v(vAd + 3)}, {v(vAd + 2)}, 4, {v(vAd + 3)}')
    a(f'v_add_u32 {v(vAd + 3)}, {s(sT0)}, {v(vAd + 3)}')
    a(f'v_mov_b32 {v(vAd + 4)}, 0xbf317218')
    a(f'v_mov_b32 {v(vAd + 5)}, 0xbf317218')
    for sl in range(5):
        for m in range(4):
            d = vACC + 8 * sl + 2 * m
            a(f'v_pk_mul_f32 {v(d, 2)}, {v(d, 2)}, {v(vAd + 4, 2)}')
        for o in range(4):
            a(f'v_cvt_pk_bf16_f32 {v(vS + 4 * sl + o)}, {v(vACC + 8 * sl + o)}, {v(vACC + 8 * sl + 4 + o)}')
            a(f'ds_write_b32 {v(vAd)}, {v(vS + 4 * sl + o)} offset:{(4 * sl + o) * AGG_ROW}')
        if sl in (0, 2):
            a('s_waitcnt lgkmcnt(4)')
    a('s_waitcnt lgkmcnt(4)')
    for kk in range(8):
        a(f'ds_read_b128 {v(vA + 4 * kk, 4)}, {v(vAd + 3)} offset:{kk * 32}')
    a(f's_lshl_b32 {s(sT0)}, {s(sW)}, 5')
    a(f'v_lshl_add_u32 {v(vAd + 7)}, {v(vAd + 2)}, 2, {s(sT0)}')
    for rr in range(3):
        a(f'ds_read_b32 {v(vAd + 8 + rr)}, {v(vAd + 7)} offset:{NODE + 8 * rr}')
    a(f's_lshl_b32 {s(sT1)}, {s(sBK)}, 10')
    a(f'v_lshl_add_u32 {v(vAd + 1)}, {v(vAd + 1)}, 4, {s(sT1)}')
    a(f'v_lshlrev_b32 {v(vAd + 2)}, 30, {v(vAd + 2)}')
    a('s_waitcnt lgkmcnt(0)')
    a(f'v_and_b32 {v(vAd + 10)}, 63, {v(vAd + 10)}')
    for rr in range(3):
        a(f'v_lshl_add_u32 {v(vAd + 8 + rr)}, {v(vAd + 8 + rr)}, 18, {v(vAd + 1)}')
    a(f'v_or_b32 {v(vAd + 10)}, {v(vAd + 10)}, {v(vAd + 2)}')
    pol = ['', ' sc1', ' nt', ' sc0 sc1 nt'][OPT['outpol']]

    def outq(q, rr):
        st = vS + 12 * q + 4 * rr
        for r in range(2):
            d = (vD if q == 0 else vD1) + 16 * r + 4 * rr
            a(f'v_cvt_pk_bf16_f32 {v(st + 2 * r)}, {v(d)}, {v(d + 1)}')
            a(f'v_cvt_pk_bf16_f32 {v(st + 2 * r + 1)}, {v(d + 2)}, {v(d + 3)}')
        a(f'buffer_store_dwordx4 {v(st, 4)}, {v(vAd + 8 + rr)}, {s(sO, 4)}, 0 offen offset:{q * 512}{pol}')

    for i in range(32):
        q, kk, r = i >> 4, (i >> 1) & 7, i & 1
        d = (vD if q == 0 else vD1) + 16 * r
        b = vBb + 4 * (i & 7)
        if i >= 8:
            a(f's_waitcnt lgkmcnt({min(7, 31 - i)})')
        a(f'v_mfma_f32_32x32x16_bf16 {v(d, 16)}, {v(vA + 4 * kk, 4)}, {v(b, 4)}, {"0" if kk == 0 else v(d, 16)}')
        if i + 8 < 32:
            a(f'ds_read_b128 {v(b, 4)}, {v(vAd + 6)} offset:{(i + 8) * 1024}')
        if i in (20, 22, 24):
            outq(0, (i - 20) // 2)
    for rr in range(3):
        outq(1, rr)
    if OPT['stamps']:
        a('s_waitcnt vmcnt(0)')
        stamp(a, 7, sST)
        emit_stamps(a, sST, pWS, 4)
    a.label('K_END')
    a('s_endpgm')

    a.label('REPOLL')
    a(f's_add_u32 {s(sCNT)}, {s(sCNT)}, {s(sSPIN)}')
    a(f's_lshr_b32 {s(sM)}, {s(sCNT)}, {OPT["spin"]}')
    a('s_cbranch_scc1 GIVEUP')
    a(f'buffer_load_dwordx4 {v(vC, 4)}, {v(vCA)}, {s(sWS, 4)}, {s(sT0)} offen sc1')
    a(f'buffer_load_dwordx4 {v(vC + 4, 4)}, {v(vCA)}, {s(sWS, 4)}, {s(sT1)} offen sc1')
    a('s_waitcnt vmcnt(0)')
    a('s_branch POLL')
    a.label('GIVEUP')
    a(f'v_mov_b32 {v(vFL)}, {s(sEP)}')
    a.label('SETFLAG')
    for r in range(8):
        a(f'v_mov_b32 {v(vC + r)}, 0')
    a(f'v_mov_b32 {v(vG + 21)}, {FLAG}')
    a(f'ds_write_b32 {v(vG + 21)}, {v(vG + 18)}')
    a('s_branch BATCH')
    a.label('REFLAG')
    a(f's_add_u32 {s(sCNT)}, {s(sCNT)}, 1')
    a(f's_lshr_b32 {s(sM)}, {s(sCNT)}, {OPT["spin"]}')
    a('s_cbranch_scc1 GIVEUP2')
    a(f'buffer_load_dword {v(vFL)}, {v(vFA)}, {s(sWS, 4)}, {s(sOFF)} offen sc1')
    a('s_branch FLAGCHK')
    a.label('GIVEUP2')
    a(f'v_mov_b32 {v(vG + 21)}, {FLAG}')
    a(f'ds_write_b32 {v(vG + 21)}, {v(vG + 18)}')
    a('s_branch FLAGS_OK')
    a.label('RARE')
    t = rt[0]
    for r, e in enumerate(rare):
        base = vB0 if r < 2 else vB1
        a(f'v_cmp_ne_u32 vcc, 0, {v(e)}')
        a(f'v_lshrrev_b32 {v(t + 4)}, 11, {v(e)}')
        a(f'v_and_b32 {v(t + 4)}, 0x1f8, {v(t + 4)}')
        a(f'ds_read_b32 {v(t + 5)}, {v(t + 4)} offset:{TAB + 4}')
        a(f'v_mov_b32 {v(t + 3)}, 1')
        a(f'v_and_b32 {v(t)}, 0x3fff, {v(e)}')
        a(f'v_bfe_u32 {v(t + 7)}, {v(e)}, 20, 7')
        a(f'v_lshl_add_u32 {v(t + 7)}, {v(t + 7)}, {s(sSH)}, {v(base)}')
        a('s_waitcnt lgkmcnt(0)')
        a(f'v_lshrrev_b32 {v(t + 4)}, 8, {v(t + 5)}')
        a(f'v_and_b32 {v(t + 4)}, 56, {v(t + 4)}')
        a('s_mov_b64 exec, vcc')
        a(f'ds_add_rtn_u32 {v(t + 1)}, {v(t + 4)}, {v(t + 3)} offset:{TOT + 4}')
        a(f'v_and_b32 {v(t + 6)}, 56, {v(t + 5)}')
        a(f'v_lshl_or_b32 {v(t + 6)}, {v(t)}, 10, {v(t + 6)}')
        a(f'v_mul_u32_u24 {v(t + 4)}, {REC_W // 8}, {v(t + 4)}')
        a(f'v_add_u32 {v(t + 4)}, {REC + 8}, {v(t + 4)}')
        a('s_waitcnt lgkmcnt(0)')
        a(f'v_min_u32 {v(t + 1)}, 127, {v(t + 1)}')
        a(f'v_lshl_add_u32 {v(t + 1)}, {v(t + 1)}, 4, {v(t + 4)}')
        a(f'ds_write_b64 {v(t + 1)}, {v(t + 6, 2)}')
        a('s_mov_b64 exec, -1')
    a('s_branch NORARE')

    a.label('PAY_SLOW')
    a('s_waitcnt lgkmcnt(0)')
    for st in range(2):
        a(f'buffer_load_dwordx2 {v(pay[st], 2)}, {v(vG + 25 + 2 * st)}, {s(sY, 4)}, 0 offen')
        a(f'buffer_load_dwordx2 {v(pay[st] + 2, 2)}, {v(vG + 25 + 2 * st)}, {s(sE, 4)}, 0 offen')
    a('s_waitcnt vmcnt(0)')
    a('s_branch PAY_JOIN')
    a.label('SLOW_ENTER')
    a(f's_mov_b32 {s(sMODE)}, 1')
    a(f's_mov_b32 {s(sSH)}, 3')
    a(f's_mov_b32 {s(sMUL)}, 0')
    a('s_branch SLOW_LOAD')
    a.label('SLOW_NEXT')
    a(f's_add_u32 {s(sBASE)}, {s(sBASE)}, 128')
    a(f's_cmp_ge_u32 {s(sBASE)}, {E}')
    a('s_cbranch_scc1 MIX')
    a.label('SLOW_LOAD')
    a('s_waitcnt vmcnt(0) lgkmcnt(0)')
    a('s_barrier')
    a(f'v_and_b32 {v(vG + 24)}, 127, v0')
    a(f'v_add_lshl_u32 {v(vG + 25)}, {v(vG + 24)}, {s(sBASE)}, 2')
    a(f'buffer_load_dword {v(vG + 26)}, {v(vG + 25)}, {s(sD, 4)}, 0 offen')
    a(f'buffer_load_dword {v(vG + 27)}, {v(vG + 25)}, {s(sS, 4)}, 0 offen')
    for r in range(1, 8):
        a(f'v_mov_b32 {v(vC + r)}, 0')
    a(f's_mul_i32 {s(sT0)}, {s(sW)}, {REC_W}')
    a(f's_add_u32 {s(sT0)}, {s(sT0)}, {REC}')
    a(f'v_add_u32 {v(vAR)}, {s(sT0)}, {v(vL16)}')
    for k in range(3):
        a(f'ds_write_b128 {v(vAR)}, {v(vG + 16, 4)} offset:{k * 1024}')
    a(f'ds_write_b64 {v(vSMA)}, {v(vG + 16, 2)} offset:{NCNT}')
    a(f'ds_write_b64 {v(vSMA)}, {v(vG + 16, 2)} offset:{NCNT + 256}')
    a(f's_lshl_b32 {s(sT0)}, {s(sBASE)}, 3')
    a(f'v_mov_b32 {v(vB0)}, {s(sT0)}')
    a(f'v_lshrrev_b32 {v(vG + 28)}, 7, v0')
    a('s_waitcnt vmcnt(0)')
    a(f'v_and_b32 {v(vG + 25)}, 255, {v(vG + 26)}')
    a(f'v_lshl_or_b32 {v(vG + 25)}, {v(vG + 28)}, 8, {v(vG + 25)}')
    a(f'v_cmp_eq_u32 vcc, {s(sBK)}, {v(vG + 25)}')
    a(f'v_lshrrev_b32 {v(vG + 26)}, 8, {v(vG + 26)}')
    a(f'v_lshl_or_b32 {v(vG + 26)}, {v(vG + 26)}, 14, {v(vG + 27)}')
    a(f'v_lshl_or_b32 {v(vG + 26)}, {v(vG + 24)}, 20, {v(vG + 26)}')
    a(f'v_or_b32 {v(vG + 26)}, 0x40000000, {v(vG + 26)}')
    a(f'v_cndmask_b32 {v(vC)}, 0, {v(vG + 26)}, vcc')
    a('s_waitcnt lgkmcnt(0)')
    a('s_barrier')
    a('s_branch BATCH')
    return a, LDS


def main():
    a, lds = kernel()
    n = a.fix_hazards(False)
    ref = open('cdna_kernels/' + NAME + '.s.ref').read().split('\n')
    head = [l for l in ref if l.startswith(';') and '@launch' not in l and 'Override' not in l and 'grid=ceil' not in l]
    out = '\n'.join(head) + '\n'
    if OPT['probe'] >= 0:
        out += f'; @launch kernel={NAME}_kernel grid=(256,1,1) block=(512,1,1) lds={lds}\n'
        out += '; @launch kernel=probe_kernel grid=(1,1,1) block=(64,1,1) lds=0\n'
    else:
        out += f'; @launch grid=(256,1,1) block=(512,1,1) lds={lds}\n'
    out += '.amdgcn_target "amdgcn-amd-amdhsa--gfx950"\n.text\n'
    out += kernel_text(NAME + '_kernel', a)
    if OPT['probe'] >= 0:
        p = OPT['probe']
        pk = probe(p // 100, p // 10 % 10, p % 10)
        pk.fix_hazards()
        out += kernel_text('probe_kernel', pk)
    out += '.section .rodata,"a"\n'
    out += descriptor(NAME + '_kernel', *a.max_regs())
    if OPT['probe'] >= 0:
        out += descriptor('probe_kernel', 32, 16)
    open(sys.argv[1], 'w').write(out)
    print('regs', a.max_regs(), 'lds', lds, 'nops', n, 'instrs', sum(1 for i in a.ins if i.kind != 'none'))


main()
```

```python
import sys
from asmlib import *

NAME = 'gather_scatter__tensor_product_equiv_tfn__graph'
N, E = 10000, 160000
STAMP_OFF = 16 << 20
OPT = dict(stamps=0, probe=-1)


def parse(defaults):
    OPT.update(defaults)
    for a_ in sys.argv[2:]:
        k_, x_ = a_.split('=')
        assert k_ in OPT, k_
        OPT[k_] = int(x_)


def srd(a, d, b, nbytes):
    a(f's_mov_b32 {s(d)}, {s(b)}')
    a(f's_mov_b32 {s(d + 1)}, {s(b + 1)}')
    a(f's_mov_b32 {s(d + 2)}, {nbytes}')
    a(f's_mov_b32 {s(d + 3)}, 0x20000')


def stamp(a, i, base):
    if OPT['stamps']:
        a(f's_memrealtime {s(base, 2)}')
        a('s_waitcnt lgkmcnt(0)')
        a(f'v_writelane_b32 v255, {s(base)}, {i}')


def emit_stamps(a, base, ptr, vt):
    if not OPT['stamps']:
        return
    a('s_mov_b64 exec, -1')
    a(f'v_and_b32 {v(vt + 1)}, 63, v0')
    a(f'v_lshrrev_b32 {v(vt + 2)}, 6, v0')
    a(f'v_lshlrev_b32 {v(vt + 2)}, 6, {v(vt + 2)}')
    a(f'v_lshl_add_u32 {v(vt + 1)}, {v(vt + 1)}, 2, {v(vt + 2)}')
    a(f's_lshl_b32 {s(base)}, s2, 9')
    a(f's_add_u32 {s(base)}, {s(base)}, {STAMP_OFF}')
    a(f'v_add_u32 {v(vt + 1)}, {s(base)}, {v(vt + 1)}')
    a('s_mov_b64 exec, 0xffff')
    a(f'global_store_dword {v(vt + 1)}, v255, {s(ptr, 2)}')


def probe(ia, ib, usemin):
    a = Asm()
    a('s_cmp_ge_u32 s2, 1')
    a('s_cbranch_scc1 P_END')
    a('s_load_dwordx2 s[4:5], s[0:1], 80')
    a('v_lshlrev_b32 v1, 9, v0')
    a(f'v_add_u32 v2, {STAMP_OFF + ia * 4}, v1')
    a(f'v_add_u32 v3, {STAMP_OFF + ib * 4}, v1')
    a('s_waitcnt lgkmcnt(0)')
    a('s_memrealtime s[8:9]')
    a('v_mov_b32 v4, 0')
    a(f'v_mov_b32 v5, {0 if usemin else -1}')
    a('s_waitcnt lgkmcnt(0)')
    for q in range(4):
        for w in range(8):
            a(f'global_load_dword v{10 + w}, v2, s[4:5] offset:{w * 64}')
            a(f'global_load_dword v{20 + w}, v3, s[4:5] offset:{w * 64}')
        a('s_waitcnt vmcnt(0)')
        for w in range(8):
            a(f'v_sub_u32 v{10 + w}, s8, v{10 + w}')
            a(f'v_sub_u32 v{20 + w}, s8, v{20 + w}')
            a(f'v_max_u32 v4, v4, v{10 + w}')
            a(f'v_{"max" if usemin else "min"}_u32 v5, v5, v{20 + w}')
        a('v_add_u32 v2, 32768, v2')
        a('v_add_u32 v3, 32768, v3')
    a('s_mov_b32 s10, 0')
    a(f's_mov_b32 s11, {0 if usemin else -1}')
    for l in range(64):
        a(f'v_readlane_b32 s12, v4, {l}')
        a(f'v_readlane_b32 s13, v5, {l}')
        a('s_max_u32 s10, s10, s12')
        a(f's_{"max" if usemin else "min"}_u32 s11, s11, s13')
    a('s_sub_u32 s10, s10, s11')
    a('s_min_u32 s10, s10, 10000')
    a('s_mul_i32 s10, s10, 20')
    a('s_memrealtime s[8:9]')
    a('s_waitcnt lgkmcnt(0)')
    a.label('P_SPIN')
    a('s_memrealtime s[12:13]')
    a('s_waitcnt lgkmcnt(0)')
    a('s_sub_u32 s12, s12, s8')
    a('s_cmp_lt_u32 s12, s10')
    a('s_cbranch_scc1 P_SPIN')
    a.label('P_END')
    a('s_endpgm')
    return a


def emit(kernel):
    a, lds = kernel()
    n = a.fix_hazards(False)
    ref = open('cdna_kernels/' + NAME + '.s.ref').read().split('\n')
    head = [l for l in ref if l.startswith(';') and '@launch' not in l and 'Override' not in l and 'grid=ceil' not in l]
    out = '\n'.join(head) + '\n'
    if OPT['probe'] >= 0:
        out += f'; @launch kernel={NAME}_kernel grid=(256,1,1) block=(512,1,1) lds={lds}\n'
        out += '; @launch kernel=probe_kernel grid=(1,1,1) block=(64,1,1) lds=0\n'
    else:
        out += f'; @launch grid=(256,1,1) block=(512,1,1) lds={lds}\n'
    out += '.amdgcn_target "amdgcn-amd-amdhsa--gfx950"\n.text\n'
    out += kernel_text(NAME + '_kernel', a)
    if OPT['probe'] >= 0:
        p = OPT['probe']
        pk = probe(p // 1000, p // 10 % 100, p % 10)
        pk.fix_hazards()
        out += kernel_text('probe_kernel', pk)
    out += '.section .rodata,"a"\n'
    out += descriptor(NAME + '_kernel', *a.max_regs())
    if OPT['probe'] >= 0:
        out += descriptor('probe_kernel', 32, 16)
    open(sys.argv[1], 'w').write(out)
    print('regs', a.max_regs(), 'lds', lds, 'nops', n, 'instrs', sum(1 for i in a.ins if i.kind != 'none'))
```

```python
import json
from common import *

parse(dict(dev=1, spin=16, snake=3, pf=0, pfstep=6, wsoff=0, outpol=1, ng=2, zlo=1, codepf=1, prime=0, pf2=0, lateb=1, stag=0, stagsh=0, stagm=3, pa=24, bias=16, tlb=0, pf3=0, pfa=0, pfb=0, pfc=0, pfd=1, pfr=3, prio=0,
           nocomp=0, smask=0, paylate=0, clk=0))
NULLW = 0x7FFF0000
CSTR = 8192 + 256
PSTR = 16384 + 256
CELL_OFF = 4096
PAY_OFF = 3 << 20
LATE_OFF = 8 << 20
WS_SPAN = 9 << 20
NG = OPT['ng']
assert NG == 2
K = 4 * NG


def kernel():
    a = Asm()
    NCNT = 0
    TOT = 512
    CNTW = 576
    FLAG = 608
    GS = 640
    TAB = 768
    NODE = 1280
    PCNT = 1536
    GCNT = 2560
    LCNT = 2592
    LATE = 2816
    TBL = 3072
    CELL = 4096
    PST = CELL + 8192
    AGG, AGG_W, AGG_ROW = 4096, 20 * 272, 272
    CST = AGG + 8 * AGG_W
    ENT = CST + 3072
    BLK, BLK_G = ENT + 8192, 192
    BLK_W = BLK_G * 38
    IMG, IMG_R = BLK + 8 * BLK_W + 512, 288
    LDS = IMG + 128 * IMG_R
    assert ENT + 8192 < 65536 and LDS <= 163840
    sX, sWS, sO, sY, sE, sD, sS = 4, 8, 12, 16, 20, 24, 28
    sPTR = 32
    pX, pSRC, pDST, pY, pEF, pWR, pCG, pWM, pOUT, pDBG, pWS = [sPTR + 2 * i for i in range(11)]
    sBK, sW, sMODE, sBASE, sSH, sCNT, sT0, sT1, sOFF, sMUL, sSPIN, sG, sSL, sK3FF = range(54, 68)
    sWD = 68
    sPERM0, sPERM1, sLOFF = 73, 74, 75
    sV = 76
    sM = 84
    sODD = 86
    sM2 = 88
    sST = 90
    vLN, vL16, vSMA = 1, 2, 3
    vACC = 4
    vX = 52
    vTP = vX + 64
    vZ = vTP + 32
    vE = vZ + 16
    vT = vE + 16
    vWD = vT + 4
    vWH = vWD + 4
    vWL, vCG, vONE = vWH + 4, vWH + 8, vWH + 10
    vAT, vAW, vTAG, vEP = vWH + 12, vWH + 13, vWH + 14, vWH + 15
    vCA, vFA, vB0, vT16 = vEP + 1, vEP + 2, vEP + 3, vEP + 4
    vC = vT16 + 1
    vL = vC + 4
    vZERO = vL + 4
    vG = vZERO + 4
    assert vC % 2 == 0 and vG + 24 <= 255, vG
    vIN = vX
    vWM = vX + 12
    vP = vTP
    vQ = vX + 28
    NULLE = 40
    vPF = vG + 24

    def bar():
        a('s_waitcnt lgkmcnt(0)')
        a('s_barrier')

    def clears():
        for r in range(0, 4, 2):
            a(f'v_mov_b64 {v(vZERO + r, 2)}, 0')
        a(f'ds_write_b128 {v(vT16)}, {v(vZERO, 4)} offset:{CELL}')
        a(f'v_lshlrev_b32 {v(vG + 3)}, 3, v0')
        a(f'ds_write_b64 {v(vG + 3)}, {v(vZERO, 2)}')

    def wmix_loads():
        for i in range(4):
            a(f'global_load_dwordx4 {v(vWM + 4 * i, 4)}, {v(vT16)}, {s(pWM, 2)}' if i == 0 else
              f'global_load_dwordx4 {v(vWM + 4 * i, 4)}, {v(vG + 4 + i)}, {s(pWM, 2)}')
        if OPT['pf']:
            a(f'global_load_dword {v(vG + 9)}, {v(vG + 9)}, {s(pX, 2)}')
    NC = 4 + (1 if OPT['pf'] else 0) + OPT['prime']

    npf = [0]

    def pfissue(n):
        for _ in range(n):
            a(f'global_load_dword {v(vPF + 1)}, {v(vPF)}, {s(pX, 2)}')
            a(f'v_add_u32 {v(vPF)}, {256 * OPT["pfr"] * OPT["pfstep"] // 2 * 1024}, {v(vPF)}')
            npf[0] += 1
        assert npf[0] * 256 * OPT['pfr'] * OPT['pfstep'] // 2 < N

    def early_setup():
        if OPT['pfa'] or OPT['pfb'] or OPT['pfc'] or OPT['pfd']:
            a(f's_lshr_b32 {s(sOFF)}, s2, 3')
            a(f's_lshl_b32 {s(sOFF)}, {s(sOFF)}, 3')
            a(f's_add_u32 {s(sOFF)}, {s(sOFF)}, {s(sW)}')
            a(f's_mul_i32 {s(sOFF)}, {s(sOFF)}, {OPT["pfr"]}')
            a(f'v_lshrrev_b32 {v(vPF)}, 3, {v(vLN)}')
            a(f'v_min_u32 {v(vPF)}, {OPT["pfr"] - 1}, {v(vPF)}')
            a(f'v_add_u32 {v(vPF)}, {s(sOFF)}, {v(vPF)}')
            a(f'v_mul_u32_u24 {v(vPF)}, {OPT["pfstep"]}, {v(vPF)}')
            a(f'v_lshrrev_b32 {v(vPF)}, 1, {v(vPF)}')
            a(f'v_and_b32 {v(vPF + 1)}, 7, v0')
            a(f'v_lshlrev_b32 {v(vPF + 1)}, 7, {v(vPF + 1)}')
            a(f'v_lshl_add_u32 {v(vPF)}, {v(vPF)}, 10, {v(vPF + 1)}')
        for i in range(1, 4):
            a(f'v_add_u32 {v(vG + 4 + i)}, {8192 * i}, {v(vT16)}')
        if OPT['pf']:
            a(f's_lshr_b32 {s(sOFF)}, s2, 3')
            a(f's_mul_i32 {s(sOFF)}, {s(sOFF)}, {OPT["pf"] * 8}')
            a(f'v_lshrrev_b32 {v(vG + 9)}, 3, v0')
            a(f'v_min_u32 {v(vG + 9)}, {OPT["pf"] * 8 - 1}, {v(vG + 9)}')
            a(f'v_add_u32 {v(vG + 9)}, {s(sOFF)}, {v(vG + 9)}')
            a(f'v_mul_u32_u24 {v(vG + 9)}, {OPT["pfstep"]}, {v(vG + 9)}')
            a(f'v_lshrrev_b32 {v(vG + 9)}, 1, {v(vG + 9)}')
            a(f'v_and_b32 {v(vG + 10)}, 7, v0')
            a(f'v_lshlrev_b32 {v(vG + 10)}, 7, {v(vG + 10)}')
            a(f'v_lshl_add_u32 {v(vG + 9)}, {v(vG + 9)}, 10, {v(vG + 10)}')

    a('s_cmp_ge_u32 s2, 256')
    a('s_cbranch_scc1 K_END')
    stamp(a, 0, sST)
    a(f's_load_dwordx16 {s(sPTR, 16)}, s[0:1], 0')
    a(f's_load_dwordx4 {s(pOUT, 4)}, s[0:1], 64')
    a(f's_load_dwordx2 {s(pWS, 2)}, s[0:1], 80')
    a(f'v_lshrrev_b32 {v(vG)}, 6, v0')
    a(f'v_and_b32 {v(vLN)}, 63, v0')
    a(f'v_readfirstlane_b32 {s(sW)}, {v(vG)}')
    a(f'v_lshlrev_b32 {v(vT16)}, 4, v0')
    a(f'v_lshlrev_b32 {v(vG + 2)}, 3, v0')
    a(f'v_lshlrev_b32 {v(vL16)}, 4, {v(vLN)}')
    a(f'v_lshlrev_b32 {v(vSMA)}, 3, {v(vLN)}')
    a(f's_mul_i32 {s(sT0)}, s2, 2500')
    a(f's_mul_i32 {s(sT1)}, s2, 5000')
    for d in (sD, sS):
        a(f's_mov_b32 {s(d + 2)}, {E * 4}')
        a(f's_mov_b32 {s(d + 3)}, 0x20000')
    for d in (sY, sE):
        a(f's_mov_b32 {s(d + 2)}, {E * 8}')
        a(f's_mov_b32 {s(d + 3)}, 0x20000')
    a(f's_mov_b32 {s(sWS + 2)}, {WS_SPAN}')
    a(f's_mov_b32 {s(sWS + 3)}, 0x20000')
    a(f's_mov_b32 {s(sSL)}, {OPT["stag"]}')
    a(f's_mov_b32 {s(sODD)}, 0xaaaaaaaa')
    a(f's_mov_b32 {s(sODD + 1)}, 0xaaaaaaaa')
    a('v_cmp_gt_u32 vcc, 313, v0')
    a(f's_mov_b64 {s(sV, 2)}, vcc')
    a('v_cmp_gt_u32 vcc, 312, v0')
    a(f's_mov_b64 {s(sV + 2, 2)}, vcc')
    if OPT['codepf']:
        a(f's_cmp_lt_u32 {s(sW)}, 6')
        a('s_cbranch_scc1 NOCPF')
        a(f's_getpc_b64 {s(sM, 2)}')
        a.label('CPF_BASE')
        a(f'v_and_b32 {v(vG + 13)}, 127, v0')
        a(f'v_min_u32 {v(vG + 13)}, (PAY_SLOW-CPF_BASE)/128, {v(vG + 13)}')
        a(f'v_lshlrev_b32 {v(vG + 13)}, 7, {v(vG + 13)}')
        a(f'global_load_dword {v(vG + 13)}, {v(vG + 13)}, {s(sM, 2)}')
        a.label('NOCPF')
    clears()
    a(f'v_mov_b32 {v(vP)}, 1')
    a(f's_mov_b64 {s(sV + 4, 2)}, 0')
    a(f's_mov_b64 {s(sV + 6, 2)}, 0')
    early_setup()
    a('s_waitcnt lgkmcnt(0)')
    stamp(a, 8, sST)
    a(f's_mov_b64 {s(sD, 2)}, {s(pDST, 2)}')
    a(f's_mov_b64 {s(sS, 2)}, {s(pSRC, 2)}')
    a(f's_mov_b64 {s(sY, 2)}, {s(pY, 2)}')
    a(f's_mov_b64 {s(sE, 2)}, {s(pEF, 2)}')
    a(f's_add_u32 {s(sWS)}, {s(pWS)}, {OPT["wsoff"] << 20}')
    a(f's_addc_u32 {s(sWS + 1)}, {s(pWS + 1)}, 0')
    a(f's_cmp_ge_u32 {s(sW)}, 5')
    a('s_cbranch_scc1 NOIN')
    a(f'buffer_load_dwordx2 {v(vIN, 2)}, {v(vG + 2)}, {s(sD, 4)}, {s(sT0)} offen')
    a(f'buffer_load_dwordx2 {v(vIN + 2, 2)}, {v(vG + 2)}, {s(sS, 4)}, {s(sT0)} offen')
    a.label('NOIN')
    a(f'buffer_load_dword {v(vEP)}, off, {s(sWS, 4)}, 0')
    a('s_cbranch_scc1 NOIN2')
    a(f'buffer_load_dwordx4 {v(vIN + 4, 4)}, {v(vT16)}, {s(sY, 4)}, {s(sT1)} offen')
    a(f'buffer_load_dwordx4 {v(vIN + 8, 4)}, {v(vT16)}, {s(sE, 4)}, {s(sT1)} offen')
    a.label('NOIN2')
    if OPT['tlb']:
        a(f's_cmp_lg_u32 {s(sW)}, 5')
        a('s_cbranch_scc1 NOTLB')
        a(f'v_min_u32 {v(vG + 11)}, 7, {v(vLN)}')
        a(f'v_mul_u32_u24 {v(vG + 12)}, {36 * CSTR}, {v(vG + 11)}')
        a(f's_mov_b32 s3, {CELL_OFF + 8192}')
        a(f'buffer_load_dword {v(vIN)}, {v(vG + 12)}, {s(sWS, 4)}, s3 offen')
        a(f'v_mul_u32_u24 {v(vG + 12)}, {36 * PSTR}, {v(vG + 11)}')
        a(f's_mov_b32 s3, {PAY_OFF + 16384}')
        a(f'buffer_load_dword {v(vIN + 1)}, {v(vG + 12)}, {s(sWS, 4)}, s3 offen')
        a(f's_mov_b32 s3, {LATE_OFF + 0x30000}')
        a(f'buffer_load_dword {v(vIN + 2)}, off, {s(sWS, 4)}, s3')
        a(f'v_min_u32 {v(vG + 11)}, 10, {v(vLN)}')
        a(f'v_mul_u32_u24 {v(vG + 12)}, 1023996, {v(vG + 11)}')
        a(f'global_load_dword {v(vIN + 3)}, {v(vG + 12)}, {s(pX, 2)}')
        if OPT['tlb'] > 1:
            a(f'global_load_dword {v(vIN + 4)}, {v(vG + 12)}, {s(pOUT, 2)}')
        a.label('NOTLB')
    a(f's_lshl_b32 {s(sT0)}, {s(sW)}, 10')
    a(f'v_add_u32 {v(vG)}, {s(sT0)}, {v(vL16)}')
    a(f's_mul_i32 {s(sOFF)}, s2, {CSTR}')
    a(f's_add_u32 {s(sOFF)}, {s(sOFF)}, {CELL_OFF}')
    stamp(a, 9, sST)
    bar()
    if OPT['prime']:
        a(f'buffer_store_dwordx4 {v(vZERO, 4)}, {v(vG)}, {s(sWS, 4)}, {s(sOFF)} offen sc1')
    wmix_loads()
    a(f's_cmp_ge_u32 {s(sW)}, 5')
    a('s_cbranch_scc1 HELPER')
    a(f's_waitcnt vmcnt({NC + 4})')
    stamp(a, 1, sST)
    for i in range(2):
        t = vP + 2 + 8 * i
        a(f'v_min_u32 {v(vIN + i)}, {N - 1}, {v(vIN + i)}')
        a(f'v_and_b32 {v(t)}, 255, {v(vIN + i)}')
        a(f'v_lshlrev_b32 {v(t + 1)}, 2, {v(t)}')
        a(f'v_lshrrev_b32 {v(t + 2)}, 5, {v(t)}')
        a(f'v_lshlrev_b32 {v(t + 3)}, 2, {v(t + 2)}')
        a(f's_mov_b64 exec, {s(sV + 2 * i, 2)}')
        a(f'ds_add_rtn_u32 {v(t + 4)}, {v(t + 1)}, {v(vP)} offset:{PCNT}')
        a(f'ds_add_rtn_u32 {v(t + 5)}, {v(t + 3)}, {v(vP)} offset:{GCNT}')
    a(f's_mov_b64 exec, {s(sV, 2)}')
    a(f's_waitcnt vmcnt({NC + 3})')
    for i in range(2):
        t = vP + 2 + 8 * i
        a(f'v_min_u32 {v(vIN + 2 + i)}, {N - 1}, {v(vIN + 2 + i)}')
        if OPT['stag']:
            a(f'v_bfe_u32 {v(t + 6)}, {v(vIN + i)}, {OPT["stagsh"]}, {OPT["stagm"].bit_length()}')
            a(f'v_mad_u32_u24 {v(t + 6)}, {v(t + 6)}, {s(sSL)}, {v(vIN + 2 + i)}')
            a(f'v_mul_u32_u24 {v(t + 6)}, {(4 << 26) // (N + OPT["stag"] * OPT["stagm"])}, {v(t + 6)}')
        else:
            a(f'v_mul_u32_u24 {v(t + 6)}, 26844, {v(vIN + 2 + i)}')
        a(f'v_lshrrev_b32 {v(t + 6)}, 26, {v(t + 6)}')
        a(f'v_lshl_or_b32 {v(t + 6)}, {v(vIN + 2 + i)}, 10, {v(t + 6)}')
        a(f'v_lshrrev_b32 {v(t + 7)}, 8, {v(vIN + i)}')
        a(f'v_or_b32 {v(t + 1)}, 64, {v(t + 7)}')
        a(f'v_lshl_or_b32 {v(t + 6)}, {v(t + 1)}, 3, {v(t + 6)}')
    for i in range(2):
        t = vP + 2 + 8 * i
        a(f's_waitcnt lgkmcnt({2 - 2 * i})' if i == 0 else 's_waitcnt lgkmcnt(0)')
        a(f'v_lshrrev_b32 {v(t + 1)}, 4, {v(t + 5)}')
        a(f'v_and_b32 {v(t + 1)}, 0xfffffff8, {v(t + 1)}')
        a(f'v_or_b32 {v(t + 1)}, {v(t + 1)}, {v(t + 4)}')
        a(f'v_cmp_gt_u32 vcc, 7, {v(t + 1)}')
        a(f'v_lshl_or_b32 {v(t + 6)}, {v(t + 5)}, 24, {v(t + 6)}')
        a(f'v_mul_u32_u24 {v(t + 1)}, 18, {v(t + 4)}')
        a(f'v_and_b32 {v(t + 1)}, 28, {v(t + 1)}')
        a(f'v_lshl_add_u32 {v(t + 1)}, {v(t)}, 5, {v(t + 1)}')
        a(f's_andn2_b64 {s(sV + 4 + 2 * i, 2)}, {s(sV + 2 * i, 2)}, vcc')
        a(f's_and_b64 exec, {s(sV + 2 * i, 2)}, vcc')
        a(f'ds_write_b32 {v(t + 1)}, {v(t + 6)} offset:{CELL}')
        a(f's_mov_b64 exec, {s(sV, 2)}')
    a('s_mov_b64 exec, -1')
    a(f's_waitcnt vmcnt({NC + 2})')
    a('s_branch JOIN2')
    a.label('HELPER')
    a(f's_cmp_lg_u32 {s(sW)}, 7')
    a('s_cbranch_scc1 HELP_W')
    a(f'v_lshlrev_b32 {v(vG + 11)}, 2, {v(vLN)}')
    for k in range(4):
        a(f'global_load_dword {v(vIN + k)}, {v(vG + 11)}, {s(pWR, 2)} offset:{k * 256}')
    a(f'v_and_b32 {v(vG + 11)}, 3, v0')
    a(f'v_lshlrev_b32 {v(vG + 11)}, 5, {v(vG + 11)}')
    a(f'v_bfe_u32 {v(vG + 12)}, v0, 2, 2')
    a(f'v_lshl_add_u32 {v(vG + 11)}, {v(vG + 12)}, 1, {v(vG + 11)}')
    for f in range(4):
        a(f'global_load_ushort {v(vP + 4 + f)}, {v(vG + 11)}, {s(pCG, 2)} offset:{f * 8}')
    a(f's_getpc_b64 {s(sM, 2)}')
    a.label('TBL_BASE')
    a(f'v_min_u32 {v(vG + 11)}, 39, {v(vLN)}')
    a('s_lshr_b32 s3, s2, 3')
    a('s_and_b32 s3, s3, 16')
    a(f's_and_b32 {s(sM2)}, s2, 7')
    a(f's_or_b32 s3, s3, {s(sM2)}')
    a('s_cselect_b32 s3, 0, 160')
    a(f's_add_u32 s3, s3, rank_table-TBL_BASE')
    a(f'v_lshl_add_u32 {v(vG + 11)}, {v(vG + 11)}, 2, s3')
    a(f'global_load_dword {v(vIN + 4)}, {v(vG + 11)}, {s(sM, 2)}')
    a(f's_waitcnt vmcnt({NC + 9})')
    a('s_branch JOIN2')
    a.label('HELP_W')
    if OPT['tlb']:
        a(f's_cmp_eq_u32 {s(sW)}, 5')
        a(f's_waitcnt vmcnt({NC + 3 + OPT["tlb"]})')
        a('s_cbranch_scc1 JOIN2')
    a(f's_waitcnt vmcnt({NC})')
    a.label('JOIN2')
    a(f'v_add_u32 {v(vEP)}, 1, {v(vEP)}')
    a(f'v_lshl_or_b32 {v(vTAG)}, {v(vEP)}, 1, 1')
    bar()
    a(f'ds_read_b128 {v(vC, 4)}, {v(vG)} offset:{CELL}')

    def pairsum(d, c):
        a(f'v_add3_u32 {v(d)}, {v(c)}, {v(c + 1)}, {v(c + 2)}')
        a(f'v_add_u32 {v(d)}, {v(d)}, {v(c + 3)}')
        a(f'v_add_u32_dpp {v(d)}, {v(d)}, {v(d)} quad_perm:[1,0,3,2] row_mask:0xf bank_mask:0xf')

    a(f's_or_b64 {s(sM, 2)}, {s(sV + 4, 2)}, {s(sV + 6, 2)}')
    a('s_waitcnt lgkmcnt(0)')
    pairsum(vG + 1, vC)
    a(f'v_sub_u32 {v(vG + 1)}, {v(vTAG)}, {v(vG + 1)}')
    a(f'v_cndmask_b32 {v(vC + 3)}, {v(vC + 3)}, {v(vG + 1)}, {s(sODD, 2)}')
    a(f'buffer_store_dwordx4 {v(vC, 4)}, {v(vG)}, {s(sWS, 4)}, {s(sOFF)} offen sc1')
    pfissue(OPT['pfa'])
    stamp(a, 2, sST)
    a(f's_cmp_lg_u64 {s(sM, 2)}, 0')
    a('s_cbranch_scc1 LATE_PUT')
    a.label('LATE_DONE')
    a(f's_cmp_ge_u32 {s(sW)}, 5')
    a('s_cbranch_scc1 NOSTAGE')
    a(f's_waitcnt vmcnt({NC + 1 + OPT["pfa"]})')
    a(f'v_swap_b32 {v(vIN + 6)}, {v(vIN + 8)}')
    a(f'v_swap_b32 {v(vIN + 7)}, {v(vIN + 9)}')
    for i in range(2):
        t = vP + 2 + 8 * i
        a(f'v_and_b32 {v(t + 5)}, 127, {v(t + 5)}')
        a(f'v_lshl_or_b32 {v(t + 5)}, {v(t + 2)}, 7, {v(t + 5)}')
        a(f'v_lshlrev_b32 {v(t + 5)}, 4, {v(t + 5)}')
        a(f's_mov_b64 exec, {s(sV + 2 * i, 2)}')
        a(f'ds_write_b128 {v(t + 5)}, {v(vIN + 4 + 4 * i, 4)} offset:{PST}')
    a('s_mov_b64 exec, -1')
    a.label('NOSTAGE')
    a(f'v_add_u32 {v(vG)}, {s(sT0)}, {v(vG)}')
    a(f's_lshl_b32 {s(sT0)}, {s(sW)}, 2')
    a(f'v_mov_b32 {v(vG + 1)}, {s(sT0)}')
    a(f's_lshl_b32 {s(sT0)}, {s(sW)}, 5')
    a(f'v_and_b32 {v(vG + 2)}, 16, {v(vL16)}')
    a(f'v_add_u32 {v(vG + 3)}, {s(sT0)}, {v(vG + 2)}')
    a(f's_mul_i32 {s(sOFF)}, s2, {PSTR}')
    a(f's_add_u32 {s(sOFF)}, {s(sOFF)}, {PAY_OFF}')
    a(f's_and_b32 {s(sG)}, s2, 7')
    a(f's_lshl_b32 {s(sT0)}, {s(sG)}, 5')
    a(f's_lshr_b32 {s(sBK)}, s2, 3')
    a(f's_add_u32 {s(sBK)}, {s(sBK)}, {s(sT0)}')
    a(f'v_lshrrev_b32 {v(vG + 4)}, 1, v0')
    a(f'v_mul_u32_u24 {v(vCA)}, {CSTR}, {v(vG + 4)}')
    a(f'v_add_u32 {v(vCA)}, {v(vCA)}, {v(vG + 2)}')
    a(f's_lshl_b32 {s(sT1)}, {s(sBK)}, 5')
    a(f's_add_u32 {s(sT1)}, {s(sT1)}, {CELL_OFF}')
    bar()
    p0 = vP + 24
    a(f'ds_read_b32 {v(vG + 1)}, {v(vG + 1)} offset:{GCNT}')
    for i in range(2):
        a(f'ds_read_b128 {v(p0 + 4 * i, 4)}, {v(vG)} offset:{PST + 1024 * i}')
    a(f'ds_read_b128 {v(vL, 4)}, {v(vG + 3)} offset:{LATE}')
    a(f'v_and_b32 {v(vG + 5)}, 56, {v(vLN)}')
    a(f'v_add_u32 {v(vG + 6)}, 64, {v(vG + 5)}')
    a(f'v_mov_b32 {v(vZERO + 1)}, {NULLW}')
    a(f'v_mov_b32 {v(vZERO + 3)}, {NULLW}')
    a('s_waitcnt lgkmcnt(3)')
    for i in range(2):
        a(f'v_cmp_lt_u32 vcc, {v(vG + 5 + i)}, {v(vG + 1)}')
        a(f'v_cndmask_b32 {v(vG + 5 + i)}, {v(vZERO + 1)}, {v(vG)}, vcc')

    def pay_stores():
        for i in range(2):
            a(f'buffer_store_dwordx4 {v(p0 + 4 * i, 4)}, {v(vG + 5 + i)}, {s(sWS, 4)}, {s(sOFF)} offen offset:{1024 * i} sc1')

    def setup_a():
        a(f'v_mov_b32 {v(vZERO)}, {NULLE}')
        a(f'v_mov_b32 {v(vZERO + 2)}, {NULLE}')
        a(f'ds_write_b128 {v(vT16)}, {v(vZERO, 4)} offset:{ENT}')
        a(f's_mov_b32 {s(sPERM0)}, 0x05040100')
        a(f's_mov_b32 {s(sPERM1)}, 0x07060302')
        a(f'v_lshrrev_b32 {v(vG + 7)}, 4, v0')
        a(f'v_mul_u32_u24 {v(vG + 7)}, {IMG_R}, {v(vG + 7)}')
        a(f'v_bfe_u32 {v(vG + 8)}, v0, 2, 2')
        a(f'v_lshl_add_u32 {v(vG + 7)}, {v(vG + 8)}, 6, {v(vG + 7)}')
        a(f'v_and_b32 {v(vG + 8)}, 3, v0')
        a(f'v_lshl_add_u32 {v(vG + 7)}, {v(vG + 8)}, 3, {v(vG + 7)}')
        a(f'v_add_u32 {v(vG + 7)}, {IMG}, {v(vG + 7)}')
        for i in range(4):
            t = vQ + 4 * i
            w = vWM + 4 * i
            a(f'v_perm_b32 {v(t)}, {v(w + 1)}, {v(w)}, {s(sPERM0)}')
            a(f'v_perm_b32 {v(t + 1)}, {v(w + 3)}, {v(w + 2)}, {s(sPERM0)}')
            a(f'v_perm_b32 {v(t + 2)}, {v(w + 1)}, {v(w)}, {s(sPERM1)}')
            a(f'v_perm_b32 {v(t + 3)}, {v(w + 3)}, {v(w + 2)}, {s(sPERM1)}')
            a(f'ds_write2_b64 {v(vG + 7)}, {v(t, 2)}, {v(t + 2, 2)} offset0:0 offset1:4')
            if i < 3:
                a(f'v_add_u32 {v(vG + 7)}, {32 * IMG_R}, {v(vG + 7)}')

    rt = [vZ + 8 * r for r in range(4)]

    def setup_b():
        srd(a, sO, pOUT, N * 1024)
        a(f's_mov_b32 {s(sX)}, {s(pX)}')
        a(f's_or_b32 {s(sX + 1)}, {s(pX + 1)}, 0x100000')
        a(f's_mov_b32 {s(sX + 2)}, 64')
        a(f's_mov_b32 {s(sX + 3)}, 0x800000')
        a(f's_mov_b32 {s(sMODE)}, 0')
        a(f's_mov_b32 {s(sBASE)}, 0')
        a(f's_mov_b32 {s(sSH)}, 4')
        a(f's_mov_b32 {s(sMUL)}, 64')
        a(f's_mov_b32 {s(sK3FF)}, 0x3ff')
        a('s_cmp_eq_u32 s2, 0')
        a(f's_cselect_b32 {s(sSPIN)}, {OPT["dev"]}, 1')
        a(f's_mov_b32 {s(sCNT)}, 0')
        a(f'v_mul_u32_u24 {v(vB0)}, {PSTR}, {v(vG + 4)}')
        a(f's_lshl_b32 {s(sT0)}, {s(sG)}, 11')
        a(f's_add_u32 {s(sT0)}, {s(sT0)}, {PAY_OFF}')
        a(f'v_add_u32 {v(vB0)}, {s(sT0)}, {v(vB0)}')
        a(f'v_lshl_add_u32 {v(vFA)}, {v(vG + 4)}, 6, {v(vG + 2)}')
        a(f's_lshl_b32 {s(sLOFF)}, {s(sG)}, 14')
        a(f's_add_u32 {s(sLOFF)}, {s(sLOFF)}, {LATE_OFF}')
        if OPT['pf3']:
            a(f's_lshr_b32 {s(sT0)}, s2, 3')
            a(f's_mul_i32 {s(sT0)}, {s(sT0)}, {OPT["pf3"] * 8}')
            a(f'v_lshrrev_b32 {v(vT)}, 3, {v(vLN)}')
            a(f'v_min_u32 {v(vT)}, {OPT["pf3"] - 1}, {v(vT)}')
            a(f's_mul_i32 {s(sM)}, {s(sW)}, {OPT["pf3"]}')
            a(f's_add_u32 {s(sT0)}, {s(sT0)}, {s(sM)}')
            a(f'v_add_u32 {v(vT)}, {s(sT0)}, {v(vT)}')
            a(f'v_mul_u32_u24 {v(vT)}, {OPT["pfstep"]}, {v(vT)}')
            a(f'v_lshrrev_b32 {v(vT)}, 1, {v(vT)}')
            a(f'v_and_b32 {v(vT + 1)}, 7, v0')
            a(f'v_lshlrev_b32 {v(vT + 1)}, 7, {v(vT + 1)}')
            a(f'v_lshl_add_u32 {v(vT)}, {v(vT)}, 10, {v(vT + 1)}')
        for r in range(0, 48, 2):
            a(f'v_mov_b64 {v(vACC + r, 2)}, 0')

    def late_store():
        pairsum(vG + 1, vL)
        a(f'v_sub_u32 {v(vG + 1)}, {v(vTAG)}, {v(vG + 1)}')
        a(f'v_cndmask_b32 {v(vL + 3)}, {v(vL + 3)}, {v(vG + 1)}, {s(sODD, 2)}')
        a(f's_lshl_b32 {s(sT0)}, {s(sW)}, 8')
        a(f's_add_u32 {s(sT0)}, {s(sT0)}, s2')
        a(f's_lshl_b32 {s(sT0)}, {s(sT0)}, 6')
        a(f's_add_u32 {s(sT0)}, {s(sT0)}, {LATE_OFF}')
        a('s_mov_b64 exec, 3')

    a('s_waitcnt lgkmcnt(0)')
    pay_stores()
    pfissue(OPT['pfb'])
    stamp(a, 10, sST)
    a(f's_waitcnt vmcnt({3 + OPT["pfa"] + OPT["pfb"]})')
    setup_a()
    late_store()
    a(f's_waitcnt vmcnt({OPT["pfb"]})')
    a(f'buffer_store_dwordx4 {v(vL, 4)}, {v(vL16)}, {s(sWS, 4)}, {s(sT0)} offen sc1')
    a('s_mov_b64 exec, -1')
    stamp(a, 11, sST)
    a(f'buffer_load_dwordx4 {v(vC, 4)}, {v(vCA)}, {s(sWS, 4)}, {s(sT1)} offen sc1')
    setup_b()
    if OPT['pf3']:
        a(f'global_load_dword {v(vT)}, {v(vT)}, {s(pX, 2)}')
    a(f's_cmp_eq_u32 {s(sW)}, 7')
    a('s_cbranch_scc1 CONSTS')
    a.label('CONSTS_DONE')
    stamp(a, 12, sST)
    a(f's_waitcnt vmcnt({1 if OPT["pf3"] else 0})')
    stamp(a, 13, sST)
    a.label('POLL')
    pairsum(vG + 1, vC)
    a(f'v_cmp_ne_u32 vcc, {v(vTAG)}, {v(vG + 1)}')
    a('s_cbranch_vccnz REPOLL')
    pfissue(OPT['pfd'])
    stamp(a, 3, sST)
    a(f'v_cndmask_b32 {v(vC + 3)}, {v(vC + 3)}, 0, {s(sODD, 2)}')

    a.label('BATCH')
    for r in range(4):
        t, e = rt[r], vC + r
        a(f'v_cmp_ne_u32 {s(sV + 2 * r, 2)}, 0, {v(e)}')
        a(f'v_lshlrev_b32 {v(t)}, 3, {v(e)}')
        a(f'v_and_b32 {v(t + 1)}, 0x1f8, {v(e)}')
        a(f'v_lshlrev_b32 {v(t + 2)}, {v(t)}, 1')
        a(f'v_mov_b32 {v(t + 3)}, 1')
    for r in range(4):
        t = rt[r]
        a(f's_mov_b64 exec, {s(sV + 2 * r, 2)}')
        a(f'ds_add_rtn_u64 {v(t + 4, 2)}, {v(t + 1)}, {v(t + 2, 2)} offset:{NCNT}')
    a('s_mov_b64 exec, -1')
    a(f's_mul_i32 {s(sT0)}, {s(sW)}, 5')
    a(f's_lshl_b64 {s(sM, 2)}, 31, {s(sT0)}')
    a(f'v_sub_u32 {v(vG + 2)}, 63, {v(vLN)}')
    a(f'v_lshrrev_b32 {v(vG + 5)}, 1, {v(vSMA)}')
    a(f's_mov_b32 m0, {s(sT0)}')
    bar()
    a(f'ds_read_b64 {v(vG, 2)}, {v(vSMA)} offset:{NCNT}')
    a(f'ds_read_b32 {v(vG + 5)}, {v(vG + 5)} offset:{TBL}')
    if not OPT['lateb']:
        a(f'buffer_load_dwordx4 {v(vL, 4)}, {v(vFA)}, {s(sWS, 4)}, {s(sLOFF)} offen sc1')
    if OPT['pfc']:
        a(f's_cmp_lg_u32 {s(sMODE)}, 0')
        a('s_cbranch_scc1 NOPFC')
        pfissue(OPT['pfc'])
        a.label('NOPFC')
    a(f's_or_b32 {s(sOFF)}, {s(sW)}, s2')
    a(f's_or_b32 {s(sOFF)}, {s(sOFF)}, {s(sMODE)}')
    a('s_cbranch_scc0 BUMP')
    a.label('NOLATE')
    a(f's_mov_b32 {s(sOFF)}, 0x01010100')
    a('s_waitcnt lgkmcnt(1)')
    a(f'v_min_u32 {v(vG + 4)}, 0xffff, {v(vG + 1)}')
    a(f'v_mad_u32_u24 {v(vG + 2)}, {v(vG + 4)}, {s(sMUL)}, {v(vG + 2)}')
    a(f'v_mul_lo_u32 {v(vG + 1)}, {v(vG)}, {s(sOFF)}')
    for j in range(5):
        a(f'v_readlane_b32 {s(sWD + j)}, {v(vG + 2)}, {s(sT0)}')
        if j < 4:
            a(f's_add_u32 {s(sT0)}, {s(sT0)}, 1')
    for j in range(5):
        a(f'v_cmp_lt_u32 vcc, {s(sWD + j)}, {v(vG + 2)}')
        a(f's_bcnt1_i32_b64 {s(sWD + j)}, vcc')
    a('s_waitcnt lgkmcnt(0)')
    for j in range(5):
        a(f'v_readlane_b32 {s(sWD + j)}, {v(vG + 5)}, {s(sWD + j)}')
    for j in range(5):
        a(f'v_writelane_b32 {v(vG + 3)}, {s(sWD + j)}, m0')
        if j < 4:
            a('s_add_u32 m0, m0, 1')
    a(f's_mov_b64 exec, {s(sM, 2)}')
    a(f'v_bfe_u32 {v(vG + 8)}, {v(vG + 3)}, 7, 6')
    a(f'ds_add_rtn_u64 {v(vG + 6, 2)}, {v(vG + 8)}, {v(vG, 2)} offset:{TOT}')
    a(f'v_lshrrev_b32 {v(vG + 8)}, 1, {v(vG + 8)}')
    a(f'ds_add_u32 {v(vG + 8)}, {v(vG + 4)} offset:{CNTW}')
    a(f'v_lshrrev_b32 {v(vG + 8)}, 16, {v(vG + 3)}')
    a(f'ds_write_b32 {v(vG + 8)}, {v(vLN)} offset:{NODE}')
    a('s_waitcnt lgkmcnt(2)')
    a(f'v_and_b32 {v(vG + 7)}, 0xffff, {v(vG + 3)}')
    a(f'ds_write_b64 {v(vSMA)}, {v(vG + 6, 2)} offset:{TAB}')
    a('s_mov_b64 exec, -1')
    bar()
    for r in range(4):
        t = rt[r]
        a(f'ds_read_b64 {v(t + 6, 2)}, {v(t + 1)} offset:{TAB}')
    if OPT['lateb']:
        a(f'buffer_load_dwordx4 {v(vL, 4)}, {v(vFA)}, {s(sWS, 4)}, {s(sLOFF)} offen sc1')
    for r in range(4):
        t = rt[r]
        a('s_waitcnt lgkmcnt(3)')
        a(f'v_lshrrev_b32 {v(t + 1)}, 7, {v(t + 7)}')
        a(f'ds_read_b32 {v(t + 5)}, {v(t + 1)} offset:{TOT + 4}')
    for r in range(4):
        t = rt[r]
        a(f'v_bfi_b32 {v(t + 2)}, {s(sK3FF)}, {v(t + 7)}, {v(vC + r)}')
        a(f'v_mov_b32 {v(t + 3)}, {v(vB0)}')
        a(f'v_and_b32 {v(t + 7)}, 0x1c00, {v(t + 7)}')
    for r in range(4):
        t = rt[r]
        a(f's_waitcnt lgkmcnt({3 - r})')
        a(f'v_add3_u32 {v(t + 4)}, {v(t + 4)}, {v(t + 5)}, {v(t + 6)}')
        a(f'v_bfe_u32 {v(t + 4)}, {v(t + 4)}, {v(t)}, 8')
        a(f'v_lshl_add_u32 {v(t + 4)}, {v(t + 4)}, 3, {v(t + 7)}')
    for r in range(4):
        t = rt[r]
        a(f's_mov_b64 exec, {s(sV + 2 * r, 2)}')
        a(f'ds_write_b64 {v(t + 4)}, {v(t + 2, 2)} offset:{ENT}')
    a('s_mov_b64 exec, 1')
    a(f's_lshl_b32 {s(sT0)}, {s(sW)}, 2')
    a(f'v_mov_b32 {v(vG + 1)}, {s(sT0)}')
    a(f'v_mov_b32 {v(vG + 2)}, 4')
    a(f'ds_max_u32 {v(vG + 1)}, {v(vG + 2)} offset:{CNTW}')
    a('s_mov_b64 exec, -1')
    a(f's_lshl_b32 {s(sT0)}, {s(sW)}, 10')
    a(f'v_mov_b32 {v(vG + 1)}, {s(sT0)}')
    a(f'v_add_u32 {v(vG)}, {s(sT0)}, {v(vSMA)}')
    XM = 0x1ffc00 if OPT['smask'] else 0xfffc00
    bar()
    stamp(a, 14, sST)
    a(f'ds_read_b128 {v(vTP, 4)}, {v(vG + 1)} offset:{ENT}')
    a(f'ds_read_b128 {v(vTP + 4, 4)}, {v(vG + 1)} offset:{ENT + 16}')
    for i in range(3):
        a(f'ds_read_b128 {v(vWH + 4 * i, 4)}, {v(vL16)} offset:{CST + 1024 * i}')
    a(f's_and_b32 {s(sT0)}, {s(sBK)}, 31')
    a(f's_lshl_b32 {s(sT0)}, {s(sT0)}, 6')
    for j_ in range(4):
        if j_ % 2 == 0:
            a(f's_waitcnt lgkmcnt({4 - j_ // 2})')
        a(f'v_and_b32 {v(vTP + 2 * j_)}, {XM}, {v(vTP + 2 * j_)}')
        a(f'buffer_load_dwordx4 {v(vX + 4 * j_, 4)}, {v(vTP + 2 * j_)}, {s(sX, 4)}, 0 offen')
    a(f's_cmp_lg_u32 {s(sMODE)}, 0')
    a('s_cbranch_scc1 LATE_OK')
    a('s_waitcnt vmcnt(4)')
    a.label('LATECHK')
    pairsum(vG + 1, vL)
    a(f'v_xor_b32 {v(vG + 2)}, {s(sT0)}, {v(vL)}')
    a(f'v_and_b32 {v(vG + 2)}, 0x7ff, {v(vG + 2)}')
    a(f'v_add_u32 {v(vG + 2)}, -1, {v(vG + 2)}')
    a(f'v_cmp_ne_u32 vcc, {v(vTAG)}, {v(vG + 1)}')
    a(f'v_cmp_gt_u32 {s(sM, 2)}, 40, {v(vG + 2)}')
    a(f'v_cmp_ne_u32 {s(sM2, 2)}, 0, {v(vL + 1)}')
    a('s_cbranch_vccnz RELATE')
    a(f's_or_b64 {s(sM, 2)}, {s(sM, 2)}, {s(sM2, 2)}')
    a('s_cbranch_scc1 LATE_GET')
    a.label('LATE_OK')
    if OPT['stamps']:
        a(f'v_writelane_b32 v255, {s(sCNT)}, 15')
    a(f'v_lshrrev_b32 {v(vG + 1)}, 1, {v(vSMA)}')
    a(f's_mul_i32 {s(sT0)}, {s(sW)}, {BLK_W}')
    a(f's_add_u32 {s(sT0)}, {s(sT0)}, {BLK}')
    a(f'v_add_u32 {v(vAT)}, {s(sT0)}, {v(vSMA)}')
    a(f'v_mov_b32 {v(vAW)}, {s(sT0)}')
    a(f'v_lshrrev_b32 {v(vG + 2)}, 2, {v(vLN)}')
    a(f'v_mul_u32_u24 {v(vG + 2)}, {BLK_G}, {v(vG + 2)}')
    a(f'v_add_u32 {v(vG + 2)}, {s(sT0)}, {v(vG + 2)}')
    a(f'v_and_b32 {v(vG + 3)}, 3, {v(vLN)}')
    a(f'v_lshl_add_u32 {v(vG + 4)}, {v(vG + 3)}, 2, {v(vG + 2)}')
    a(f'v_add_u32 {v(vG + 5)}, {v(vG + 3)}, {v(vG + 2)}')
    a(f'v_lshl_add_u32 {v(vG + 6)}, {v(vG + 3)}, 3, {v(vG + 2)}')
    a(f'v_lshl_add_u32 {v(vG + 7)}, {v(vG + 3)}, 5, {v(vG + 2)}')
    bar()
    stamp(a, 4, sST)
    en = [vG + 8, vG + 10]
    pay = [vG + 12, vG + 16]
    payA = vZ + 8
    a(f'ds_read_b64 {v(en[0], 2)}, {v(vG)} offset:{ENT}')
    a(f'ds_read_b32 {v(vG + 1)}, {v(vG + 1)} offset:{CNTW}')
    a(f'ds_read_b64 {v(en[1], 2)}, {v(vG)} offset:{ENT + 512}')
    a('s_waitcnt lgkmcnt(1)')
    a(f'v_readlane_b32 {s(sCNT)}, {v(vG + 1)}, {s(sW)}')
    a(f'v_cmp_lt_u32 vcc, 128, {v(vG + 1)}')
    a(f'v_and_b32 {v(vG + 20)}, {XM}, {v(en[0])}')
    a(f's_and_b32 {s(sT0)}, vcc_lo, 0x1ff')
    a('s_cbranch_scc1 SLOW_ENTER')
    a(f'ds_write_b32 {v(vG + 4)}, {v(vG + 20)} offset:176')
    a(f'ds_read_b128 {v(vTP, 4)}, {v(vAW)} offset:{176 + BLK_G}')
    a(f'v_lshrrev_b32 {v(vG + 21)}, 24, {v(en[0])}')
    a(f'v_lshl_add_u32 {v(en[0] + 1)}, {v(vG + 21)}, {s(sSH)}, {v(en[0] + 1)}')
    a(f's_add_u32 {s(sCNT)}, {s(sCNT)}, 3')
    a(f's_lshr_b32 {s(sCNT)}, {s(sCNT)}, 2')
    a(f's_cmp_lg_u32 {s(sMODE)}, 0')
    a('s_cbranch_scc1 PAY_SLOW')
    a(f's_mov_b64 exec, {(1 << OPT["pa"]) - 1:#x}')
    a(f'buffer_load_dwordx4 {v(payA, 4)}, {v(en[0] + 1)}, {s(sWS, 4)}, 0 offen sc1')
    a('s_mov_b64 exec, -1')
    a('s_waitcnt lgkmcnt(0)')
    for j_ in range(4):
        a(f'buffer_load_dwordx4 {v(vX + 16 + 4 * j_, 4)}, {v(vTP + j_)}, {s(sX, 4)}, 0 offen')
    a(f'v_lshrrev_b32 {v(vG + 21)}, 24, {v(en[1])}')
    a(f'v_lshl_add_u32 {v(en[1] + 1)}, {v(vG + 21)}, {s(sSH)}, {v(en[1] + 1)}')
    a.label('PAY_JOIN')
    a(f'v_and_b32 {v(vG + 20)}, {XM}, {v(en[1])}')
    a(f'ds_write_b32 {v(vG + 4)}, {v(vG + 20)} offset:{176 + 16 * BLK_G}')
    for st in range(2):
        a(f'ds_write_b8 {v(vG + 5)}, {v(en[st])} offset:{160 + (16 * st + 1) * BLK_G}')

    vB = vX + 32
    vSO = vC
    vAA, vAG, vGS = vC + 5, vC + 6, vC + 7
    a(f'v_lshrrev_b32 {v(vG + 21)}, 4, {v(vLN)}')
    a(f'v_bfe_u32 {v(vG + 22)}, {v(vLN)}, 2, 2')
    a(f'v_lshl_add_u32 {v(vG + 22)}, {v(vG + 21)}, 3, {v(vG + 22)}')
    a(f'v_mul_u32_u24 {v(vG + 22)}, {IMG_R}, {v(vG + 22)}')
    a(f'v_lshl_add_u32 {v(vG + 22)}, {v(vG + 3)}, 3, {v(vG + 22)}')
    a(f's_and_b32 {s(sT1)}, {s(sW)}, 3')
    a(f's_lshl_b32 {s(sOFF)}, {s(sT1)}, 6')
    a(f's_add_u32 {s(sOFF)}, {s(sOFF)}, {IMG}')
    a(f'v_add_u32 {v(vG + 22)}, {s(sOFF)}, {v(vG + 22)}')
    a(f's_and_b32 {s(sT0)}, {s(sW)}, 4')
    a(f's_mul_i32 {s(sOFF)}, {s(sT0)}, 20')
    a(f'v_lshl_add_u32 {v(vG + 23)}, {v(vG + 21)}, 2, {s(sOFF)}')
    for t_ in range(5):
        a(f'ds_read_b32 {v(vSO + t_)}, {v(vG + 23)} offset:{NODE + 16 * t_}')
    a(f'v_mov_b32 {v(vGS)}, {s(sT0)}')
    a(f'v_and_b32 {v(vG + 23)}, 15, {v(vLN)}')
    a(f'v_mul_u32_u24 {v(vAA)}, {AGG_ROW}, {v(vG + 23)}')
    a(f'v_lshl_add_u32 {v(vAA)}, {v(vG + 21)}, 4, {v(vAA)}')
    a(f's_mul_i32 {s(sOFF)}, {s(sT0)}, {AGG_W}')
    a(f'v_add_u32 {v(vAA)}, {s(sOFF)}, {v(vAA)}')
    a(f's_mul_i32 {s(sOFF)}, {s(sW)}, {AGG_W}')
    a(f's_add_u32 {s(sOFF)}, {s(sOFF)}, {AGG}')
    a(f'v_lshl_add_u32 {v(vAG)}, {v(vLN)}, 2, {s(sOFF)}')
    a(f's_lshl_b32 {s(sOFF)}, {s(sBK)}, 10')
    a(f's_lshl_b32 {s(sT1)}, {s(sT1)}, 8')
    a(f's_add_u32 {s(sOFF)}, {s(sOFF)}, {s(sT1)}')
    a(f'v_lshl_add_u32 {v(vG + 23)}, {v(vG + 23)}, 4, {s(sOFF)}')
    a('s_waitcnt lgkmcnt(0)')
    for kk in range(4):
        for r in range(2):
            for hf in range(2):
                a(f'ds_read_b64_tr_b16 {v(vB + 8 * kk + 4 * r + 2 * hf, 2)}, {v(vG + 22)} offset:{(32 * kk + 4 * hf) * IMG_R + 32 * r}')
        if kk == 1:
            for t_ in range(5):
                a(f'v_lshl_add_u32 {v(vSO + t_)}, {v(vSO + t_)}, 18, {v(vG + 23)}')
            a('s_waitcnt lgkmcnt(0)')

    def zmfma(buf, j, rec):
        h = j & 1
        d = vZ + 8 * buf + 4 * h
        if j < 2:
            a(f'v_mfma_f32_4x4x4_16b_bf16 {v(d, 4)}, {v(rec, 2)}, {v(vWH + 2 * h, 2)}, 0 cbsz:4 abid:0')
        else:
            a(f'v_mfma_f32_4x4x4_16b_bf16 {v(d, 4)}, {v(rec, 2)}, {v(vWL + 2 * h, 2)}, {v(d, 4)} cbsz:4 abid:0')
    NZ = 4 if OPT['zlo'] else 2

    def tstage(p, st, c, first):
        d = vTP + 16
        for o in range(4):
            a(f'v_mfma_f32_4x4x4_16b_bf16 {v(d + 4 * o, 4)}, {v(vCG, 2)}, {v(p, 2)}, 0 cbsz:4 abid:{o}')
        if first:
            for j in range(NZ):
                zmfma(0, j, p + 2)
        for o in range(4):
            for m in range(2):
                a(f'v_cvt_pk_bf16_f32 {v(c + 2 * o + m)}, {v(d + 4 * o + 2 * m)}, {v(d + 4 * o + 2 * m + 1)}')
        if first:
            a(f's_mov_b64 exec, {(1 << OPT["pa"]) - 1:#x}')
        elif st == 0:
            a(f's_mov_b32 exec_lo, {(~((1 << OPT["pa"]) - 1)) & 0xffffffff:#x}')
        a(f'ds_write_b64 {v(vG + 6)}, {v(p + 2, 2)} offset:{128 + 16 * st * BLK_G}')
        a(f'ds_write_b128 {v(vG + 7)}, {v(c, 4)} offset:{16 * st * BLK_G}')
        a(f'ds_write_b128 {v(vG + 7)}, {v(c + 4, 4)} offset:{16 * st * BLK_G + 16}')
        if st == 0:
            a('s_mov_b64 exec, -1')

    a('s_waitcnt vmcnt(4)')
    tstage(payA, 0, vE + 8, True)
    a(f'ds_read2_b64 {v(vT, 4)}, {v(vAT)} offset0:0 offset1:{(BLK_G + 128) // 8}')
    for i in range(8):
        a(f'v_exp_f32 {v(vE + i)}, {v(vZ + i)}')
    a(f's_sub_u32 {s(sT1)}, 2, {s(sMODE)}')
    for i in range(0, 8, 2):
        a(f'v_pk_fma_f32 {v(vE + i, 2)}, {v(vE + i, 2)}, {v(vONE, 2)}, {v(vONE, 2)}')
    if OPT['prio'] == 1:
        a(f's_cmp_lt_u32 {s(sW)}, 4')
        a('s_cbranch_scc1 NOPRIO')
        a('s_setprio 1')
        a.label('NOPRIO')
    stamp(a, 5, sST)
    if OPT['clk']:
        a(f's_memtime {s(sST, 2)}')
        a('s_waitcnt lgkmcnt(0)')
        a(f'v_writelane_b32 v255, {s(sST)}, 8')

    a('s_waitcnt lgkmcnt(0)')
    a('s_branch ENTER')
    a.label('LOOP')
    for g in range(NG):
        b = g & 1
        gp = (g + NG - 1) % NG
        if OPT['prio'] == 2:
            a(f's_setprio {g & 1}')
        a(f's_cmp_lt_u32 {s(sCNT)}, {NG}')
        a('s_waitcnt lgkmcnt(0)')
        a(f's_cbranch_scc1 DRAIN{g}')
        for j in range(4):
            a(f'buffer_load_dwordx4 {v(vX + 16 * gp + 4 * j, 4)}, {v(vWD + j)}, {s(sX, 4)}, 0 offen')
        if g == 0:
            a.label('ENTER')
        a(f'ds_read_b128 {v(vWD, 4)}, {v(vAW)} offset:{176 + BLK_G * (g + NG)}')
        if OPT['nocomp']:
            a(f's_waitcnt vmcnt({K - 4})')
            a.label(f'BACK{g}')
        else:
            tr = [f'v_rcp_f32 {v(vE + 8 * b + i)}, {v(vE + 8 * b + i)}' for i in range(8)]
            tr += [f'v_exp_f32 {v(vE + 8 * (1 - b) + i)}, {v(vZ + 8 * (1 - b) + i)}' for i in range(8)]
            a(f's_waitcnt vmcnt({K - 4})')
            a.label(f'BACK{g}')
            a(f'v_readlane_b32 {s(sSL)}, {v(vT + 2)}, 4')
            ti = 0
            for j in range(NZ):
                zmfma(1 - b, j, vT + 2)
                a(tr[ti])
                ti += 1
            for j in range(4):
                for h in range(2):
                    a(f'v_mfma_f32_4x4x4_16b_bf16 {v(vTP + 8 * j + 4 * h, 4)}, {v(vT, 2)}, {v(vX + 16 * g + 4 * j + 2 * h, 2)}, 0 cbsz:4 abid:{j}')
                    a(tr[ti])
                    ti += 1
            a(f'ds_read2_b64 {v(vT, 4)}, {v(vAT)} offset0:{BLK_G * (g + 1) // 8} offset1:{(BLK_G * (g + 2) + 128) // 8}')
            for x in tr[ti:]:
                a(x)
            for i in range(0, 8, 2):
                a(f'v_pk_mul_f32 {v(vE + 8 * b + i, 2)}, {v(vE + 8 * b + i, 2)}, {v(vZ + 8 * b + i, 2)}')
            for i in range(0, 8, 2):
                a(f'v_pk_fma_f32 {v(vE + 8 * (1 - b) + i, 2)}, {v(vE + 8 * (1 - b) + i, 2)}, {v(vONE, 2)}, {v(vONE, 2)}')
            for j in range(4):
                a(f's_set_gpr_idx_on {s(sSL)}, gpr_idx(SRC2,DST)' if j == 0 else f's_set_gpr_idx_idx {s(sSL)}')
                a.idx_range = (vACC, vACC + 48)
                sel = j & 1
                for h in range(2):
                    rp = vE + 8 * b + 4 * h + 2 * (j >> 1)
                    for m in range(2):
                        d = vACC + 4 * h + 2 * m
                        a(f'v_pk_fma_f32 {v(d, 2)}, {v(rp, 2)}, {v(vTP + 8 * j + 4 * h + 2 * m, 2)}, {v(d, 2)} op_sel:[{sel},0,0] op_sel_hi:[{sel},1,1]')
                        if h == 0 and m == 0 and j < 3:
                            a(f's_lshr_b32 {s(sSL)}, {s(sSL)}, 8')
                a.idx_range = None
            a('s_set_gpr_idx_off')
        if g == NG - 1:
            a(f'v_add_u32 {v(vAT)}, {BLK_G * NG}, {v(vAT)}')
            a(f'v_add_u32 {v(vAW)}, {BLK_G * NG}, {v(vAW)}')
        a(f's_sub_u32 {s(sCNT)}, {s(sCNT)}, 1')
        if g == NG - 1:
            a(f's_cmp_eq_u32 {s(sT1)}, 0')
            a('s_cbranch_scc1 LOOP')
            a(f's_sub_u32 {s(sT1)}, {s(sT1)}, 1')
            a(f's_cmp_eq_u32 {s(sT1)}, 0')
            a('s_cbranch_scc1 STAGE2')
            a(f's_mov_b32 exec_lo, {(~((1 << OPT["pa"]) - 1)) & 0xffffffff:#x}')
            a(f'buffer_load_dwordx4 {v(pay[0], 4)}, {v(en[0] + 1)}, {s(sWS, 4)}, 0 offen sc1')
            a('s_mov_b32 exec_lo, -1')
            a(f'buffer_load_dwordx4 {v(pay[1], 4)}, {v(en[1] + 1)}, {s(sWS, 4)}, 0 offen sc1')
            a('s_branch LOOP')
            a.label('STAGE2')
            tstage(pay[0], 0, vTP, False)
            tstage(pay[1], 1, vTP + 8, False)
            a('s_branch LOOP')
    for g in range(NG):
        a.label(f'DRAIN{g}')
        for rem in range(NG - 1, 0, -1):
            a(f's_cmp_eq_u32 {s(sCNT)}, {rem}')
            a(f's_waitcnt vmcnt({4 * (rem - 1)})')
            a(f's_cbranch_scc1 BACK{g}')
        if g < NG - 1:
            a('s_branch LIST_DONE')
    a.label('LIST_DONE')
    a(f's_cmp_lg_u32 {s(sMODE)}, 0')
    a('s_cbranch_scc1 SLOW_NEXT')

    a.label('MIX')
    vD = vE
    vS = vG

    def areg(i):
        return vX + 4 * i if i < 8 else vTP + 4 * (i - 8)
    stamp(a, 6, sST)
    if OPT['clk']:
        a(f's_memtime {s(sST, 2)}')
        a('s_waitcnt lgkmcnt(0)')
        a(f'v_writelane_b32 v255, {s(sST)}, 9')
    for sl in range(5):
        for o in range(4):
            a(f'v_cvt_pk_bf16_f32 {v(vACC + 8 * sl + o)}, {v(vACC + 8 * sl + o)}, {v(vACC + 8 * sl + 4 + o)}')
        for o in range(0, 4, 2):
            a(f'ds_write2_b32 {v(vAG)}, {v(vACC + 8 * sl + o)}, {v(vACC + 8 * sl + o + 1)} offset0:{o * AGG_ROW // 4} offset1:{(o + 1) * AGG_ROW // 4}')
        if sl < 4:
            a(f'v_add_u32 {v(vAG)}, {4 * AGG_ROW}, {v(vAG)}')
    a(f'v_mov_b32 {v(vWD)}, 1')
    a('s_mov_b64 exec, 1')
    a(f'ds_add_u32 {v(vGS)}, {v(vWD)} offset:{GS}')
    a('s_mov_b64 exec, -1')
    a.label('GSYNC')
    a(f'ds_read_b32 {v(vWD + 1)}, {v(vGS)} offset:{GS}')
    a('s_waitcnt lgkmcnt(0)')
    a(f'v_cmp_ne_u32 vcc, 4, {v(vWD + 1)}')
    a('s_cbranch_vccnz GWAIT')

    def aread(i):
        a(f'ds_read_b128 {v(areg(i), 4)}, {v(vAA)} offset:{AGG + (i >> 2) * 16 * AGG_ROW + (i & 3) * 64}')
    for i in range(12):
        aread(i)
    pol = ['', ' sc1', ' nt', ' sc0 sc1 nt'][OPT['outpol']]

    def outt(t_):
        d = vD + 8 * (t_ & 1)
        st = vS + 4 * t_
        for r in range(2):
            a(f'v_cvt_pk_bf16_f32 {v(st + 2 * r)}, {v(d + 4 * r)}, {v(d + 4 * r + 1)}')
            a(f'v_cvt_pk_bf16_f32 {v(st + 2 * r + 1)}, {v(d + 4 * r + 2)}, {v(d + 4 * r + 3)}')
        a(f'buffer_store_dwordx4 {v(st, 4)}, {v(vSO + t_)}, {s(sO, 4)}, 0 offen{pol}')

    for i in range(20):
        t_, kk = i >> 2, i & 3
        a(f's_waitcnt lgkmcnt({min(11, 19 - i)})')
        for r in range(2):
            d = vD + 8 * (t_ & 1) + 4 * r
            a(f'v_mfma_f32_16x16x32_bf16 {v(d, 4)}, {v(areg(i), 4)}, {v(vB + 8 * kk + 4 * r, 4)}, {"0" if kk == 0 else v(d, 4)}')
        if i + 12 < 20:
            aread(i + 12)
        if kk == 2 and t_ > 0:
            outt(t_ - 1)
    outt(4)
    if OPT['stamps']:
        a('s_waitcnt vmcnt(0)')
        stamp(a, 7, sST)
        emit_stamps(a, sST, pWS, 4)
    a.label('K_END')
    a('s_endpgm')

    a.label('GWAIT')
    a('s_sleep 1')
    a('s_branch GSYNC')
    a.label('BUMP')
    a('s_mov_b64 exec, 1')
    a(f'buffer_store_dword {v(vEP)}, off, {s(sWS, 4)}, 0 sc1')
    a('s_mov_b64 exec, -1')
    a('s_branch NOLATE')

    a.label('CONSTS')
    a(f'v_lshl_or_b32 {v(vCG)}, {v(vP + 5)}, 16, {v(vP + 4)}')
    a(f'v_lshl_or_b32 {v(vCG + 1)}, {v(vP + 7)}, 16, {v(vP + 6)}')
    a(f'v_mov_b32 {v(vONE)}, 0xbfb8aa3b')
    a(f'v_mov_b32 {v(vONE + 1)}, 0xbfb8aa3b')
    t = vP + 8
    for h in range(2):
        for k in range(4):
            if h == 0:
                a(f'v_lshlrev_b32 {v(t + k)}, 16, {v(vIN + k)}')
            else:
                a(f'v_and_b32 {v(t + k)}, 0xffff0000, {v(vIN + k)}')
            a(f'v_mul_f32 {v(t + k)}, 0xbfb8aa3b, {v(t + k)}')
        for m in range(2):
            a(f'v_cvt_pk_bf16_f32 {v(vWH + 2 * h + m)}, {v(t + 2 * m)}, {v(t + 2 * m + 1)}')
            a(f'v_lshlrev_b32 {v(t + 4)}, 16, {v(vWH + 2 * h + m)}')
            a(f'v_and_b32 {v(t + 5)}, 0xffff0000, {v(vWH + 2 * h + m)}')
            a(f'v_sub_f32 {v(t + 4)}, {v(t + 2 * m)}, {v(t + 4)}')
            a(f'v_sub_f32 {v(t + 5)}, {v(t + 2 * m + 1)}, {v(t + 5)}')
            a(f'v_cvt_pk_bf16_f32 {v(vWL + 2 * h + m)}, {v(t + 4)}, {v(t + 5)}')
    for i in range(3):
        a(f'ds_write_b128 {v(vL16)}, {v(vWH + 4 * i, 4)} offset:{CST + 1024 * i}')
    a(f'v_lshrrev_b32 {v(t)}, 1, {v(vSMA)}')
    a(f'ds_write_b32 {v(t)}, {v(vIN + 4)} offset:{TBL}')
    a('s_branch CONSTS_DONE')

    a.label('LATE_PUT')
    for i in range(2):
        t = vP + 2 + 8 * i
        a(f's_mov_b64 exec, {s(sV + 4 + 2 * i, 2)}')
        a(f'ds_add_rtn_u32 {v(t + 4)}, {v(t + 3)}, {v(vP)} offset:{LCNT}')
        a(f'v_add_u32 {v(t + 7)}, 1, {v(t + 7)}')
        a(f'v_and_b32 {v(t + 1)}, 31, {v(t)}')
        a(f'v_lshl_or_b32 {v(t + 7)}, {v(t + 1)}, 6, {v(t + 7)}')
        a(f'v_lshl_or_b32 {v(t + 7)}, {v(vIN + 2 + i)}, 11, {v(t + 7)}')
        a(f'v_lshl_or_b32 {v(t + 7)}, {v(t + 5)}, 25, {v(t + 7)}')
        a(f'v_lshrrev_b32 {v(t + 1)}, 4, {v(t + 5)}')
        a(f'v_and_b32 {v(t + 1)}, 0xfffffff8, {v(t + 1)}')
        a('s_waitcnt lgkmcnt(0)')
        a(f'v_or_b32 {v(t + 1)}, {v(t + 1)}, {v(t + 4)}')
        a(f'v_cmp_gt_u32 vcc, 7, {v(t + 1)}')
        a(f'v_mul_u32_u24 {v(t + 1)}, 18, {v(t + 4)}')
        a(f'v_and_b32 {v(t + 1)}, 28, {v(t + 1)}')
        a(f'v_cndmask_b32 {v(t + 1)}, 4, {v(t + 1)}, vcc')
        a(f'v_cndmask_b32 {v(t + 7)}, 63, {v(t + 7)}, vcc')
        a(f'v_lshl_add_u32 {v(t + 1)}, {v(t + 2)}, 5, {v(t + 1)}')
        a(f'ds_or_b32 {v(t + 1)}, {v(t + 7)} offset:{LATE}')
    a('s_mov_b64 exec, -1')
    a('s_branch LATE_DONE')

    a.label('REPOLL')
    a(f's_add_u32 {s(sCNT)}, {s(sCNT)}, {s(sSPIN)}')
    a(f's_lshr_b32 {s(sM)}, {s(sCNT)}, {OPT["spin"]}')
    a('s_cbranch_scc1 GIVEUP')
    a(f'buffer_load_dwordx4 {v(vC, 4)}, {v(vCA)}, {s(sWS, 4)}, {s(sT1)} offen sc1')
    a('s_waitcnt vmcnt(0)')
    a('s_branch POLL')
    a.label('GIVEUP')
    for r in range(4):
        a(f'v_mov_b32 {v(vC + r)}, 0')
    a(f'v_mov_b32 {v(vG + 1)}, {FLAG}')
    a(f'ds_write_b32 {v(vG + 1)}, {v(vZERO + 1)}')
    a('s_branch BATCH')
    a.label('RELATE')
    a(f's_add_u32 {s(sCNT)}, {s(sCNT)}, 1')
    a(f's_lshr_b32 {s(sM)}, {s(sCNT)}, {OPT["spin"]}')
    a('s_cbranch_scc1 GIVEUP2')
    a(f'buffer_load_dwordx4 {v(vL, 4)}, {v(vFA)}, {s(sWS, 4)}, {s(sLOFF)} offen sc1')
    a('s_waitcnt vmcnt(0)')
    a('s_branch LATECHK')
    a.label('GIVEUP2')
    a(f'v_mov_b32 {v(vG + 1)}, {FLAG}')
    a(f'ds_write_b32 {v(vG + 1)}, {v(vZERO + 1)}')
    a('s_branch LATE_OK')

    a.label('LATE_GET')
    a(f'v_cndmask_b32 {v(vL + 3)}, {v(vL + 3)}, 0, {s(sODD, 2)}')
    a(f'v_and_b32 {v(vG + 1)}, 63, {v(vL + 1)}')
    a(f'v_cmp_eq_u32 vcc, 63, {v(vG + 1)}')
    a('s_cbranch_vccnz GIVEUP2')
    a.label('LATE_RND')
    t = rt[0]
    a(f'v_xor_b32 {v(t)}, {s(sT0)}, {v(vL)}')
    a(f'v_and_b32 {v(t)}, 0x7ff, {v(t)}')
    a(f'v_add_u32 {v(t)}, -1, {v(t)}')
    a(f'v_cmp_gt_u32 vcc, 40, {v(t)}')
    a('s_cbranch_vccz LATE_NXT')
    a('s_mov_b64 exec, vcc')
    a(f'v_lshlrev_b32 {v(t)}, 3, {v(t)}')
    a(f'ds_read_b32 {v(t + 7)}, {v(t)} offset:{TAB + 4}')
    a(f'v_mov_b32 {v(t + 5)}, 1')
    a(f'v_lshrrev_b32 {v(t + 2)}, 1, {v(vL)}')
    a(f'v_mov_b32 {v(t + 3)}, {v(vB0)}')
    a('s_waitcnt lgkmcnt(0)')
    a(f'v_lshrrev_b32 {v(t + 1)}, 8, {v(t + 7)}')
    a(f'ds_add_rtn_u32 {v(t + 4)}, {v(t + 1)}, {v(t + 5)} offset:{CNTW}')
    a(f'v_bfi_b32 {v(t + 2)}, {s(sK3FF)}, {v(t + 7)}, {v(t + 2)}')
    a(f'v_and_b32 {v(t + 7)}, 0x1c00, {v(t + 7)}')
    a('s_waitcnt lgkmcnt(0)')
    a(f'v_min_u32 {v(t + 4)}, 127, {v(t + 4)}')
    a(f'v_lshl_add_u32 {v(t + 4)}, {v(t + 4)}, 3, {v(t + 7)}')
    a(f'ds_write_b64 {v(t + 4)}, {v(t + 2, 2)} offset:{ENT}')
    a('s_mov_b64 exec, -1')
    a.label('LATE_NXT')
    a(f'v_mov_b32 {v(vL)}, {v(vL + 1)}')
    a(f'v_mov_b32 {v(vL + 1)}, {v(vL + 2)}')
    a(f'v_mov_b32 {v(vL + 2)}, {v(vL + 3)}')
    a(f'v_mov_b32 {v(vL + 3)}, 0')
    a(f'v_cmp_ne_u32 vcc, 0, {v(vL)}')
    a('s_cbranch_vccnz LATE_RND')
    a('s_branch LATE_OK')

    a.label('PAY_SLOW')
    a('s_waitcnt lgkmcnt(0)')
    a(f'v_lshrrev_b32 {v(vG + 21)}, 24, {v(en[1])}')
    a(f'v_lshl_add_u32 {v(en[1] + 1)}, {v(vG + 21)}, {s(sSH)}, {v(en[1] + 1)}')
    for j_ in range(4):
        a(f'buffer_load_dwordx4 {v(vX + 16 + 4 * j_, 4)}, {v(vTP + j_)}, {s(sX, 4)}, 0 offen')
    for p_, st in ((payA, 0), (pay[0], 0), (pay[1], 1)):
        a(f'buffer_load_dwordx2 {v(p_, 2)}, {v(en[st] + 1)}, {s(sY, 4)}, 0 offen')
        a(f'buffer_load_dwordx2 {v(p_ + 2, 2)}, {v(en[st] + 1)}, {s(sE, 4)}, 0 offen')
    a('s_waitcnt vmcnt(0)')
    a('s_branch PAY_JOIN')
    a.label('SLOW_ENTER')
    a(f's_mov_b32 {s(sMODE)}, 1')
    a(f's_mov_b32 {s(sSH)}, 3')
    a(f's_mov_b32 {s(sMUL)}, 0')
    a('s_branch SLOW_LOAD')
    a.label('SLOW_NEXT')
    a(f's_add_u32 {s(sBASE)}, {s(sBASE)}, 128')
    a(f's_cmp_ge_u32 {s(sBASE)}, {E}')
    a('s_cbranch_scc1 MIX')
    a.label('SLOW_LOAD')
    a('s_waitcnt vmcnt(0) lgkmcnt(0)')
    a('s_barrier')
    a(f'v_and_b32 {v(vG)}, 127, v0')
    a(f'v_add_lshl_u32 {v(vG + 1)}, {v(vG)}, {s(sBASE)}, 2')
    a(f'buffer_load_dword {v(vG + 2)}, {v(vG + 1)}, {s(sD, 4)}, 0 offen')
    a(f'buffer_load_dword {v(vG + 3)}, {v(vG + 1)}, {s(sS, 4)}, 0 offen')
    for r in range(1, 4):
        a(f'v_mov_b32 {v(vC + r)}, 0')
    a(f'ds_write_b128 {v(vT16)}, {v(vZERO, 4)} offset:{ENT}')
    a(f'ds_write_b64 {v(vSMA)}, {v(vC + 2, 2)} offset:{NCNT}')
    a(f'ds_write_b64 {v(vSMA)}, {v(vC + 2, 2)} offset:{NCNT + 128}')
    a(f's_lshl_b32 {s(sT0)}, {s(sBASE)}, 3')
    a(f'v_mov_b32 {v(vB0)}, {s(sT0)}')
    a(f'v_lshrrev_b32 {v(vG + 4)}, 7, v0')
    a('s_waitcnt vmcnt(0)')
    a(f'v_min_u32 {v(vG + 2)}, {N - 1}, {v(vG + 2)}')
    a(f'v_min_u32 {v(vG + 3)}, {N - 1}, {v(vG + 3)}')
    a(f'v_and_b32 {v(vG + 1)}, 255, {v(vG + 2)}')
    a(f'v_lshl_or_b32 {v(vG + 1)}, {v(vG + 4)}, 8, {v(vG + 1)}')
    a(f'v_cmp_eq_u32 vcc, {s(sBK)}, {v(vG + 1)}')
    a(f'v_lshrrev_b32 {v(vG + 2)}, 8, {v(vG + 2)}')
    a(f'v_or_b32 {v(vG + 2)}, 64, {v(vG + 2)}')
    a(f'v_lshlrev_b32 {v(vG + 2)}, 3, {v(vG + 2)}')
    a(f'v_lshl_or_b32 {v(vG + 2)}, {v(vG + 3)}, 10, {v(vG + 2)}')
    a(f'v_lshl_or_b32 {v(vG + 2)}, {v(vG)}, 24, {v(vG + 2)}')
    a(f'v_cndmask_b32 {v(vC)}, 0, {v(vG + 2)}, vcc')
    bar()
    a('s_branch BATCH')
    a('.p2align 2')
    a('.type rank_table,@object')
    a.label('rank_table')
    tb = json.load(open('tbl.json'))[str(OPT['bias'])]
    for i in range(0, 80, 8):
        a('.long ' + ', '.join(f'{x:#x}' for x in tb[i:i + 8]))
    a('.size rank_table, 320')
    return a, LDS


emit(kernel)
```

```python
import json
from common import *

parse(dict(dev=1, spin=16, wsoff=0, outpol=1, zlo=1, prio=0, smask=0, clk=0, bias=16, pfstep=8,
           pfd=3, pfc=0, pfp=0, latepos=0, pwait=0, nph=8, x1=4, chkpos=1, pfq=0, pfo=0))
NULLW = 0x7FFF0000
CSTR = 8192 + 256
PSTR = 16384 + 256
CELL_OFF = 4096
PAY_OFF = 3 << 20
LATE_OFF = 8 << 20
WS_SPAN = 9 << 20
SLOWB = 100


def kernel():
    a = Asm()
    NCNT = 0
    TOT = 512
    TOTP = 576
    CNTW = 640
    FLAG = 672
    GS = 768
    PRE = 1024
    CODE = 1536
    NODE = 2048
    GCNT = 2304
    LCNT = 2336
    LATE = 2560
    TBL = 2816
    PCNT = 3072
    ENT = 4096
    RAW = ENT + 4096
    CST = RAW + 16384 + 4096
    BLK, BLK_G = CST + 3072, 192
    BLK_W = BLK_G * 38
    CELL = BLK
    PST = CELL + 8192
    AGG, AGG_W, AGG_ROW = BLK + 8 * BLK_W + 512, 20 * 272, 272
    IMG, IMG_R = AGG, 288
    LDS = AGG + 8 * AGG_W
    assert PST + 16384 < 65536 and LDS <= 163840 and 128 * IMG_R <= 8 * AGG_W
    sX, sWS, sO, sY, sE, sD, sS = 4, 8, 12, 16, 20, 24, 28
    sPTR = 32
    pX, pSRC, pDST, pY, pEF, pWR, pCG, pWM, pOUT, pDBG, pWS = [sPTR + 2 * i for i in range(11)]
    sBK, sW, sMODE, sBASE, sCNT, sT0, sT1, sOFF, sMUL, sSPIN, sG, sSL, sK1FF, sBK6 = range(54, 68)
    sWD = 68
    sPERM0, sPERM1, sLOFF = 73, 74, 75
    sV = 76
    sM = 84
    sODD = 86
    sLM = 88
    sST = 90
    sPFW, sCOFF = 92, 93
    sLR = 94
    vLN, vL16, vSMA = 1, 2, 3
    vACC = 4
    vX = 52
    vB = 84
    vTP = 116
    vZ = 148
    vE = 164
    vT = 180
    vWD = 184
    vWH = 188
    vWL, vCG, vONE = vWH + 4, vWH + 8, vWH + 10
    vAT, vAW, vTAG, vEP = 200, 201, 202, 203
    vCA, vFA, vB0, vT16 = 204, 205, 206, 207
    vC = 208
    vL = 212
    vZERO = 216
    vSO = 220
    vAA, vAG, vGS = 225, 226, 227
    vPF = 228
    vG = 232
    iEO, iCW, iRW, iBW, iBS, iBE, iBT, iEB, iNA, iKB = range(vG, vG + 10)
    iSB, iND, iTB = vSO, vSO + 1, vSO + 2
    vR = vX
    vU = vX + 16
    vIN = vX
    vWM = vX + 12
    vP = vTP
    vQ = vB
    vPAY = vTP
    vLP = vTP + 16
    NULLE = 40
    XM = 0x1ffc00 if OPT['smask'] else 0xfffc00
    NZ = 4 if OPT['zlo'] else 2
    npf = [OPT['pfo']]

    def bar():
        a('s_waitcnt lgkmcnt(0)')
        a('s_barrier')

    def pfissue(rows):
        if not rows:
            return
        a(f's_mul_i32 {s(sM)}, {s(sPFW)}, {rows}')
        a(f's_add_u32 {s(sM)}, {s(sM)}, {npf[0]}')
        a(f'v_min_u32 {v(vPF + 2)}, {rows - 1}, {v(vPF)}')
        a(f'v_add_u32 {v(vPF + 2)}, {s(sM)}, {v(vPF + 2)}')
        a(f'v_mul_u32_u24 {v(vPF + 2)}, {OPT["pfstep"] << 9}, {v(vPF + 2)}')
        a(f'v_and_b32 {v(vPF + 2)}, 0xfffffc00, {v(vPF + 2)}')
        a(f'v_add_u32 {v(vPF + 2)}, {v(vPF + 2)}, {v(vPF + 1)}')
        npf[0] += 256 * rows
        assert npf[0] * OPT['pfstep'] // 2 < N

    def pfload():
        a(f'global_load_dword {v(vPF + 3)}, {v(vPF + 2)}, {s(pX, 2)}')

    def pairsum(d, c):
        a(f'v_add3_u32 {v(d)}, {v(c)}, {v(c + 1)}, {v(c + 2)}')
        a(f'v_add_u32 {v(d)}, {v(d)}, {v(c + 3)}')
        a(f'v_add_u32_dpp {v(d)}, {v(d)}, {v(d)} quad_perm:[1,0,3,2] row_mask:0xf bank_mask:0xf')

    a('s_cmp_ge_u32 s2, 256')
    a('s_cbranch_scc1 K_END')
    stamp(a, 0, sST)
    a(f's_load_dwordx16 {s(sPTR, 16)}, s[0:1], 0')
    a(f's_load_dwordx4 {s(pOUT, 4)}, s[0:1], 64')
    a(f's_load_dwordx2 {s(pWS, 2)}, s[0:1], 80')
    a(f'v_lshrrev_b32 {v(vG)}, 6, v0')
    a(f'v_and_b32 {v(vLN)}, 63, v0')
    a(f'v_readfirstlane_b32 {s(sW)}, {v(vG)}')
    a(f'v_lshlrev_b32 {v(vT16)}, 4, v0')
    a(f'v_lshlrev_b32 {v(vG + 2)}, 3, v0')
    a(f's_cmp_lt_u32 {s(sW)}, 6')
    a('s_cbranch_scc1 NOCPF')
    a(f's_getpc_b64 {s(sM, 2)}')
    a.label('CPF_BASE')
    a(f'v_and_b32 {v(vG + 13)}, 127, v0')
    a(f'v_min_u32 {v(vG + 13)}, (SLOW_ENTER-CPF_BASE)/128, {v(vG + 13)}')
    a(f'v_lshlrev_b32 {v(vG + 13)}, 7, {v(vG + 13)}')
    a(f'global_load_dword {v(vG + 13)}, {v(vG + 13)}, {s(sM, 2)}')
    a.label('NOCPF')
    for r in range(0, 4, 2):
        a(f'v_mov_b64 {v(vZERO + r, 2)}, 0')
    a(f'ds_write_b128 {v(vT16)}, {v(vZERO, 4)} offset:{CELL}')
    a(f'ds_write_b64 {v(vG + 2)}, {v(vZERO, 2)}')
    a(f'v_lshlrev_b32 {v(vL16)}, 4, {v(vLN)}')
    a(f'v_lshlrev_b32 {v(vSMA)}, 3, {v(vLN)}')
    a(f's_mul_i32 {s(sT0)}, s2, 2500')
    a(f's_mul_i32 {s(sT1)}, s2, 5000')
    for d in (sD, sS):
        a(f's_mov_b32 {s(d + 2)}, {E * 4}')
        a(f's_mov_b32 {s(d + 3)}, 0x20000')
    for d in (sY, sE):
        a(f's_mov_b32 {s(d + 2)}, {E * 8}')
        a(f's_mov_b32 {s(d + 3)}, 0x20000')
    a(f's_mov_b32 {s(sWS + 2)}, {WS_SPAN}')
    a(f's_mov_b32 {s(sWS + 3)}, 0x20000')
    a(f's_mov_b32 {s(sODD)}, 0xaaaaaaaa')
    a(f's_mov_b32 {s(sODD + 1)}, 0xaaaaaaaa')
    a('v_cmp_gt_u32 vcc, 313, v0')
    a(f's_mov_b64 {s(sV, 2)}, vcc')
    a('v_cmp_gt_u32 vcc, 312, v0')
    a(f's_mov_b64 {s(sV + 2, 2)}, vcc')
    a(f'v_mov_b32 {v(vP)}, 1')
    for i in range(1, 4):
        a(f'v_add_u32 {v(vG + 4 + i)}, {8192 * i}, {v(vT16)}')
    a('s_waitcnt lgkmcnt(0)')
    stamp(a, 8, sST)
    a(f's_mov_b64 {s(sD, 2)}, {s(pDST, 2)}')
    a(f's_mov_b64 {s(sS, 2)}, {s(pSRC, 2)}')
    a(f's_mov_b64 {s(sY, 2)}, {s(pY, 2)}')
    a(f's_mov_b64 {s(sE, 2)}, {s(pEF, 2)}')
    a(f's_add_u32 {s(sWS)}, {s(pWS)}, {OPT["wsoff"] << 20}')
    a(f's_addc_u32 {s(sWS + 1)}, {s(pWS + 1)}, 0')
    a(f's_cmp_ge_u32 {s(sW)}, 5')
    a('s_cbranch_scc1 NOIN')
    a(f'buffer_load_dwordx2 {v(vIN, 2)}, {v(vG + 2)}, {s(sD, 4)}, {s(sT0)} offen')
    a(f'buffer_load_dwordx2 {v(vIN + 2, 2)}, {v(vG + 2)}, {s(sS, 4)}, {s(sT0)} offen')
    a.label('NOIN')
    a(f'buffer_load_dword {v(vEP)}, off, {s(sWS, 4)}, 0')
    a('s_cbranch_scc1 NOIN2')
    a(f'buffer_load_dwordx4 {v(vIN + 4, 4)}, {v(vT16)}, {s(sY, 4)}, {s(sT1)} offen')
    a(f'buffer_load_dwordx4 {v(vIN + 8, 4)}, {v(vT16)}, {s(sE, 4)}, {s(sT1)} offen')
    a.label('NOIN2')
    a('s_barrier')
    for i in range(4):
        a(f'global_load_dwordx4 {v(vWM + 4 * i, 4)}, {v(vT16 if i == 0 else vG + 4 + i)}, {s(pWM, 2)}')
    NC = 4
    a(f's_lshl_b32 {s(sT0)}, {s(sW)}, 10')
    a(f'v_add_u32 {v(vG)}, {s(sT0)}, {v(vL16)}')
    a(f'v_add_u32 {v(vG + 1)}, {s(sT0)}, {v(vG)}')
    a(f's_lshl_b32 {s(sT0)}, {s(sW)}, 2')
    a(f'v_mov_b32 {v(vG + 3)}, {s(sT0)}')
    a(f's_lshl_b32 {s(sT0)}, {s(sW)}, 5')
    a(f'v_and_b32 {v(vG + 2)}, 16, {v(vL16)}')
    a(f'v_add_u32 {v(vG + 4)}, {s(sT0)}, {v(vG + 2)}')
    a(f'v_and_b32 {v(vG + 8)}, 56, {v(vLN)}')
    a(f'v_add_u32 {v(vG + 9)}, 64, {v(vG + 8)}')
    a(f'v_mov_b32 {v(vG + 10)}, {NULLW}')
    a(f's_mul_i32 {s(sOFF)}, s2, {CSTR}')
    a(f's_add_u32 {s(sOFF)}, {s(sOFF)}, {CELL_OFF}')
    a(f's_mul_i32 {s(sT1)}, s2, {PSTR}')
    a(f's_add_u32 {s(sT1)}, {s(sT1)}, {PAY_OFF}')
    a(f's_cmp_ge_u32 {s(sW)}, 5')
    a('s_cbranch_scc1 HELPER')
    a(f's_waitcnt vmcnt({NC + 4})')
    stamp(a, 1, sST)
    for i in range(2):
        t = vP + 2 + 8 * i
        a(f'v_min_u32 {v(vIN + i)}, {N - 1}, {v(vIN + i)}')
        a(f'v_and_b32 {v(t)}, 255, {v(vIN + i)}')
        a(f'v_lshlrev_b32 {v(t + 1)}, 2, {v(t)}')
        a(f'v_lshrrev_b32 {v(t + 2)}, 5, {v(t)}')
        a(f'v_lshlrev_b32 {v(t + 3)}, 2, {v(t + 2)}')
        a(f's_mov_b64 exec, {s(sV + 2 * i, 2)}')
        a(f'ds_add_rtn_u32 {v(t + 4)}, {v(t + 1)}, {v(vP)} offset:{PCNT}')
        a(f'ds_add_rtn_u32 {v(t + 5)}, {v(t + 3)}, {v(vP)} offset:{GCNT}')
    a(f's_mov_b64 exec, {s(sV, 2)}')
    a(f's_waitcnt vmcnt({NC + 3})')
    for i in range(2):
        t = vP + 2 + 8 * i
        a(f'v_min_u32 {v(vIN + 2 + i)}, {N - 1}, {v(vIN + 2 + i)}')
        a(f'v_mul_u32_u24 {v(t + 6)}, {(OPT["nph"] << 26) // N}, {v(vIN + 2 + i)}')
        a(f'v_lshrrev_b32 {v(t + 6)}, 26, {v(t + 6)}')
        a(f'v_lshl_or_b32 {v(t + 6)}, {v(vIN + 2 + i)}, 10, {v(t + 6)}')
        a(f'v_lshrrev_b32 {v(t + 7)}, 8, {v(vIN + i)}')
        a(f'v_or_b32 {v(t + 1)}, 64, {v(t + 7)}')
        a(f'v_lshl_or_b32 {v(t + 6)}, {v(t + 1)}, 3, {v(t + 6)}')
    for i in range(2):
        t = vP + 2 + 8 * i
        a('s_waitcnt lgkmcnt(2)' if i == 0 else 's_waitcnt lgkmcnt(0)')
        a(f'v_lshrrev_b32 {v(t + 1)}, 4, {v(t + 5)}')
        a(f'v_and_b32 {v(t + 1)}, 0xfffffff8, {v(t + 1)}')
        a(f'v_or_b32 {v(t + 1)}, {v(t + 1)}, {v(t + 4)}')
        a(f'v_cmp_gt_u32 vcc, 7, {v(t + 1)}')
        a(f'v_lshl_or_b32 {v(t + 6)}, {v(t + 5)}, 24, {v(t + 6)}')
        a(f'v_mul_u32_u24 {v(t + 1)}, 18, {v(t + 4)}')
        a(f'v_and_b32 {v(t + 1)}, 28, {v(t + 1)}')
        a(f'v_lshl_add_u32 {v(t + 1)}, {v(t)}, 5, {v(t + 1)}')
        a(f's_andn2_b64 {s(sV + 4 + 2 * i, 2)}, {s(sV + 2 * i, 2)}, vcc')
        a(f's_and_b64 exec, {s(sV + 2 * i, 2)}, vcc')
        a(f'ds_write_b32 {v(t + 1)}, {v(t + 6)} offset:{CELL}')
        a(f's_mov_b64 exec, {s(sV, 2)}')
    a('s_mov_b64 exec, -1')
    a(f's_waitcnt vmcnt({NC + 2})')
    a('s_branch JOIN2')
    a.label('HELPER')
    a(f's_cmp_eq_u32 {s(sW)}, 7')
    a('s_cbranch_scc1 HELP7')
    a(f'v_lshlrev_b32 {v(vG + 11)}, 2, {v(vLN)}')
    for k in range(4):
        a(f'global_load_dword {v(vIN + k)}, {v(vG + 11)}, {s(pWR, 2)} offset:{k * 256}')
    a(f's_waitcnt vmcnt({NC + 4})')
    a('s_branch JOIN2')
    a.label('HELP7')
    a(f'v_and_b32 {v(vG + 11)}, 3, v0')
    a(f'v_lshlrev_b32 {v(vG + 11)}, 5, {v(vG + 11)}')
    a(f'v_bfe_u32 {v(vG + 12)}, v0, 2, 2')
    a(f'v_lshl_add_u32 {v(vG + 11)}, {v(vG + 12)}, 1, {v(vG + 11)}')
    for f in range(4):
        a(f'global_load_ushort {v(vIN + 4 + f)}, {v(vG + 11)}, {s(pCG, 2)} offset:{f * 8}')
    a(f's_getpc_b64 {s(sM, 2)}')
    a.label('TBL_BASE')
    a(f'v_min_u32 {v(vG + 11)}, 39, {v(vLN)}')
    a('s_and_b32 s3, s2, 0x87')
    a('s_cselect_b32 s3, 0, 160')
    a('s_add_u32 s3, s3, rank_table-TBL_BASE')
    a(f'v_lshl_add_u32 {v(vG + 11)}, {v(vG + 11)}, 2, s3')
    a(f'global_load_dword {v(vIN + 8)}, {v(vG + 11)}, {s(sM, 2)}')
    a(f's_waitcnt vmcnt({NC + 5})')
    a.label('JOIN2')
    a(f'v_add_u32 {v(vEP)}, 1, {v(vEP)}')
    a(f'v_lshl_or_b32 {v(vTAG)}, {v(vEP)}, 1, 1')
    bar()
    p0 = vP + 24
    a(f'ds_read_b128 {v(vC, 4)}, {v(vG)} offset:{CELL}')
    a(f'ds_read_b32 {v(vG + 3)}, {v(vG + 3)} offset:{GCNT}')
    a('s_waitcnt lgkmcnt(1)')
    pairsum(vG + 5, vC)
    a(f'v_sub_u32 {v(vG + 5)}, {v(vTAG)}, {v(vG + 5)}')
    a(f'v_cndmask_b32 {v(vC + 3)}, {v(vC + 3)}, {v(vG + 5)}, {s(sODD, 2)}')
    a(f'buffer_store_dwordx4 {v(vC, 4)}, {v(vG)}, {s(sWS, 4)}, {s(sOFF)} offen sc1')
    stamp(a, 2, sST)
    a(f's_cmp_ge_u32 {s(sW)}, 5')
    a('s_cbranch_scc1 NOSTAGE')
    a(f's_mov_b64 exec, {s(sV, 2)}')
    a(f's_or_b64 {s(sM, 2)}, {s(sV + 4, 2)}, {s(sV + 6, 2)}')
    a('s_cbranch_scc0 LATE_DONE')
    for i in range(2):
        t = vP + 2 + 8 * i
        a(f's_mov_b64 exec, {s(sV + 4 + 2 * i, 2)}')
        a(f'ds_add_rtn_u32 {v(t + 4)}, {v(t + 3)}, {v(vP)} offset:{LCNT}')
    a(f's_mov_b64 exec, {s(sV, 2)}')
    for i in range(2):
        t = vP + 2 + 8 * i
        a(f'v_add_u32 {v(t + 7)}, 1, {v(t + 7)}')
        a(f'v_and_b32 {v(t + 1)}, 31, {v(t)}')
        a(f'v_lshl_or_b32 {v(t + 7)}, {v(t + 1)}, 6, {v(t + 7)}')
        a(f'v_lshrrev_b32 {v(t + 6)}, 10, {v(t + 6)}')
        a(f'v_lshl_or_b32 {v(t + 7)}, {v(t + 6)}, 11, {v(t + 7)}')
        a(f'v_lshrrev_b32 {v(t + 1)}, 4, {v(t + 5)}')
        a(f'v_and_b32 {v(t + 1)}, 0xfffffff8, {v(t + 1)}')
    a('s_waitcnt lgkmcnt(0)')
    for i in range(2):
        t = vP + 2 + 8 * i
        a(f'v_or_b32 {v(t + 1)}, {v(t + 1)}, {v(t + 4)}')
        a(f'v_cmp_gt_u32 vcc, 7, {v(t + 1)}')
        a(f'v_mul_u32_u24 {v(t + 1)}, 18, {v(t + 4)}')
        a(f'v_and_b32 {v(t + 1)}, 28, {v(t + 1)}')
        a(f'v_cndmask_b32 {v(t + 1)}, 4, {v(t + 1)}, vcc')
        a(f'v_cndmask_b32 {v(t + 7)}, 63, {v(t + 7)}, vcc')
        a(f'v_lshl_add_u32 {v(t + 1)}, {v(t + 2)}, 5, {v(t + 1)}')
        a(f's_mov_b64 exec, {s(sV + 4 + 2 * i, 2)}')
        a(f'ds_or_b32 {v(t + 1)}, {v(t + 7)} offset:{LATE}')
        a(f's_mov_b64 exec, {s(sV, 2)}')
    a.label('LATE_DONE')
    for i in range(2):
        t = vP + 2 + 8 * i
        a(f'v_and_b32 {v(t + 5)}, 127, {v(t + 5)}')
        a(f'v_lshl_or_b32 {v(t + 5)}, {v(t + 2)}, 7, {v(t + 5)}')
        a(f'v_lshlrev_b32 {v(t + 5)}, 4, {v(t + 5)}')
    a(f's_waitcnt vmcnt({NC + 1})')
    a(f'v_swap_b32 {v(vIN + 6)}, {v(vIN + 8)}')
    a(f'v_swap_b32 {v(vIN + 7)}, {v(vIN + 9)}')
    for i in range(2):
        t = vP + 2 + 8 * i
        if i:
            a(f's_mov_b64 exec, {s(sV + 2, 2)}')
        a(f'ds_write_b128 {v(t + 5)}, {v(vIN + 4 + 4 * i, 4)} offset:{PST}')
    a('s_mov_b64 exec, -1')
    a.label('NOSTAGE')
    bar()
    for i in range(2):
        a(f'ds_read_b128 {v(p0 + 4 * i, 4)}, {v(vG + 1)} offset:{PST + 1024 * i}')
    a(f'ds_read_b128 {v(vL, 4)}, {v(vG + 4)} offset:{LATE}')
    a(f'v_cmp_lt_u32 vcc, {v(vG + 8)}, {v(vG + 3)}')
    a(f'v_cmp_lt_u32 {s(sM, 2)}, {v(vG + 9)}, {v(vG + 3)}')
    a(f'v_cndmask_b32 {v(vG + 8)}, {v(vG + 10)}, {v(vG + 1)}, vcc')
    a(f'v_cndmask_b32 {v(vG + 9)}, {v(vG + 10)}, {v(vG + 1)}, {s(sM, 2)}')
    for i in range(2):
        a(f's_waitcnt lgkmcnt({2 - i})')
        a(f'buffer_store_dwordx4 {v(p0 + 4 * i, 4)}, {v(vG + 8 + i)}, {s(sWS, 4)}, {s(sT1)} offen offset:{1024 * i} sc1')
    stamp(a, 9, sST)
    for i in range(2):
        a(f'ds_write_b128 {v(vT16)}, {v(vZERO, 4)} offset:{RAW + 8192 * i}')
    a(f'v_mov_b32 {v(vG + 6)}, {NULLE}')
    a(f'v_mov_b32 {v(vG + 7)}, {NULLE}')
    a(f'v_lshlrev_b32 {v(vG + 5)}, 3, v0')
    a(f'ds_write_b64 {v(vG + 5)}, {v(vG + 6, 2)} offset:{ENT}')
    a(f's_mov_b32 {s(sPERM0)}, 0x05040100')
    a(f's_mov_b32 {s(sPERM1)}, 0x07060302')
    a(f'v_lshrrev_b32 {v(vG + 11)}, 4, v0')
    a(f'v_mul_u32_u24 {v(vG + 11)}, {IMG_R}, {v(vG + 11)}')
    a(f'v_bfe_u32 {v(vG + 12)}, v0, 2, 2')
    a(f'v_lshl_add_u32 {v(vG + 11)}, {v(vG + 12)}, 6, {v(vG + 11)}')
    a(f'v_and_b32 {v(vG + 12)}, 3, v0')
    a(f'v_lshl_add_u32 {v(vG + 11)}, {v(vG + 12)}, 3, {v(vG + 11)}')
    a(f'v_add_u32 {v(vG + 11)}, {IMG}, {v(vG + 11)}')
    a('s_waitcnt vmcnt(3) lgkmcnt(3)')
    pairsum(vG + 5, vL)
    a(f'v_sub_u32 {v(vG + 5)}, {v(vTAG)}, {v(vG + 5)}')
    a(f'v_cndmask_b32 {v(vL + 3)}, {v(vL + 3)}, {v(vG + 5)}, {s(sODD, 2)}')
    for i in range(4):
        t = vQ + 4 * i
        w = vWM + 4 * i
        a(f'v_perm_b32 {v(t)}, {v(w + 1)}, {v(w)}, {s(sPERM0)}')
        a(f'v_perm_b32 {v(t + 1)}, {v(w + 3)}, {v(w + 2)}, {s(sPERM0)}')
        a(f'v_perm_b32 {v(t + 2)}, {v(w + 1)}, {v(w)}, {s(sPERM1)}')
        a(f'v_perm_b32 {v(t + 3)}, {v(w + 3)}, {v(w + 2)}, {s(sPERM1)}')
        a(f'ds_write2_b64 {v(vG + 11)}, {v(t, 2)}, {v(t + 2, 2)} offset0:0 offset1:4')
        if i < 3:
            a(f'v_add_u32 {v(vG + 11)}, {32 * IMG_R}, {v(vG + 11)}')
    a(f's_cmp_ge_u32 {s(sW)}, 5')
    a('s_cbranch_scc1 CONSTS')
    a.label('CONSTS_DONE')
    a(f's_lshl_b32 {s(sT0)}, {s(sW)}, 8')
    a(f's_add_u32 {s(sT0)}, {s(sT0)}, s2')
    a(f's_lshl_b32 {s(sT0)}, {s(sT0)}, 6')
    a(f's_add_u32 {s(sT0)}, {s(sT0)}, {LATE_OFF}')
    a('s_mov_b64 exec, 3')
    a('s_waitcnt vmcnt(0)')
    a(f'buffer_store_dwordx4 {v(vL, 4)}, {v(vL16)}, {s(sWS, 4)}, {s(sT0)} offen sc1')
    a('s_mov_b64 exec, -1')
    stamp(a, 10, sST)
    a(f's_and_b32 {s(sG)}, s2, 7')
    a(f's_lshl_b32 {s(sT0)}, {s(sG)}, 5')
    a(f's_lshr_b32 {s(sBK6)}, s2, 3')
    a(f's_add_u32 {s(sBK)}, {s(sBK6)}, {s(sT0)}')
    a(f's_lshl_b32 {s(sPFW)}, {s(sBK6)}, 3')
    a(f's_add_u32 {s(sPFW)}, {s(sPFW)}, {s(sW)}')
    a(f's_lshl_b32 {s(sBK6)}, {s(sBK6)}, 6')
    a(f'v_lshrrev_b32 {v(vG + 4)}, 1, v0')
    a(f'v_mul_u32_u24 {v(vCA)}, {CSTR}, {v(vG + 4)}')
    a(f'v_add_u32 {v(vCA)}, {v(vCA)}, {v(vG + 2)}')
    a(f's_lshl_b32 {s(sCOFF)}, {s(sBK)}, 5')
    a(f's_add_u32 {s(sCOFF)}, {s(sCOFF)}, {CELL_OFF}')
    srd(a, sO, pOUT, N * 1024)
    a(f's_mov_b32 {s(sX)}, {s(pX)}')
    a(f's_or_b32 {s(sX + 1)}, {s(pX + 1)}, 0x100000')
    a(f's_mov_b32 {s(sX + 2)}, 64')
    a(f's_mov_b32 {s(sX + 3)}, 0x800000')
    a(f's_mov_b32 {s(sMODE)}, 0')
    a(f's_mov_b32 {s(sBASE)}, 0')
    a(f's_mov_b32 {s(sMUL)}, 64')
    a(f's_mov_b32 {s(sK1FF)}, 0x1ff')
    a(f's_mov_b32 {s(sPERM0)}, 0x05010400')
    a(f's_mov_b32 {s(sPERM1)}, 0x07030602')
    a('s_cmp_eq_u32 s2, 0')
    a(f's_cselect_b32 {s(sSPIN)}, {OPT["dev"]}, 1')
    a(f's_mov_b32 {s(sCNT)}, 0')
    a(f'v_mul_u32_u24 {v(vB0)}, {PSTR}, {v(vG + 4)}')
    a(f's_lshl_b32 {s(sT0)}, {s(sG)}, 11')
    a(f's_add_u32 {s(sT0)}, {s(sT0)}, {PAY_OFF}')
    a(f'v_add_u32 {v(vB0)}, {s(sT0)}, {v(vB0)}')
    a(f'v_lshl_add_u32 {v(vFA)}, {v(vG + 4)}, 6, {v(vG + 2)}')
    a(f's_lshl_b32 {s(sLOFF)}, {s(sG)}, 14')
    a(f's_add_u32 {s(sLOFF)}, {s(sLOFF)}, {LATE_OFF}')
    a(f'v_and_b32 {v(vU)}, 3, {v(vLN)}')
    a(f'v_lshrrev_b32 {v(vU + 1)}, 4, {v(vLN)}')
    a(f'v_bfe_u32 {v(vU + 2)}, {v(vLN)}, 2, 2')
    a(f'v_lshl_add_u32 {v(vU + 2)}, {v(vU + 1)}, 3, {v(vU + 2)}')
    a(f'v_mul_u32_u24 {v(vU + 2)}, {IMG_R}, {v(vU + 2)}')
    a(f'v_lshl_add_u32 {v(vU + 2)}, {v(vU)}, 3, {v(vU + 2)}')
    a(f's_and_b32 {s(sT1)}, {s(sW)}, 3')
    a(f's_lshl_b32 {s(sOFF)}, {s(sT1)}, 6')
    a(f's_add_u32 {s(sOFF)}, {s(sOFF)}, {IMG}')
    a(f'v_add_u32 {v(vU + 2)}, {s(sOFF)}, {v(vU + 2)}')
    a(f'v_lshrrev_b32 {v(iCW)}, 1, {v(vSMA)}')
    a(f'v_lshrrev_b32 {v(vPF)}, 3, {v(vLN)}')
    a(f'v_and_b32 {v(vPF + 1)}, 7, v0')
    a(f'v_lshlrev_b32 {v(vPF + 1)}, 7, {v(vPF + 1)}')
    pfissue(OPT['pfq'])
    if OPT['pwait']:
        a('s_waitcnt vmcnt(0)')
    bar()
    stamp(a, 11, sST)
    a(f'buffer_load_dwordx4 {v(vC, 4)}, {v(vCA)}, {s(sWS, 4)}, {s(sCOFF)} offen sc1')
    rt = [vZ + 8 * r for r in range(4)]
    a(f'ds_read_b32 {v(iTB)}, {v(iCW)} offset:{TBL}')
    for i in range(3):
        a(f'ds_read_b128 {v(vWH + 4 * i, 4)}, {v(vL16)} offset:{CST + 1024 * i}')
    for kk in range(4):
        for r in range(2):
            for hf in range(2):
                a(f'ds_read_b64_tr_b16 {v(vB + 8 * kk + 4 * r + 2 * hf, 2)}, {v(vU + 2)} offset:{(32 * kk + 4 * hf) * IMG_R + 32 * r}')
        if kk == 1:
            for r in range(0, 48, 2):
                a(f'v_mov_b64 {v(vACC + r, 2)}, 0')
            a('s_waitcnt lgkmcnt(4)')
            if OPT['pfq']:
                pfload()
    a(f's_and_b32 {s(sT0)}, {s(sW)}, 4')
    a(f's_mul_i32 {s(sOFF)}, {s(sT0)}, 20')
    a(f'v_lshl_add_u32 {v(iND)}, {v(vU + 1)}, 2, {s(sOFF)}')
    a(f'v_mov_b32 {v(vGS)}, {s(sT0)}')
    a(f'v_and_b32 {v(iSB)}, 15, {v(vLN)}')
    a(f'v_mul_u32_u24 {v(vAA)}, {AGG_ROW}, {v(iSB)}')
    a(f'v_lshl_add_u32 {v(vAA)}, {v(vU + 1)}, 4, {v(vAA)}')
    a(f's_mul_i32 {s(sOFF)}, {s(sT0)}, {AGG_W}')
    a(f's_add_u32 {s(sOFF)}, {s(sOFF)}, {AGG}')
    a(f'v_add_u32 {v(vAA)}, {s(sOFF)}, {v(vAA)}')
    a(f's_mul_i32 {s(sOFF)}, {s(sW)}, {AGG_W}')
    a(f's_add_u32 {s(sOFF)}, {s(sOFF)}, {AGG}')
    a(f'v_lshl_add_u32 {v(vAG)}, {v(vLN)}, 2, {s(sOFF)}')
    a(f's_lshl_b32 {s(sOFF)}, {s(sBK)}, 10')
    a(f's_lshl_b32 {s(sT1)}, {s(sT1)}, 8')
    a(f's_add_u32 {s(sOFF)}, {s(sOFF)}, {s(sT1)}')
    a(f'v_lshl_add_u32 {v(iSB)}, {v(iSB)}, 4, {s(sOFF)}')
    a(f's_lshl_b32 {s(sT0)}, {s(sW)}, 9')
    a(f'v_mov_b32 {v(iEB)}, {s(sT0)}')
    a(f'v_lshl_add_u32 {v(iEO)}, {v(vLN)}, 2, {s(sT0)}')
    a(f'v_lshlrev_b32 {v(iRW)}, 2, {v(iEO)}')
    a(f's_mul_i32 {s(sG)}, {s(sW)}, {BLK_W}')
    a(f's_add_u32 {s(sG)}, {s(sG)}, {BLK}')
    a(f'v_lshrrev_b32 {v(vU + 3)}, 2, {v(vLN)}')
    a(f'v_mul_u32_u24 {v(vU + 3)}, {BLK_G}, {v(vU + 3)}')
    a(f'v_add_u32 {v(vU + 3)}, {s(sG)}, {v(vU + 3)}')
    a(f'v_lshl_add_u32 {v(iBW)}, {v(vU)}, 2, {v(vU + 3)}')
    a(f'v_add_u32 {v(iBS)}, {v(vU)}, {v(vU + 3)}')
    a(f'v_lshl_add_u32 {v(iBE)}, {v(vU)}, 3, {v(vU + 3)}')
    a(f'v_lshl_add_u32 {v(iBT)}, {v(vU)}, 5, {v(vU + 3)}')
    a(f's_mul_i32 {s(sT0)}, {s(sW)}, 5')
    a(f'v_add_u32 {v(iNA)}, {s(sT0)}, {v(vLN)}')
    a(f'v_subrev_u32 {v(iKB)}, 40, {v(iNA)}')
    a(f'v_min_u32 {v(iNA)}, {v(iNA)}, {v(iKB)}')
    a(f'v_cmp_gt_u32 vcc, 40, {v(vLN)}')
    a(f'v_cndmask_b32 {v(iNA)}, 63, {v(iNA)}, vcc')
    a(f'v_sub_u32 {v(iKB)}, 63, {v(iNA)}')
    a(f'v_lshlrev_b32 {v(iNA)}, 3, {v(iNA)}')
    pfissue(OPT['pfd'] or OPT['pfc'] or OPT['pfp'])
    for r in range(4):
        a(f'v_mov_b32 {v(rt[r] + 3)}, 1')
    stamp(a, 12, sST)
    a(f's_waitcnt vmcnt({1 if OPT["pfq"] else 0})')
    a.label('POLL')
    pairsum(vR, vC)
    a(f'v_cmp_ne_u32 vcc, {v(vTAG)}, {v(vR)}')
    a('s_cbranch_vccnz REPOLL')
    if OPT['pfd']:
        pfload()
    stamp(a, 3, sST)
    a(f'v_cndmask_b32 {v(vC + 3)}, {v(vC + 3)}, 0, {s(sODD, 2)}')

    a.label('BATCH')
    for r in range(4):
        t, e = rt[r], vC + r
        a(f'v_cmp_ne_u32 {s(sV + 2 * r, 2)}, 0, {v(e)}')
        a(f'v_lshlrev_b32 {v(t)}, 2, {v(e)}')
        a(f'v_and_b32 {v(t + 1)}, 0x1f8, {v(e)}')
        a(f'v_lshlrev_b32 {v(t + 2)}, {v(t)}, 1')
    for r in range(4):
        t = rt[r]
        a(f's_mov_b64 exec, {s(sV + 2 * r, 2)}')
        a(f'ds_add_rtn_u64 {v(t + 4, 2)}, {v(t + 1)}, {v(t + 2, 2)} offset:{NCNT}')
    a('s_mov_b64 exec, -1')
    a(f's_mov_b64 {s(sLM, 2)}, 0')
    a(f's_mov_b32 {s(sOFF)}, 0x01010100')
    a(f's_mov_b32 {s(sT1)}, 0x01010101')
    bar()
    a(f'ds_read_b64 {v(vR, 2)}, {v(iNA)} offset:{NCNT}')

    def lateload():
        a(f'buffer_load_dwordx4 {v(vL, 4)}, {v(vFA)}, {s(sWS, 4)}, {s(sLOFF)} offen sc1')
        if OPT['pfc']:
            pfload()
    if OPT['latepos'] == 0:
        lateload()
    for r in range(4):
        t = rt[r]
        a(f'v_and_b32 {v(t + 2)}, 0x1ff, {v(vC + r)}')
        a(f'v_bfe_u32 {v(t + 4)}, {v(t + 4)}, {v(t)}, 4')
    a('s_waitcnt lgkmcnt(0)')
    a(f'v_min_u32 {v(vR + 4)}, 0xffff, {v(vR + 1)}')
    a(f'v_mad_u32_u24 {v(vR + 2)}, {v(vR + 4)}, {s(sMUL)}, {v(iKB)}')
    a(f'v_lshrrev_b32 {v(vR + 8)}, 4, {v(vR)}')
    for j in range(5):
        a(f'v_readlane_b32 {s(sWD + j)}, {v(vR + 2)}, {j}')
    a(f'v_and_b32 {v(vR + 8)}, 0x0f0f0f0f, {v(vR + 8)}')
    a(f'v_and_b32 {v(vR + 9)}, 0x0f0f0f0f, {v(vR)}')
    for j in range(5):
        a(f'v_cmp_lt_u32 vcc, {s(sWD + j)}, {v(vR + 2)}')
        a(f's_bcnt1_i32_b64 {s(sWD + j)}, vcc')
    a(f'v_perm_b32 {v(vR)}, {v(vR + 8)}, {v(vR + 9)}, {s(sPERM0)}')
    a(f'v_perm_b32 {v(vR + 1)}, {v(vR + 8)}, {v(vR + 9)}, {s(sPERM1)}')
    for j in range(5):
        a(f'v_readlane_b32 {s(sWD + j)}, {v(iTB)}, {s(sWD + j)}')
    a(f'v_sad_u8 {v(vR + 8)}, {v(vR)}, 0, 0')
    a(f'v_sad_u8 {v(vR + 9)}, {v(vR + 1)}, 0, {v(vR + 8)}')
    for j in range(5):
        a(f'v_writelane_b32 {v(vR + 3)}, {s(sWD + j)}, {j}')
    a('s_mov_b64 exec, 31')
    a(f'v_bfe_u32 {v(vR + 12)}, {v(vR + 3)}, 6, 6')
    a(f'ds_add_rtn_u64 {v(vR + 6, 2)}, {v(vR + 12)}, {v(vR, 2)} offset:{TOT}')
    a(f'ds_write_b16 {v(iNA)}, {v(vR + 3)} offset:{CODE}')
    a(f'v_mul_lo_u32 {v(vR + 10)}, {v(vR)}, {s(sOFF)}')
    a(f'v_mul_lo_u32 {v(vR + 11)}, {v(vR + 1)}, {s(sOFF)}')
    a(f'v_mul_lo_u32 {v(vR + 8)}, {v(vR + 8)}, {s(sT1)}')
    a(f'v_sub_u32 {v(vR + 9)}, {v(vR + 4)}, {v(vR + 9)}')
    a(f'v_add_u32 {v(vR + 11)}, {v(vR + 11)}, {v(vR + 8)}')
    a(f'ds_add_u64 {v(vR + 12)}, {v(vR + 10, 2)} offset:{TOTP}')
    a(f'v_lshl_add_u32 {v(vR + 4)}, {v(vR + 9)}, 8, {v(vR + 4)}')
    a(f'v_lshrrev_b32 {v(vR + 12)}, 1, {v(vR + 12)}')
    a(f'ds_add_u32 {v(vR + 12)}, {v(vR + 4)} offset:{CNTW}')
    a(f'v_lshrrev_b32 {v(vR + 12)}, 16, {v(vR + 3)}')
    a(f'ds_write_b32 {v(vR + 12)}, {v(iNA)} offset:{NODE}')
    a('s_waitcnt lgkmcnt(4)')
    a(f'ds_write_b64 {v(iNA)}, {v(vR + 6, 2)} offset:{PRE}')
    a('s_mov_b64 exec, -1')
    for r in range(4):
        t = rt[r]
        a(f'v_lshrrev_b32 {v(t + 3)}, 24, {v(vC + r)}')
        a(f'v_lshl_add_u32 {v(t + 3)}, {v(t + 3)}, 4, {v(vB0)}')

    def latecheck():
        a(f's_cmp_lg_u32 {s(sMODE)}, 0')
        a('s_cbranch_scc1 PAY_SLOW')
        a(f's_waitcnt vmcnt({1 if OPT["pfc"] else 0})')
        a.label('LATECHK')
        pairsum(vU, vL)
        a(f'v_xor_b32 {v(vU + 1)}, {s(sBK6)}, {v(vL)}')
        a(f'v_and_b32 {v(vU + 1)}, 0x7ff, {v(vU + 1)}')
        a(f'v_add_u32 {v(vU + 1)}, -1, {v(vU + 1)}')
        a(f'v_cmp_ne_u32 vcc, {v(vTAG)}, {v(vU)}')
        a(f'v_cmp_gt_u32 {s(sM, 2)}, 40, {v(vU + 1)}')
        a(f'v_cmp_ne_u32 {s(sLM, 2)}, 0, {v(vL + 1)}')
        a('s_cbranch_vccnz RELATE')
        a(f's_or_b64 {s(sLM, 2)}, {s(sM, 2)}, {s(sLM, 2)}')
        a('s_cbranch_scc1 LATE_PRE')
        a.label('LATE_OK')
        for r in range(4):
            a(f's_mov_b64 exec, {s(sV + 2 * r, 2)}')
            a('s_cbranch_execz PAY_OUT')
            a(f'buffer_load_dwordx4 {v(vPAY + 4 * r, 4)}, {v(rt[r] + 3)}, {s(sWS, 4)}, 0 offen sc1')
        a.label('PAY_OUT')
        a('s_mov_b64 exec, -1')
        if OPT['pfp']:
            pfload()
        a.label('PAY_JOIN')
        if OPT['stamps']:
            a(f'v_writelane_b32 v255, {s(sCNT)}, 15')

    bar()
    stamp(a, 13, sST)
    if OPT['chkpos'] == 0:
        latecheck()
    for r in range(4):
        t = rt[r]
        a(f'ds_read_u16 {v(t + 7)}, {v(t + 1)} offset:{CODE}')
    for r in range(4):
        t = rt[r]
        a(f'ds_read_u8 {v(t + 6)}, {v(t + 2)} offset:{PRE}')
    if OPT['latepos'] == 1:
        lateload()
    for r in range(4):
        t = rt[r]
        a('s_waitcnt lgkmcnt(7)')
        a(f'v_lshrrev_b32 {v(t + 1)}, 6, {v(t + 7)}')
        a(f'v_and_or_b32 {v(t + 1)}, {v(vC + r)}, 7, {v(t + 1)}')
        a(f'ds_read_u8 {v(t + 5)}, {v(t + 1)} offset:{TOTP}')
    for r in range(4):
        t = rt[r]
        a(f'v_bfi_b32 {v(t + 2)}, {s(sK1FF)}, {v(t + 7)}, {v(vC + r)}')
        a(f'v_and_b32 {v(t + 7)}, 0xe00, {v(t + 7)}')
    a(f'v_lshrrev_b32 {v(vR)}, 7, {v(iEB)}')
    a(f'v_mov_b32 {v(vR + 1)}, 8')
    for r in range(4):
        t = rt[r]
        a(f's_waitcnt lgkmcnt({3 - r})')
        a(f'v_add3_u32 {v(t + 4)}, {v(t + 4)}, {v(t + 5)}, {v(t + 6)}')
        a(f'v_and_b32 {v(t + 4)}, 127, {v(t + 4)}')
        a(f'v_lshl_add_u32 {v(t + 4)}, {v(t + 4)}, 2, {v(t + 7)}')
    for r in range(4):
        t = rt[r]
        a(f's_mov_b64 exec, {s(sV + 2 * r, 2)}')
        a(f'ds_write_b32 {v(t + 4)}, {v(t + 2)} offset:{ENT}')
    a('s_mov_b64 exec, 1')
    a(f'ds_max_u32 {v(vR)}, {v(vR + 1)} offset:{CNTW}')
    a('s_mov_b64 exec, -1')
    if OPT['chkpos'] == 1:
        latecheck()
    bar()
    stamp(a, 14, sST)
    a(f'ds_read_b128 {v(vT, 4)}, {v(iEB)} offset:{ENT}')
    a(f'ds_read_b128 {v(vWD, 4)}, {v(iEB)} offset:{ENT + 16}')
    for r in range(4):
        a(f'v_lshlrev_b32 {v(rt[r] + 4)}, 2, {v(rt[r] + 4)}')
    a(f'v_add_u32 {v(vAT)}, {s(sG)}, {v(vSMA)}')
    a(f'v_mov_b32 {v(vAW)}, {s(sG)}')
    for j_ in range(8):
        if j_ % 4 == 0:
            a(f's_waitcnt lgkmcnt({1 - j_ // 4})')
        a(f'v_and_b32 {v(vT + j_)}, {XM}, {v(vT + j_)}')
        if j_ < OPT['x1']:
            a(f'buffer_load_dwordx4 {v(vX + 4 * j_, 4)}, {v(vT + j_)}, {s(sX, 4)}, 0 offen')
    a(f's_waitcnt vmcnt({OPT["x1"] + (1 if OPT["pfp"] else 0)})')
    for r in range(4):
        a(f's_mov_b64 exec, {s(sV + 2 * r, 2)}')
        a(f'ds_write_b128 {v(rt[r] + 4)}, {v(vPAY + 4 * r, 4)} offset:{RAW}')
    a('s_mov_b64 exec, -1')
    a(f's_cmp_lg_u64 {s(sLM, 2)}, 0')
    a('s_cbranch_scc1 LATE_POST')
    a.label('LATE_END')
    bar()
    stamp(a, 4, sST)
    en = [vG + 10, vG + 11]
    pay = [vG + 12, vG + 16]
    a(f'ds_read_b128 {v(pay[0], 4)}, {v(iRW)} offset:{RAW}')
    a(f'ds_read_b32 {v(vG + 21)}, {v(iCW)} offset:{CNTW}')
    a(f'ds_read2st64_b32 {v(en[0], 2)}, {v(iEO)} offset0:{ENT // 256} offset1:{ENT // 256 + 1}')
    a(f'ds_read_b128 {v(pay[1], 4)}, {v(iRW)} offset:{RAW + 1024}')
    for j_ in range(OPT['x1'], 8):
        a(f'buffer_load_dwordx4 {v(vX + 4 * j_, 4)}, {v(vT + j_)}, {s(sX, 4)}, 0 offen')

    def zmfma(buf, j, rec):
        h = j & 1
        d = vZ + 8 * buf + 4 * h
        if j < 2:
            a(f'v_mfma_f32_4x4x4_16b_bf16 {v(d, 4)}, {v(rec, 2)}, {v(vWH + 2 * h, 2)}, 0 cbsz:4 abid:0')
        else:
            a(f'v_mfma_f32_4x4x4_16b_bf16 {v(d, 4)}, {v(rec, 2)}, {v(vWL + 2 * h, 2)}, {v(d, 4)} cbsz:4 abid:0')

    def tmfma(p):
        for o in range(4):
            a(f'v_mfma_f32_4x4x4_16b_bf16 {v(vTP + 16 + 4 * o, 4)}, {v(vCG, 2)}, {v(p, 2)}, 0 cbsz:4 abid:{o}')

    def tstore(p, st):
        d, c = vTP + 16, vTP
        a(f'ds_write_b64 {v(iBE)}, {v(p + 2, 2)} offset:{128 + 16 * st * BLK_G}')
        a(f'v_and_b32 {v(vG + 20)}, {XM}, {v(en[st])}')
        a(f'ds_write_b8 {v(iBS)}, {v(en[st])} offset:{160 + (16 * st + 1) * BLK_G}')
        a(f'ds_write_b32 {v(iBW)}, {v(vG + 20)} offset:{176 + 16 * st * BLK_G}')
        for o in range(4):
            for m in range(2):
                a(f'v_cvt_pk_bf16_f32 {v(c + 2 * o + m)}, {v(d + 4 * o + 2 * m)}, {v(d + 4 * o + 2 * m + 1)}')
        a(f'ds_write_b128 {v(iBT)}, {v(c, 4)} offset:{16 * st * BLK_G}')
        a(f'ds_write_b128 {v(iBT)}, {v(c + 4, 4)} offset:{16 * st * BLK_G + 16}')

    a('s_waitcnt lgkmcnt(3)')
    tmfma(pay[0])
    for j in range(NZ):
        zmfma(0, j, pay[0] + 2)
    a('s_waitcnt lgkmcnt(1)')
    a(f'v_readlane_b32 {s(sCNT)}, {v(vG + 21)}, {s(sW)}')
    a(f'v_cmp_lt_u32 vcc, 128, {v(vG + 21)}')
    a(f's_and_b32 {s(sT0)}, vcc_lo, 0x1ff')
    a('s_cbranch_scc1 SLOW_ENTER')
    tstore(pay[0], 0)
    a(f'ds_read2_b64 {v(vT, 4)}, {v(vAT)} offset0:0 offset1:{(BLK_G + 128) // 8}')
    a(f'ds_read_b128 {v(vWD, 4)}, {v(vAW)} offset:{176 + BLK_G * 2}')
    for i in range(8):
        a(f'v_exp_f32 {v(vE + i)}, {v(vZ + i)}')
    a(f's_add_u32 {s(sCNT)}, {s(sCNT)}, 3')
    a(f's_lshr_b32 {s(sCNT)}, {s(sCNT)}, 2')
    a(f's_mov_b32 {s(sT1)}, 1')
    for i in range(0, 8, 2):
        a(f'v_pk_fma_f32 {v(vE + i, 2)}, {v(vE + i, 2)}, {v(vONE, 2)}, {v(vONE, 2)}')
    stamp(a, 5, sST)
    if OPT['clk']:
        a(f's_memtime {s(sST, 2)}')
        a('s_waitcnt lgkmcnt(0)')
        a(f'v_writelane_b32 v255, {s(sST)}, 8')

    a.label('LOOP')
    for g in range(2):
        b = g
        if OPT['prio'] == 2:
            a(f's_setprio {g & 1}')
        a(f's_cmp_lt_u32 {s(sCNT)}, 3')
        a('s_waitcnt vmcnt(4) lgkmcnt(0)')
        a(f's_cbranch_scc1 DRAIN{g}')
        a.label(f'BACK{g}')
        tr = [f'v_rcp_f32 {v(vE + 8 * b + i)}, {v(vE + 8 * b + i)}' for i in range(8)]
        tr += [f'v_exp_f32 {v(vE + 8 * (1 - b) + i)}, {v(vZ + 8 * (1 - b) + i)}' for i in range(8)]
        a(f'v_readlane_b32 {s(sSL)}, {v(vT + 2)}, 4')
        ti = 0
        for j in range(NZ):
            zmfma(1 - b, j, vT + 2)
            a(tr[ti])
            ti += 1
        for j in range(4):
            for h in range(2):
                a(f'v_mfma_f32_4x4x4_16b_bf16 {v(vTP + 8 * j + 4 * h, 4)}, {v(vT, 2)}, {v(vX + 16 * g + 4 * j + 2 * h, 2)}, 0 cbsz:4 abid:{j}')
                a(tr[ti])
                ti += 1
        a(f'ds_read2_b64 {v(vT, 4)}, {v(vAT)} offset0:{BLK_G * (g + 1) // 8} offset1:{(BLK_G * (g + 2) + 128) // 8}')
        a(f's_cbranch_scc1 NOLD{g}')
        for j in range(4):
            a(f'buffer_load_dwordx4 {v(vX + 16 * g + 4 * j, 4)}, {v(vWD + j)}, {s(sX, 4)}, 0 offen')
        a(f'ds_read_b128 {v(vWD, 4)}, {v(vAW)} offset:{176 + BLK_G * (g + 3)}')
        a.label(f'NOLD{g}')
        for x in tr[ti:]:
            a(x)
        for i in range(0, 8, 2):
            a(f'v_pk_mul_f32 {v(vE + 8 * b + i, 2)}, {v(vE + 8 * b + i, 2)}, {v(vZ + 8 * b + i, 2)}')
        for i in range(0, 8, 2):
            a(f'v_pk_fma_f32 {v(vE + 8 * (1 - b) + i, 2)}, {v(vE + 8 * (1 - b) + i, 2)}, {v(vONE, 2)}, {v(vONE, 2)}')
        for j in range(4):
            a(f's_set_gpr_idx_on {s(sSL)}, gpr_idx(SRC2,DST)' if j == 0 else f's_set_gpr_idx_idx {s(sSL)}')
            a.idx_range = (vACC, vACC + 48)
            sel = j & 1
            for h in range(2):
                rp = vE + 8 * b + 4 * h + 2 * (j >> 1)
                for m in range(2):
                    d = vACC + 4 * h + 2 * m
                    a(f'v_pk_fma_f32 {v(d, 2)}, {v(rp, 2)}, {v(vTP + 8 * j + 4 * h + 2 * m, 2)}, {v(d, 2)} op_sel:[{sel},0,0] op_sel_hi:[{sel},1,1]')
                    if h == 0 and m == 0 and j < 3:
                        a(f's_lshr_b32 {s(sSL)}, {s(sSL)}, 8')
            a.idx_range = None
        a('s_set_gpr_idx_off')
        if g == 1:
            a(f'v_add_u32 {v(vAT)}, {BLK_G * 2}, {v(vAT)}')
            a(f'v_add_u32 {v(vAW)}, {BLK_G * 2}, {v(vAW)}')
        a(f's_sub_u32 {s(sCNT)}, {s(sCNT)}, 1')
    a(f's_cmp_eq_u32 {s(sT1)}, 0')
    a('s_cbranch_scc1 LOOP')
    a(f's_mov_b32 {s(sT1)}, 0')
    tmfma(pay[1])
    tstore(pay[1], 1)
    a('s_branch LOOP')
    for g in range(2):
        a.label(f'DRAIN{g}')
        a(f's_cmp_eq_u32 {s(sCNT)}, 2')
        a(f's_cbranch_scc1 BACK{g}')
        a(f's_cmp_eq_u32 {s(sCNT)}, 1')
        a('s_waitcnt vmcnt(0)')
        a(f's_cbranch_scc1 BACK{g}')
        if g == 0:
            a('s_branch LIST_DONE')
    a.label('LIST_DONE')
    a(f's_cmp_lg_u32 {s(sMODE)}, 0')
    a('s_cbranch_scc1 SLOW_NEXT')

    a.label('MIX')
    vD = vE
    vS = vG

    def areg(i):
        return vX + 4 * i if i < 8 else vTP + 4 * (i - 8)
    stamp(a, 6, sST)
    if OPT['clk']:
        a(f's_memtime {s(sST, 2)}')
        a('s_waitcnt lgkmcnt(0)')
        a(f'v_writelane_b32 v255, {s(sST)}, 9')
    vNO = vC
    for t_ in range(5):
        a(f'ds_read_b32 {v(vNO + t_)}, {v(iND)} offset:{NODE + 16 * t_}')
    for sl in range(5):
        for o in range(4):
            a(f'v_cvt_pk_bf16_f32 {v(vACC + 8 * sl + o)}, {v(vACC + 8 * sl + o)}, {v(vACC + 8 * sl + 4 + o)}')
        for o in range(0, 4, 2):
            a(f'ds_write2_b32 {v(vAG)}, {v(vACC + 8 * sl + o)}, {v(vACC + 8 * sl + o + 1)} offset0:{o * AGG_ROW // 4} offset1:{(o + 1) * AGG_ROW // 4}')
        if sl == 2:
            a('s_waitcnt lgkmcnt(4)')
        if sl < 4:
            a(f'v_add_u32 {v(vAG)}, {4 * AGG_ROW}, {v(vAG)}')
    a(f'v_mov_b32 {v(vWD)}, 1')
    a('s_mov_b64 exec, 1')
    a(f'ds_add_u32 {v(vGS)}, {v(vWD)} offset:{GS}')
    a(f's_or_b32 {s(sOFF)}, {s(sW)}, s2')
    a('s_cbranch_scc1 NOBUMP')
    a(f'buffer_store_dword {v(vEP)}, off, {s(sWS, 4)}, 0 sc1')
    a.label('NOBUMP')
    a('s_mov_b64 exec, -1')
    a.label('GSYNC')
    a(f'ds_read_b32 {v(vWD + 1)}, {v(vGS)} offset:{GS}')
    a('s_waitcnt lgkmcnt(0)')
    a(f'v_cmp_ne_u32 vcc, 4, {v(vWD + 1)}')
    a('s_cbranch_vccnz GWAIT')

    def aread(i):
        a(f'ds_read_b128 {v(areg(i), 4)}, {v(vAA)} offset:{(i >> 2) * 16 * AGG_ROW + (i & 3) * 64}')
    for i in range(12):
        aread(i)
    for t_ in range(5):
        a(f'v_lshl_add_u32 {v(vNO + t_)}, {v(vNO + t_)}, 15, {v(iSB)}')
    pol = ['', ' sc1', ' nt', ' sc0 sc1 nt'][OPT['outpol']]

    def outt(t_):
        d = vD + 8 * (t_ & 1)
        st = vS + 4 * t_
        for r in range(2):
            a(f'v_cvt_pk_bf16_f32 {v(st + 2 * r)}, {v(d + 4 * r)}, {v(d + 4 * r + 1)}')
            a(f'v_cvt_pk_bf16_f32 {v(st + 2 * r + 1)}, {v(d + 4 * r + 2)}, {v(d + 4 * r + 3)}')
        a(f'buffer_store_dwordx4 {v(st, 4)}, {v(vNO + t_)}, {s(sO, 4)}, 0 offen{pol}')

    for i in range(20):
        t_, kk = i >> 2, i & 3
        a(f's_waitcnt lgkmcnt({min(11, 19 - i)})')
        for r in range(2):
            d = vD + 8 * (t_ & 1) + 4 * r
            a(f'v_mfma_f32_16x16x32_bf16 {v(d, 4)}, {v(areg(i), 4)}, {v(vB + 8 * kk + 4 * r, 4)}, {"0" if kk == 0 else v(d, 4)}')
        if i + 12 < 20:
            aread(i + 12)
        if kk == 2 and t_ > 0:
            outt(t_ - 1)
    outt(4)
    if OPT['stamps']:
        a('s_waitcnt vmcnt(0)')
        stamp(a, 7, sST)
        emit_stamps(a, sST, pWS, 4)
    a.label('K_END')
    a('s_endpgm')

    a.label('GWAIT')
    a('s_sleep 1')
    a('s_branch GSYNC')

    a.label('CONSTS')
    t = vP + 8
    a(f's_cmp_eq_u32 {s(sW)}, 7')
    a('s_cbranch_scc1 CONST7')
    a(f's_sub_u32 {s(sT0)}, 6, {s(sW)}')
    a(f's_lshl_b32 {s(sT0)}, {s(sT0)}, 4')
    for k in range(4):
        a(f'v_lshlrev_b32 {v(t + k)}, {s(sT0)}, {v(vIN + k)}')
        a(f'v_and_b32 {v(t + k)}, 0xffff0000, {v(t + k)}')
        a(f'v_mul_f32 {v(t + k)}, 0xbfb8aa3b, {v(t + k)}')
    for m in range(2):
        a(f'v_cvt_pk_bf16_f32 {v(vWH + m)}, {v(t + 2 * m)}, {v(t + 2 * m + 1)}')
        a(f'v_lshlrev_b32 {v(t + 4)}, 16, {v(vWH + m)}')
        a(f'v_and_b32 {v(t + 5)}, 0xffff0000, {v(vWH + m)}')
        a(f'v_sub_f32 {v(t + 4)}, {v(t + 2 * m)}, {v(t + 4)}')
        a(f'v_sub_f32 {v(t + 5)}, {v(t + 2 * m + 1)}, {v(t + 5)}')
        a(f'v_cvt_pk_bf16_f32 {v(vWL + m)}, {v(t + 4)}, {v(t + 5)}')
    a(f's_sub_u32 {s(sT0)}, {s(sW)}, 5')
    a(f's_lshl_b32 {s(sT0)}, {s(sT0)}, 3')
    a(f'v_add_u32 {v(t)}, {s(sT0)}, {v(vL16)}')
    a(f'ds_write_b64 {v(t)}, {v(vWH, 2)} offset:{CST}')
    a(f'ds_write_b64 {v(t)}, {v(vWL, 2)} offset:{CST + 1024}')
    a('s_branch CONSTS_DONE')
    a.label('CONST7')
    a(f'v_lshl_or_b32 {v(vCG)}, {v(vIN + 5)}, 16, {v(vIN + 4)}')
    a(f'v_lshl_or_b32 {v(vCG + 1)}, {v(vIN + 7)}, 16, {v(vIN + 6)}')
    a(f'v_mov_b32 {v(vONE)}, 0xbfb8aa3b')
    a(f'v_mov_b32 {v(vONE + 1)}, 0xbfb8aa3b')
    a(f'ds_write_b128 {v(vL16)}, {v(vCG, 4)} offset:{CST + 2048}')
    a(f'v_lshrrev_b32 {v(t)}, 1, {v(vSMA)}')
    a(f'ds_write_b32 {v(t)}, {v(vIN + 8)} offset:{TBL}')
    a('s_branch CONSTS_DONE')

    def setflag():
        a(f'v_mov_b32 {v(vU)}, {FLAG}')
        a(f'ds_write_b32 {v(vU)}, {v(vU)}')

    a.label('REPOLL')
    a(f's_add_u32 {s(sCNT)}, {s(sCNT)}, {s(sSPIN)}')
    a(f's_lshr_b32 {s(sM)}, {s(sCNT)}, {OPT["spin"]}')
    a('s_cbranch_scc1 GIVEUP')
    a(f'buffer_load_dwordx4 {v(vC, 4)}, {v(vCA)}, {s(sWS, 4)}, {s(sCOFF)} offen sc1')
    a('s_waitcnt vmcnt(0)')
    a('s_branch POLL')
    a.label('GIVEUP')
    for r in range(4):
        a(f'v_mov_b32 {v(vC + r)}, 0')
    setflag()
    a('s_branch BATCH')
    a.label('RELATE')
    a(f's_add_u32 {s(sCNT)}, {s(sCNT)}, 1')
    a(f's_lshr_b32 {s(sM)}, {s(sCNT)}, {OPT["spin"]}')
    a('s_cbranch_scc1 GIVEUP2')
    a(f'buffer_load_dwordx4 {v(vL, 4)}, {v(vFA)}, {s(sWS, 4)}, {s(sLOFF)} offen sc1')
    a('s_waitcnt vmcnt(0)')
    a('s_branch LATECHK')
    a.label('GIVEUP2')
    setflag()
    a(f's_mov_b64 {s(sLM, 2)}, 0')
    a('s_branch LATE_OK')

    a.label('LATE_PRE')
    a(f'v_cndmask_b32 {v(vL + 3)}, {v(vL + 3)}, 0, {s(sODD, 2)}')
    a(f'v_and_b32 {v(vU)}, 63, {v(vL + 1)}')
    a(f'v_cmp_eq_u32 vcc, 63, {v(vU)}')
    a('s_cbranch_vccnz GIVEUP2')
    a(f's_mov_b64 {s(sLM, 2)}, 0')
    for r in range(4):
        a(f'v_xor_b32 {v(vU)}, {s(sBK6)}, {v(vL + r)}')
        a(f'v_and_b32 {v(vU)}, 0x7ff, {v(vU)}')
        a(f'v_add_u32 {v(vU)}, -1, {v(vU)}')
        a(f'v_cmp_gt_u32 vcc, 40, {v(vU)}')
        a(f'v_lshrrev_b32 {v(vU)}, 25, {v(vL + r)}')
        a(f'v_lshl_add_u32 {v(vU)}, {v(vU)}, 4, {v(vB0)}')
        a(f's_mov_b64 {s(sLR + 2 * r, 2)}, vcc')
        a(f's_cbranch_vccz LATE_P{r}')
        a(f's_or_b64 {s(sLM, 2)}, {s(sLM, 2)}, vcc')
        a('s_mov_b64 exec, vcc')
        a(f'buffer_load_dwordx4 {v(vLP + 4 * r, 4)}, {v(vU)}, {s(sWS, 4)}, 0 offen sc1')
        a('s_mov_b64 exec, -1')
        a.label(f'LATE_P{r}')
    a('s_branch LATE_OK')
    a.label('LATE_POST')
    t = rt[0]
    for r in range(4):
        a(f's_mov_b64 exec, {s(sLR + 2 * r, 2)}')
        a(f's_cbranch_execz LATE_Q{r}')
        a(f'v_and_b32 {v(t)}, 63, {v(vL + r)}')
        a(f'v_lshlrev_b32 {v(t)}, 3, {v(t)}')
        a(f'ds_read_u16 {v(t + 1)}, {v(t)} offset:{CODE - 8}')
        a(f'v_mov_b32 {v(t + 2)}, 1')
        a(f'v_lshrrev_b32 {v(t + 5)}, 1, {v(vL + r)}')
        a('s_waitcnt lgkmcnt(0)')
        a(f'v_lshrrev_b32 {v(t)}, 7, {v(t + 1)}')
        a(f'ds_add_rtn_u32 {v(t + 3)}, {v(t)}, {v(t + 2)} offset:{CNTW}')
        a(f'v_bfi_b32 {v(t + 5)}, {s(sK1FF)}, {v(t + 1)}, {v(t + 5)}')
        a(f'v_and_b32 {v(t + 1)}, 0xe00, {v(t + 1)}')
        a('s_waitcnt lgkmcnt(0)')
        a(f'v_min_u32 {v(t + 3)}, 127, {v(t + 3)}')
        a(f'v_lshl_add_u32 {v(t + 3)}, {v(t + 3)}, 2, {v(t + 1)}')
        a(f'ds_write_b32 {v(t + 3)}, {v(t + 5)} offset:{ENT}')
        a(f'v_lshlrev_b32 {v(t + 3)}, 2, {v(t + 3)}')
        a(f'ds_write_b128 {v(t + 3)}, {v(vLP + 4 * r, 4)} offset:{RAW}')
        a.label(f'LATE_Q{r}')
    a('s_mov_b64 exec, -1')
    a('s_branch LATE_END')

    a.label('SLOW_ENTER')
    a(f's_mov_b32 {s(sMODE)}, 1')
    a(f's_mov_b32 {s(sMUL)}, 0')
    a('s_branch SLOW_LOAD')
    a.label('PAY_SLOW')
    a(f'buffer_load_dwordx2 {v(vPAY, 2)}, {v(vB0)}, {s(sY, 4)}, 0 offen')
    a(f'buffer_load_dwordx2 {v(vPAY + 2, 2)}, {v(vB0)}, {s(sE, 4)}, 0 offen')
    a('s_waitcnt vmcnt(0)')
    a('s_branch PAY_JOIN')
    a.label('SLOW_NEXT')
    a(f's_add_u32 {s(sBASE)}, {s(sBASE)}, {SLOWB}')
    a(f's_cmp_ge_u32 {s(sBASE)}, {E}')
    a('s_cbranch_scc1 MIX')
    a.label('SLOW_LOAD')
    a('s_waitcnt vmcnt(0) lgkmcnt(0)')
    a('s_barrier')
    a(f'v_add_lshl_u32 {v(vR + 1)}, v0, {s(sBASE)}, 2')
    a(f'buffer_load_dword {v(vR + 2)}, {v(vR + 1)}, {s(sD, 4)}, 0 offen')
    a(f'buffer_load_dword {v(vR + 3)}, {v(vR + 1)}, {s(sS, 4)}, 0 offen')
    a(f'v_lshlrev_b32 {v(vB0)}, 1, {v(vR + 1)}')
    for r in range(1, 4):
        a(f'v_mov_b32 {v(vC + r)}, 0')
    for i in range(2):
        a(f'ds_write_b128 {v(vT16)}, {v(vZERO, 4)} offset:{RAW + 8192 * i}')
    a(f'v_mov_b32 {v(vR + 6)}, {NULLE}')
    a(f'v_mov_b32 {v(vR + 7)}, {NULLE}')
    a(f'v_lshlrev_b32 {v(vR + 5)}, 3, v0')
    a(f'ds_write_b64 {v(vR + 5)}, {v(vR + 6, 2)} offset:{ENT}')
    a(f'ds_write_b64 {v(vSMA)}, {v(vZERO, 2)} offset:{NCNT}')
    a(f'ds_write_b64 {v(vSMA)}, {v(vZERO, 2)} offset:{NCNT + 256}')
    a(f'v_cmp_gt_u32 vcc, {SLOWB}, v0')
    a(f's_mov_b64 {s(sM, 2)}, vcc')
    a('s_waitcnt vmcnt(0)')
    a(f'v_min_u32 {v(vR + 2)}, {N - 1}, {v(vR + 2)}')
    a(f'v_min_u32 {v(vR + 3)}, {N - 1}, {v(vR + 3)}')
    a(f'v_and_b32 {v(vR + 1)}, 255, {v(vR + 2)}')
    a(f'v_cmp_eq_u32 vcc, {s(sBK)}, {v(vR + 1)}')
    a(f'v_lshrrev_b32 {v(vR + 2)}, 8, {v(vR + 2)}')
    a(f'v_or_b32 {v(vR + 2)}, 64, {v(vR + 2)}')
    a(f'v_lshlrev_b32 {v(vR + 2)}, 3, {v(vR + 2)}')
    a(f'v_lshl_or_b32 {v(vR + 2)}, {v(vR + 3)}, 10, {v(vR + 2)}')
    a(f'v_and_or_b32 {v(vR + 2)}, v0, 7, {v(vR + 2)}')
    a(f's_and_b64 vcc, vcc, {s(sM, 2)}')
    a(f'v_cndmask_b32 {v(vC)}, 0, {v(vR + 2)}, vcc')
    for r in range(4):
        a(f'v_mov_b32 {v(rt[r] + 3)}, 1')
    bar()
    a('s_branch BATCH')
    a('.p2align 2')
    a('.type rank_table,@object')
    a.label('rank_table')
    tb = json.load(open('tbl.json'))[str(OPT['bias'])]
    tb = [(x & 0xffff0000) | ((x >> 10) & 7) << 9 | (x & 0x3f) for x in tb]
    for i in range(0, 80, 8):
        a('.long ' + ', '.join(f'{x:#x}' for x in tb[i:i + 8]))
    a('.size rank_table, 320')
    return a, LDS


emit(kernel)
```

```python
import json
from common import *

parse(dict(dev=1, spin=16, wsoff=0, outpol=1, zlo=1, prio=0, smask=0, clk=0, bias=16, pfstep=8,
           pfd=3, pfc=0, pfp=0, latepos=0, pwait=0, nph=8, x1=4, chkpos=1, pfq=0, pfo=0, tailst=0, spread=1, lastwb=0, shad=1, pollfirst=1, wmpos=1, pre=2, prime=0))
NULLW = 0x7FFF0000
CSTR = 8192 + 256
PSTR = 16384 + 256
CELL_OFF = 4096
PAY_OFF = 3 << 20
LATE_OFF = 8 << 20
WS_SPAN = 9 << 20
SLOWB = 100


def kernel():
    a = Asm()
    NCNT = 0
    TOT = 512
    TOTP = 576
    CNTW = 640
    FLAG = 672
    GS = 768
    PRE = 1024
    CODE = 1536
    NODE = 2048
    GCNT = 2304
    LCNT = 2336
    LATE = 2560
    TBL = 2816
    PCNT = 3072
    ENT = 4096
    RAW = ENT + 4096
    CST = RAW + 16384 + 4096
    BLK, BLK_G = CST + 3072, 192
    BLK_W = BLK_G * 38
    CELL = BLK
    PST = CELL + 8192
    AGG, AGG_W, AGG_ROW = BLK + 8 * BLK_W + 512, 20 * 272, 272
    IMG, IMG_R = AGG, 288
    LDS = AGG + 8 * AGG_W
    assert PST + 16384 < 65536 and LDS <= 163840 and 128 * IMG_R <= 8 * AGG_W
    sX, sWS, sO, sY, sE, sD, sS = 4, 8, 12, 16, 20, 24, 28
    sPTR = 32
    pX, pSRC, pDST, pY, pEF, pWR, pCG, pWM, pOUT, pDBG, pWS = [sPTR + 2 * i for i in range(11)]
    sBK, sW, sMODE, sBASE, sCNT, sT0, sT1, sOFF, sMUL, sSPIN, sG, sSL, sK1FF, sBK6 = range(54, 68)
    sWD = 68
    sPERM0, sPERM1, sLOFF = 73, 74, 75
    sV = 76
    sM = 84
    sODD = 86
    sLM = 88
    sST = 90
    sPFW, sCOFF = 92, 93
    sLR = 94
    vLN, vL16, vSMA = 1, 2, 3
    vACC = 4
    vX = 52
    vB = 84
    vTP = 116
    vZ = 148
    vE = 164
    vT = 180
    vWD = 184
    vWH = 188
    vWL, vCG, vONE = vWH + 4, vWH + 8, vWH + 10
    vAT, vAW, vTAG, vEP = 200, 201, 202, 203
    vCA, vFA, vB0, vT16 = 204, 205, 206, 207
    vC = 208
    vL = 212
    vZERO = 216
    vSO = 220
    vAA, vAG, vGS = 225, 226, 227
    vPF = 228
    vG = 232
    iEO, iCW, iRW, iBW, iBS, iBE, iBT, iEB, iNA, iKB = range(vG, vG + 10)
    iSB, iND, iTB = vSO, vSO + 1, vSO + 2
    vR = vX
    vU = vX + 16
    vIN = vX
    vWM = vX + 12
    vP = vTP
    vQ = vB
    vPAY = vTP
    vLP = vTP + 16
    NULLE = 40
    XM = 0x1ffc00 if OPT['smask'] else 0xfffc00
    NZ = 4 if OPT['zlo'] else 2
    npf = [OPT['pfo']]

    def bar():
        a('s_waitcnt lgkmcnt(0)')
        a('s_barrier')

    def pfissue(rows):
        if not rows:
            return
        a(f's_mul_i32 {s(sM)}, {s(sPFW)}, {rows}')
        a(f's_add_u32 {s(sM)}, {s(sM)}, {npf[0]}')
        a(f'v_min_u32 {v(vPF + 2)}, {rows - 1}, {v(vPF)}')
        a(f'v_add_u32 {v(vPF + 2)}, {s(sM)}, {v(vPF + 2)}')
        a(f'v_mul_u32_u24 {v(vPF + 2)}, {OPT["pfstep"] << 9}, {v(vPF + 2)}')
        a(f'v_and_b32 {v(vPF + 2)}, 0xfffffc00, {v(vPF + 2)}')
        a(f'v_add_u32 {v(vPF + 2)}, {v(vPF + 2)}, {v(vPF + 1)}')
        npf[0] += 256 * rows
        assert npf[0] * OPT['pfstep'] // 2 < N

    def pfload():
        a(f'global_load_dword {v(vPF + 3)}, {v(vPF + 2)}, {s(pX, 2)}')

    def pairsum(d, c):
        a(f'v_add3_u32 {v(d)}, {v(c)}, {v(c + 1)}, {v(c + 2)}')
        a(f'v_add_u32 {v(d)}, {v(d)}, {v(c + 3)}')
        a(f'v_add_u32_dpp {v(d)}, {v(d)}, {v(d)} quad_perm:[1,0,3,2] row_mask:0xf bank_mask:0xf')

    rt = [vZ + 8 * r for r in range(4)]
    aT8, aCE, aPS, aGC, aH, aLA, aL0, aL1, aNU, aIW, aIR, aW1, aW2, aW3, aT, aU = [vZ + k for k in (0, 1, 2, 4, 5, 6, 7, 8, 9, 10, 12, 13, 14, 15, 16, 17)]
    sPO, sLS = sWD, sWD + 1
    a('s_cmp_ge_u32 s2, 256')
    a('s_cbranch_scc1 K_END')
    stamp(a, 0, sST)
    a(f's_load_dwordx16 {s(sPTR, 16)}, s[0:1], 0')
    a(f's_load_dwordx4 {s(pOUT, 4)}, s[0:1], 64')
    a(f's_load_dwordx2 {s(pWS, 2)}, s[0:1], 80')
    a(f'v_lshrrev_b32 {v(aT)}, 6, v0')
    a(f'v_and_b32 {v(vLN)}, 63, v0')
    a(f'v_readfirstlane_b32 {s(sW)}, {v(aT)}')
    a(f'v_lshlrev_b32 {v(vT16)}, 4, v0')
    a(f'v_lshlrev_b32 {v(aT8)}, 3, v0')
    a(f's_cmp_lt_u32 {s(sW)}, 6')
    a('s_cbranch_scc1 NOCPF')
    a(f's_getpc_b64 {s(sM, 2)}')
    a.label('CPF_BASE')
    a(f'v_and_b32 {v(vPF + 3)}, 127, v0')
    a(f'v_min_u32 {v(vPF + 3)}, (CODE_END-CPF_BASE)/128, {v(vPF + 3)}')
    a(f'v_lshlrev_b32 {v(vPF + 3)}, 7, {v(vPF + 3)}')
    a(f'global_load_dword {v(vPF + 3)}, {v(vPF + 3)}, {s(sM, 2)}')
    a.label('NOCPF')
    for r in range(0, 4, 2):
        a(f'v_mov_b64 {v(vZERO + r, 2)}, 0')
    a(f'ds_write_b128 {v(vT16)}, {v(vZERO, 4)} offset:{CELL}')
    a(f'ds_write_b64 {v(aT8)}, {v(vZERO, 2)}')
    a(f'v_lshlrev_b32 {v(vL16)}, 4, {v(vLN)}')
    a(f'v_lshlrev_b32 {v(vSMA)}, 3, {v(vLN)}')
    a(f's_mul_i32 {s(sT0)}, s2, 2500')
    a(f's_mul_i32 {s(sT1)}, s2, 5000')
    for d in (sD, sS):
        a(f's_mov_b32 {s(d + 2)}, {E * 4}')
        a(f's_mov_b32 {s(d + 3)}, 0x20000')
    for d in (sY, sE):
        a(f's_mov_b32 {s(d + 2)}, {E * 8}')
        a(f's_mov_b32 {s(d + 3)}, 0x20000')
    a(f's_mov_b32 {s(sWS + 2)}, {WS_SPAN}')
    a(f's_mov_b32 {s(sWS + 3)}, 0x20000')
    a(f's_mov_b32 {s(sODD)}, 0xaaaaaaaa')
    a(f's_mov_b32 {s(sODD + 1)}, 0xaaaaaaaa')
    a('v_cmp_gt_u32 vcc, 313, v0')
    a(f's_mov_b64 {s(sV, 2)}, vcc')
    a('v_cmp_gt_u32 vcc, 312, v0')
    a(f's_mov_b64 {s(sV + 2, 2)}, vcc')
    a(f'v_mov_b32 {v(vP)}, 1')
    for r in range(0, 48, 2):
        a(f'v_mov_b64 {v(vACC + r, 2)}, 0')
    a('s_waitcnt lgkmcnt(0)')
    stamp(a, 8, sST)
    a(f's_mov_b64 {s(sD, 2)}, {s(pDST, 2)}')
    a(f's_mov_b64 {s(sS, 2)}, {s(pSRC, 2)}')
    a(f's_add_u32 {s(sWS)}, {s(pWS)}, {OPT["wsoff"] << 20}')
    a(f's_addc_u32 {s(sWS + 1)}, {s(pWS + 1)}, 0')
    a(f's_cmp_ge_u32 {s(sW)}, 5')
    a('s_cbranch_scc1 NOIN')
    a(f'buffer_load_dwordx2 {v(vIN, 2)}, {v(aT8)}, {s(sD, 4)}, {s(sT0)} offen')
    a(f'buffer_load_dwordx2 {v(vIN + 2, 2)}, {v(aT8)}, {s(sS, 4)}, {s(sT0)} offen')
    a.label('NOIN')
    a(f'buffer_load_dword {v(vEP)}, off, {s(sWS, 4)}, 0')
    a(f's_mov_b64 {s(sY, 2)}, {s(pY, 2)}')
    a(f's_mov_b64 {s(sE, 2)}, {s(pEF, 2)}')
    a('s_barrier')
    a('s_cbranch_scc1 NOIN2')
    a(f'buffer_load_dwordx4 {v(vIN + 4, 4)}, {v(vT16)}, {s(sY, 4)}, {s(sT1)} offen')
    a(f'buffer_load_dwordx4 {v(vIN + 8, 4)}, {v(vT16)}, {s(sE, 4)}, {s(sT1)} offen')
    a.label('NOIN2')
    NC = 4
    for i in range(2):
        a(f'ds_write_b128 {v(vT16)}, {v(vZERO, 4)} offset:{RAW + 8192 * i}')
    a(f'v_mov_b32 {v(aT)}, {NULLE}')
    a(f'v_mov_b32 {v(aU)}, {NULLE}')
    a(f'ds_write_b64 {v(aT8)}, {v(aT, 2)} offset:{ENT}')
    a(f's_lshl_b32 {s(sT0)}, {s(sW)}, 10')
    a(f'v_add_u32 {v(aCE)}, {s(sT0)}, {v(vL16)}')
    a(f'v_add_u32 {v(aPS)}, {s(sT0)}, {v(aCE)}')
    a(f's_lshl_b32 {s(sT0)}, {s(sW)}, 2')
    a(f'v_mov_b32 {v(aGC)}, {s(sT0)}')
    a(f's_lshl_b32 {s(sT0)}, {s(sW)}, 5')
    a(f'v_and_b32 {v(aH)}, 16, {v(vL16)}')
    a(f'v_add_u32 {v(aLA)}, {s(sT0)}, {v(aH)}')
    a(f'v_and_b32 {v(aL0)}, 56, {v(vLN)}')
    a(f'v_add_u32 {v(aL1)}, 64, {v(aL0)}')
    a(f'v_mov_b32 {v(aNU)}, {NULLW}')
    for i, r in enumerate((aW1, aW2, aW3)):
        a(f'v_add_u32 {v(r)}, {8192 * (i + 1)}, {v(vT16)}')
    a(f's_mul_i32 {s(sOFF)}, s2, {CSTR}')
    a(f's_add_u32 {s(sOFF)}, {s(sOFF)}, {CELL_OFF}')
    a(f's_mul_i32 {s(sPO)}, s2, {PSTR}')
    a(f's_add_u32 {s(sPO)}, {s(sPO)}, {PAY_OFF}')
    a(f's_lshl_b32 {s(sLS)}, {s(sW)}, 8')
    a(f's_add_u32 {s(sLS)}, {s(sLS)}, s2')
    a(f's_lshl_b32 {s(sLS)}, {s(sLS)}, 6')
    a(f's_add_u32 {s(sLS)}, {s(sLS)}, {LATE_OFF}')
    a(f's_and_b32 {s(sG)}, s2, 7')
    a(f's_lshl_b32 {s(sT0)}, {s(sG)}, 5')
    a(f's_lshr_b32 {s(sBK6)}, s2, 3')
    a(f's_add_u32 {s(sCOFF)}, {s(sBK6)}, {s(sT0)}')
    a(f's_lshl_b32 {s(sCOFF)}, {s(sCOFF)}, 5')
    a(f's_add_u32 {s(sCOFF)}, {s(sCOFF)}, {CELL_OFF}')
    a(f's_lshl_b32 {s(sPFW)}, {s(sBK6)}, 3')
    a(f's_add_u32 {s(sPFW)}, {s(sPFW)}, {s(sW)}')
    a(f's_lshl_b32 {s(sBK6)}, {s(sBK6)}, 6')
    a(f's_mov_b32 {s(sBK)}, s2')
    a(f'v_lshrrev_b32 {v(vFA)}, 1, v0')
    a(f'v_mul_u32_u24 {v(vCA)}, {CSTR}, {v(vFA)}')
    a(f'v_add_u32 {v(vCA)}, {v(vCA)}, {v(aH)}')
    a(f'v_mul_u32_u24 {v(vB0)}, {PSTR}, {v(vFA)}')
    a(f's_lshl_b32 {s(sT0)}, {s(sG)}, 11')
    a(f's_add_u32 {s(sT0)}, {s(sT0)}, {PAY_OFF}')
    a(f'v_add_u32 {v(vB0)}, {s(sT0)}, {v(vB0)}')
    a(f'v_lshl_add_u32 {v(vFA)}, {v(vFA)}, 6, {v(aH)}')
    a(f's_lshl_b32 {s(sLOFF)}, {s(sG)}, 14')
    a(f's_add_u32 {s(sLOFF)}, {s(sLOFF)}, {LATE_OFF}')
    a(f's_mov_b32 {s(sPERM0)}, 0x05040100')
    a(f's_mov_b32 {s(sPERM1)}, 0x07060302')
    a(f'v_lshrrev_b32 {v(aIW)}, 4, v0')
    a(f'v_mul_u32_u24 {v(aIW)}, {IMG_R}, {v(aIW)}')
    a(f'v_bfe_u32 {v(aIR)}, v0, 2, 2')
    a(f'v_lshl_add_u32 {v(aIW)}, {v(aIR)}, 6, {v(aIW)}')
    a(f'v_and_b32 {v(iBS)}, 3, v0')
    a(f'v_lshl_add_u32 {v(aIW)}, {v(iBS)}, 3, {v(aIW)}')
    a(f'v_add_u32 {v(aIW)}, {IMG}, {v(aIW)}')
    a(f'v_lshrrev_b32 {v(iND)}, 4, {v(vLN)}')
    a(f'v_lshl_add_u32 {v(aIR)}, {v(iND)}, 3, {v(aIR)}')
    a(f'v_mul_u32_u24 {v(aIR)}, {IMG_R}, {v(aIR)}')
    a(f'v_lshl_add_u32 {v(aIR)}, {v(iBS)}, 3, {v(aIR)}')
    a(f's_and_b32 {s(sT1)}, {s(sW)}, 3')
    a(f's_lshl_b32 {s(sT0)}, {s(sT1)}, 6')
    a(f's_add_u32 {s(sT0)}, {s(sT0)}, {IMG}')
    a(f'v_add_u32 {v(aIR)}, {s(sT0)}, {v(aIR)}')
    a(f'v_lshrrev_b32 {v(iCW)}, 1, {v(vSMA)}')

    PR = OPT['prime']
    if PR:
        a(f'buffer_store_dwordx4 {v(vZERO, 4)}, {v(aCE)}, {s(sWS, 4)}, {s(sOFF)} offen sc1')
    if PR > 1:
        a('s_mov_b64 exec, 3')
        a(f'buffer_store_dwordx4 {v(vZERO, 4)}, {v(vL16)}, {s(sWS, 4)}, {s(sLS)} offen sc1')
        a('s_mov_b64 exec, -1')

    def wmix_loads():
        for i, r in enumerate((vT16, aW1, aW2, aW3)):
            a(f'global_load_dwordx4 {v(vWM + 4 * i, 4)}, {v(r)}, {s(pWM, 2)}')
    a(f's_cmp_ge_u32 {s(sW)}, 5')
    a('s_cbranch_scc1 HELPER')
    a(f's_waitcnt vmcnt({4 + PR})')
    stamp(a, 1, sST)
    for i in range(2):
        t = vP + 2 + 8 * i
        a(f'v_min_u32 {v(vIN + i)}, {N - 1}, {v(vIN + i)}')
        a(f'v_and_b32 {v(t + 2)}, 7, {v(vIN + i)}')
        a(f'v_bfe_u32 {v(t)}, {v(vIN + i)}, 3, 5')
        a(f'v_lshl_or_b32 {v(t)}, {v(t + 2)}, 5, {v(t)}')
        a(f'v_lshlrev_b32 {v(t + 1)}, 2, {v(t)}')
        a(f'v_lshlrev_b32 {v(t + 3)}, 2, {v(t + 2)}')
        a(f's_mov_b64 exec, {s(sV + 2 * i, 2)}')
        a(f'ds_add_rtn_u32 {v(t + 4)}, {v(t + 1)}, {v(vP)} offset:{PCNT}')
        a(f'ds_add_rtn_u32 {v(t + 5)}, {v(t + 3)}, {v(vP)} offset:{GCNT}')
    a(f's_mov_b64 exec, {s(sV, 2)}')
    a(f's_waitcnt vmcnt({3 + PR})')
    for i in range(2):
        t = vP + 2 + 8 * i
        a(f'v_min_u32 {v(vIN + 2 + i)}, {N - 1}, {v(vIN + 2 + i)}')
        a(f'v_mul_u32_u24 {v(t + 6)}, {(OPT["nph"] << 26) // N}, {v(vIN + 2 + i)}')
        a(f'v_lshrrev_b32 {v(t + 6)}, 26, {v(t + 6)}')
        a(f'v_lshl_or_b32 {v(t + 6)}, {v(vIN + 2 + i)}, 10, {v(t + 6)}')
        a(f'v_lshrrev_b32 {v(t + 7)}, 8, {v(vIN + i)}')
        a(f'v_or_b32 {v(t + 1)}, 64, {v(t + 7)}')
        a(f'v_lshl_or_b32 {v(t + 6)}, {v(t + 1)}, 3, {v(t + 6)}')
    for i in range(2):
        t = vP + 2 + 8 * i
        a('s_waitcnt lgkmcnt(2)' if i == 0 else 's_waitcnt lgkmcnt(0)')
        a(f'v_lshrrev_b32 {v(t + 1)}, 4, {v(t + 5)}')
        a(f'v_and_or_b32 {v(t + 1)}, {v(t + 1)}, -8, {v(t + 4)}')
        a(f'v_cmp_gt_u32 vcc, 7, {v(t + 1)}')
        a(f'v_lshl_or_b32 {v(t + 6)}, {v(t + 5)}, 24, {v(t + 6)}')
        a(f'v_mul_u32_u24 {v(t + 1)}, 18, {v(t + 4)}')
        a(f'v_and_b32 {v(t + 1)}, 28, {v(t + 1)}')
        a(f'v_lshl_add_u32 {v(t + 1)}, {v(t)}, 5, {v(t + 1)}')
        a(f's_andn2_b64 {s(sV + 4 + 2 * i, 2)}, {s(sV + 2 * i, 2)}, vcc')
        a(f's_and_b64 exec, {s(sV + 2 * i, 2)}, vcc')
        a(f'ds_write_b32 {v(t + 1)}, {v(t + 6)} offset:{CELL}')
        a(f's_mov_b64 exec, {s(sV, 2)}' if i == 0 else 's_mov_b64 exec, -1')
    if OPT['wmpos'] == 1:
        wmix_loads()
    a(f's_waitcnt vmcnt({2 + PR + (NC if OPT["wmpos"] == 1 else 0)})')
    a('s_branch JOIN2')
    a.label('HELPER')
    a(f's_cmp_eq_u32 {s(sW)}, 7')
    a('s_cbranch_scc1 HELP7')
    for k in range(4):
        a(f'global_load_dword {v(vIN + k)}, {v(iCW)}, {s(pWR, 2)} offset:{k * 256}')
    a(f'global_load_dword {v(vIN + 4)}, {v(iCW)}, {s(pWR, 2)}')
    a('s_branch HELP_W')
    a.label('HELP7')
    a(f'v_lshlrev_b32 {v(aT)}, 5, {v(iBS)}')
    a(f'v_bfe_u32 {v(aU)}, v0, 2, 2')
    a(f'v_lshl_add_u32 {v(aT)}, {v(aU)}, 1, {v(aT)}')
    for f in range(4):
        a(f'global_load_ushort {v(vIN + 4 + f)}, {v(aT)}, {s(pCG, 2)} offset:{f * 8}')
    a(f's_getpc_b64 {s(sM, 2)}')
    a.label('TBL_BASE')
    a(f'v_min_u32 {v(aT)}, 39, {v(vLN)}')
    a('s_and_b32 s3, s2, 0xf0')
    a('s_cselect_b32 s3, 0, 160')
    a('s_add_u32 s3, s3, rank_table-TBL_BASE')
    a(f'v_lshl_add_u32 {v(aT)}, {v(aT)}, 2, s3')
    a(f'global_load_dword {v(vIN + 8)}, {v(aT)}, {s(sM, 2)}')
    a.label('HELP_W')
    if OPT['wmpos'] == 1:
        wmix_loads()
    a(f's_waitcnt vmcnt({5 + PR + (NC if OPT["wmpos"] == 1 else 0)})')
    a.label('JOIN2')
    a(f'v_add_u32 {v(vEP)}, 1, {v(vEP)}')
    a(f'v_lshl_or_b32 {v(vTAG)}, {v(vEP)}, 1, 1')
    bar()
    p0 = vP + 24
    a(f'ds_read_b128 {v(vC, 4)}, {v(aCE)} offset:{CELL}')
    a(f'ds_read_b32 {v(aGC)}, {v(aGC)} offset:{GCNT}')
    a('s_waitcnt lgkmcnt(1)')
    pairsum(aT, vC)
    a(f'v_sub_u32 {v(aT)}, {v(vTAG)}, {v(aT)}')
    a(f'v_cndmask_b32 {v(vC + 3)}, {v(vC + 3)}, {v(aT)}, {s(sODD, 2)}')
    a(f'buffer_store_dwordx4 {v(vC, 4)}, {v(aCE)}, {s(sWS, 4)}, {s(sOFF)} offen sc1')
    stamp(a, 2, sST)
    if OPT['wmpos'] == 2:
        wmix_loads()
    a(f's_cmp_ge_u32 {s(sW)}, 5')
    a(f's_waitcnt vmcnt({NC + 1})')
    a('s_cbranch_scc1 CONSTS')
    a(f's_mov_b64 exec, {s(sV, 2)}')
    for i in range(2):
        t = vP + 2 + 8 * i
        a(f'v_and_b32 {v(t + 4)}, 127, {v(t + 5)}')
        a(f'v_lshl_or_b32 {v(t + 4)}, {v(t + 2)}, 7, {v(t + 4)}')
        a(f'v_lshlrev_b32 {v(t + 4)}, 4, {v(t + 4)}')
    a(f'v_swap_b32 {v(vIN + 6)}, {v(vIN + 8)}')
    a(f'v_swap_b32 {v(vIN + 7)}, {v(vIN + 9)}')
    for i in range(2):
        t = vP + 2 + 8 * i
        if i:
            a(f's_mov_b64 exec, {s(sV + 2, 2)}')
        a(f'ds_write_b128 {v(t + 4)}, {v(vIN + 4 + 4 * i, 4)} offset:{PST}')
    a('s_mov_b64 exec, -1')
    a('s_branch NOSTAGE')
    a.label('CONSTS')
    t = vP + 8
    a(f's_cmp_eq_u32 {s(sW)}, 7')
    a('s_cbranch_scc1 CONST7')
    a(f's_sub_u32 {s(sT0)}, 6, {s(sW)}')
    a(f's_lshl_b32 {s(sT0)}, {s(sT0)}, 4')
    for k in range(4):
        a(f'v_lshlrev_b32 {v(t + k)}, {s(sT0)}, {v(vIN + k)}')
        a(f'v_and_b32 {v(t + k)}, 0xffff0000, {v(t + k)}')
        a(f'v_mul_f32 {v(t + k)}, 0xbfb8aa3b, {v(t + k)}')
    for m in range(2):
        a(f'v_cvt_pk_bf16_f32 {v(vWH + m)}, {v(t + 2 * m)}, {v(t + 2 * m + 1)}')
        a(f'v_lshlrev_b32 {v(t + 4)}, 16, {v(vWH + m)}')
        a(f'v_and_b32 {v(t + 5)}, 0xffff0000, {v(vWH + m)}')
        a(f'v_sub_f32 {v(t + 4)}, {v(t + 2 * m)}, {v(t + 4)}')
        a(f'v_sub_f32 {v(t + 5)}, {v(t + 2 * m + 1)}, {v(t + 5)}')
        a(f'v_cvt_pk_bf16_f32 {v(vWL + m)}, {v(t + 4)}, {v(t + 5)}')
    a(f's_sub_u32 {s(sT0)}, {s(sW)}, 5')
    a(f's_lshl_b32 {s(sT0)}, {s(sT0)}, 3')
    a(f'v_add_u32 {v(t)}, {s(sT0)}, {v(vL16)}')
    a(f'ds_write_b64 {v(t)}, {v(vWH, 2)} offset:{CST}')
    a(f'ds_write_b64 {v(t)}, {v(vWL, 2)} offset:{CST + 1024}')
    a('s_branch NOSTAGE')
    a.label('CONST7')
    a(f'v_lshl_or_b32 {v(vCG)}, {v(vIN + 5)}, 16, {v(vIN + 4)}')
    a(f'v_lshl_or_b32 {v(vCG + 1)}, {v(vIN + 7)}, 16, {v(vIN + 6)}')
    a(f'v_mov_b32 {v(vONE)}, 0xbfb8aa3b')
    a(f'v_mov_b32 {v(vONE + 1)}, 0xbfb8aa3b')
    a(f'ds_write_b128 {v(vL16)}, {v(vCG, 4)} offset:{CST + 2048}')
    a(f'ds_write_b32 {v(iCW)}, {v(vIN + 8)} offset:{TBL}')
    a.label('NOSTAGE')
    bar()
    for i in range(2):
        a(f'ds_read_b128 {v(p0 + 4 * i, 4)}, {v(aPS)} offset:{PST + 1024 * i}')
    a(f'v_cmp_lt_u32 vcc, {v(aL0)}, {v(aGC)}')
    a(f'v_cmp_lt_u32 {s(sM, 2)}, {v(aL1)}, {v(aGC)}')
    a(f's_cmp_ge_u32 {s(sW)}, 5')
    a(f'v_cndmask_b32 {v(aL0)}, {v(aNU)}, {v(aPS)}, vcc')
    a(f'v_cndmask_b32 {v(aL1)}, {v(aNU)}, {v(aPS)}, {s(sM, 2)}')
    for i, r in enumerate((aL0, aL1)):
        a(f's_waitcnt lgkmcnt({1 - i})')
        a(f'buffer_store_dwordx4 {v(p0 + 4 * i, 4)}, {v(r)}, {s(sWS, 4)}, {s(sPO)} offen offset:{1024 * i} sc1')
    stamp(a, 9, sST)
    a('s_cbranch_scc1 LATE_DONE')
    a(f's_or_b64 {s(sM, 2)}, {s(sV + 4, 2)}, {s(sV + 6, 2)}')
    a('s_cbranch_scc0 LATE_DONE')
    for i in range(2):
        t = vP + 2 + 8 * i
        a(f's_mov_b64 exec, {s(sV + 4 + 2 * i, 2)}')
        a(f'ds_add_rtn_u32 {v(t + 4)}, {v(t + 3)}, {v(vP)} offset:{LCNT}')
    a('s_mov_b64 exec, -1')
    for i in range(2):
        t = vP + 2 + 8 * i
        a(f'v_add_u32 {v(t + 7)}, 1, {v(t + 7)}')
        a(f'v_and_b32 {v(t + 1)}, 31, {v(t)}')
        a(f'v_lshl_or_b32 {v(t + 7)}, {v(t + 1)}, 6, {v(t + 7)}')
        a(f'v_lshrrev_b32 {v(t + 6)}, 10, {v(t + 6)}')
        a(f'v_lshl_or_b32 {v(t + 7)}, {v(t + 6)}, 11, {v(t + 7)}')
        a(f'v_lshrrev_b32 {v(t + 1)}, 4, {v(t + 5)}')
    a('s_waitcnt lgkmcnt(0)')
    for i in range(2):
        t = vP + 2 + 8 * i
        a(f'v_and_or_b32 {v(t + 1)}, {v(t + 1)}, -8, {v(t + 4)}')
        a(f'v_cmp_gt_u32 vcc, 7, {v(t + 1)}')
        a(f'v_mul_u32_u24 {v(t + 1)}, 18, {v(t + 4)}')
        a(f'v_and_b32 {v(t + 1)}, 28, {v(t + 1)}')
        a(f'v_cndmask_b32 {v(t + 1)}, 4, {v(t + 1)}, vcc')
        a(f'v_cndmask_b32 {v(t + 7)}, 63, {v(t + 7)}, vcc')
        a(f'v_lshl_add_u32 {v(t + 1)}, {v(t + 2)}, 5, {v(t + 1)}')
        a(f's_mov_b64 exec, {s(sV + 4 + 2 * i, 2)}')
        a(f'ds_or_b32 {v(t + 1)}, {v(t + 7)} offset:{LATE}')
        a('s_mov_b64 exec, -1')
    a.label('LATE_DONE')
    a(f's_waitcnt vmcnt({3 if OPT["wmpos"] == 1 else 2})')
    for i in range(4):
        t = vQ + 4 * i
        w = vWM + 4 * i
        a(f'v_perm_b32 {v(t)}, {v(w + 1)}, {v(w)}, {s(sPERM0)}')
        a(f'v_perm_b32 {v(t + 1)}, {v(w + 3)}, {v(w + 2)}, {s(sPERM0)}')
        a(f'v_perm_b32 {v(t + 2)}, {v(w + 1)}, {v(w)}, {s(sPERM1)}')
        a(f'v_perm_b32 {v(t + 3)}, {v(w + 3)}, {v(w + 2)}, {s(sPERM1)}')
        a(f'ds_write2_b64 {v(aIW)}, {v(t, 2)}, {v(t + 2, 2)} offset0:0 offset1:4')
        if i < 3:
            a(f'v_add_u32 {v(aIW)}, {32 * IMG_R}, {v(aIW)}')

    def setup1():
        srd(a, sO, pOUT, N * 1024)
        a(f's_mov_b32 {s(sX)}, {s(pX)}')
        a(f's_or_b32 {s(sX + 1)}, {s(pX + 1)}, 0x100000')
        a(f's_mov_b32 {s(sX + 2)}, 64')
        a(f's_mov_b32 {s(sX + 3)}, 0x800000')
        a(f's_mov_b32 {s(sMODE)}, 0')
        a(f's_mov_b32 {s(sBASE)}, 0')
        a(f's_mov_b32 {s(sMUL)}, 64')
        a(f's_mov_b32 {s(sK1FF)}, 0x1ff')
        a(f's_mov_b32 {s(sPERM0)}, 0x05010400')
        a(f's_mov_b32 {s(sPERM1)}, 0x07030602')
        a('s_cmp_eq_u32 s2, 0')
        a(f's_cselect_b32 {s(sSPIN)}, {OPT["dev"]}, 1')
        a(f's_mov_b32 {s(sCNT)}, 0')
        a(f's_and_b32 {s(sT0)}, {s(sW)}, 4')
        a(f'v_mov_b32 {v(vGS)}, {s(sT0)}')
        a(f'v_and_b32 {v(iSB)}, 15, {v(vLN)}')
        a(f'v_mul_u32_u24 {v(vAA)}, {AGG_ROW}, {v(iSB)}')
        a(f'v_lshl_add_u32 {v(vAA)}, {v(iND)}, 4, {v(vAA)}')
        a(f's_mul_i32 {s(sOFF)}, {s(sT0)}, {AGG_W}')
        a(f's_add_u32 {s(sOFF)}, {s(sOFF)}, {AGG}')
        a(f'v_add_u32 {v(vAA)}, {s(sOFF)}, {v(vAA)}')
        a(f's_mul_i32 {s(sOFF)}, {s(sT0)}, 20')
        a(f'v_lshl_add_u32 {v(iND)}, {v(iND)}, 2, {s(sOFF)}')
        a(f's_mul_i32 {s(sOFF)}, {s(sW)}, {AGG_W}')
        a(f's_add_u32 {s(sOFF)}, {s(sOFF)}, {AGG}')
        a(f'v_add_u32 {v(vAG)}, {s(sOFF)}, {v(iCW)}')
        a(f's_lshl_b32 {s(sOFF)}, {s(sBK)}, 10')
        a(f's_lshl_b32 {s(sT1)}, {s(sT1)}, 8')
        a(f's_add_u32 {s(sOFF)}, {s(sOFF)}, {s(sT1)}')
        a(f'v_lshl_add_u32 {v(iSB)}, {v(iSB)}, 4, {s(sOFF)}')

    def setup2():
        a(f's_lshl_b32 {s(sT0)}, {s(sW)}, 9')
        a(f'v_mov_b32 {v(iEB)}, {s(sT0)}')
        a(f'v_add_u32 {v(iEO)}, {s(sT0)}, {v(iCW)}')
        a(f'v_lshlrev_b32 {v(iRW)}, 2, {v(iEO)}')
        a(f's_mul_i32 {s(sG)}, {s(sW)}, {BLK_W}')
        a(f's_add_u32 {s(sG)}, {s(sG)}, {BLK}')
        a(f'v_lshrrev_b32 {v(vU + 3)}, 2, {v(vLN)}')
        a(f'v_mul_u32_u24 {v(vU + 3)}, {BLK_G}, {v(vU + 3)}')
        a(f'v_add_u32 {v(vU + 3)}, {s(sG)}, {v(vU + 3)}')
        a(f'v_lshl_add_u32 {v(iBW)}, {v(iBS)}, 2, {v(vU + 3)}')
        a(f'v_lshl_add_u32 {v(iBE)}, {v(iBS)}, 3, {v(vU + 3)}')
        a(f'v_lshl_add_u32 {v(iBT)}, {v(iBS)}, 5, {v(vU + 3)}')
        a(f'v_add_u32 {v(iBS)}, {v(iBS)}, {v(vU + 3)}')
        a(f's_mul_i32 {s(sT0)}, {s(sW)}, 5')
        a(f'v_add_u32 {v(iNA)}, {s(sT0)}, {v(vLN)}')
        a(f'v_cmp_gt_u32 vcc, 40, {v(vLN)}')
        a(f'v_subrev_u32 {v(iKB)}, 40, {v(iNA)}')
        a(f'v_min_u32 {v(iNA)}, {v(iNA)}, {v(iKB)}')
        a(f'v_cndmask_b32 {v(iNA)}, 63, {v(iNA)}, vcc')
        a(f'v_sub_u32 {v(iKB)}, 63, {v(iNA)}')
        a(f'v_lshlrev_b32 {v(iNA)}, 3, {v(iNA)}')
        a(f'v_lshrrev_b32 {v(vPF)}, 3, {v(vLN)}')
        a(f'v_and_b32 {v(vPF + 1)}, 7, v0')
        a(f'v_lshlrev_b32 {v(vPF + 1)}, 7, {v(vPF + 1)}')
        pfissue(OPT['pfd'] or OPT['pfc'] or OPT['pfp'])
        for r in range(4):
            a(f'v_mov_b32 {v(rt[r] + 3)}, 1')

    if OPT['pre'] >= 1:
        setup1()
    if OPT['pre'] >= 2:
        setup2()
    bar()
    a(f'ds_read_b128 {v(vL, 4)}, {v(aLA)} offset:{LATE}')

    def poll():
        stamp(a, 11, sST)
        a(f'buffer_load_dwordx4 {v(vC, 4)}, {v(vCA)}, {s(sWS, 4)}, {s(sCOFF)} offen sc1')
    if OPT['pollfirst']:
        a('s_waitcnt vmcnt(2)')
        poll()
    a('s_waitcnt lgkmcnt(0)')
    pairsum(aT, vL)
    a(f'v_sub_u32 {v(aT)}, {v(vTAG)}, {v(aT)}')
    a(f'v_cndmask_b32 {v(vL + 3)}, {v(vL + 3)}, {v(aT)}, {s(sODD, 2)}')
    a('s_mov_b64 exec, 3')
    a(f's_waitcnt vmcnt({OPT["pollfirst"]})')
    a(f'buffer_store_dwordx4 {v(vL, 4)}, {v(vL16)}, {s(sWS, 4)}, {s(sLS)} offen sc1')
    a('s_mov_b64 exec, -1')
    stamp(a, 10, sST)
    if not OPT['pollfirst']:
        if OPT['pwait']:
            a('s_waitcnt vmcnt(0)')
        poll()
    a(f'ds_read_b32 {v(iTB)}, {v(iCW)} offset:{TBL}')
    for i in range(3):
        a(f'ds_read_b128 {v(vWH + 4 * i, 4)}, {v(vL16)} offset:{CST + 1024 * i}')
    for kk in range(4):
        for r in range(2):
            for hf in range(2):
                a(f'ds_read_b64_tr_b16 {v(vB + 8 * kk + 4 * r + 2 * hf, 2)}, {v(aIR)} offset:{(32 * kk + 4 * hf) * IMG_R + 32 * r}')
        if kk == 1:
            if OPT['pre'] < 1:
                setup1()
            a('s_waitcnt lgkmcnt(4)')
    if OPT['pre'] < 2:
        setup2()
    stamp(a, 12, sST)
    a(f's_waitcnt vmcnt({OPT["pollfirst"]})')
    a.label('POLL')
    pairsum(vR, vC)
    a(f'v_cmp_ne_u32 vcc, {v(vTAG)}, {v(vR)}')
    a('s_cbranch_vccnz REPOLL')
    if OPT['pfd']:
        pfload()
    stamp(a, 3, sST)
    a(f'v_cndmask_b32 {v(vC + 3)}, {v(vC + 3)}, 0, {s(sODD, 2)}')

    a.label('BATCH')
    for r in range(4):
        t, e = rt[r], vC + r
        a(f'v_cmp_ne_u32 {s(sV + 2 * r, 2)}, 0, {v(e)}')
        a(f'v_lshlrev_b32 {v(t)}, 2, {v(e)}')
        a(f'v_and_b32 {v(t + 1)}, 0x1f8, {v(e)}')
        a(f'v_lshlrev_b32 {v(t + 2)}, {v(t)}, 1')
    for r in range(4):
        t = rt[r]
        a(f's_mov_b64 exec, {s(sV + 2 * r, 2)}')
        a(f'ds_add_rtn_u64 {v(t + 4, 2)}, {v(t + 1)}, {v(t + 2, 2)} offset:{NCNT}')
    a('s_mov_b64 exec, -1')
    a(f's_mov_b64 {s(sLM, 2)}, 0')
    a(f's_mov_b32 {s(sOFF)}, 0x01010100')
    a(f's_mov_b32 {s(sT1)}, 0x01010101')
    bar()
    a(f'ds_read_b64 {v(vR, 2)}, {v(iNA)} offset:{NCNT}')

    def lateload():
        a(f'buffer_load_dwordx4 {v(vL, 4)}, {v(vFA)}, {s(sWS, 4)}, {s(sLOFF)} offen sc1')
        if OPT['pfc']:
            pfload()
    if OPT['latepos'] == 0:
        lateload()
    for r in range(4):
        t = rt[r]
        a(f'v_and_b32 {v(t + 2)}, 0x1ff, {v(vC + r)}')
        a(f'v_bfe_u32 {v(t + 4)}, {v(t + 4)}, {v(t)}, 4')
    a('s_waitcnt lgkmcnt(0)')
    a(f'v_min_u32 {v(vR + 4)}, 0xffff, {v(vR + 1)}')
    a(f'v_mad_u32_u24 {v(vR + 2)}, {v(vR + 4)}, {s(sMUL)}, {v(iKB)}')
    a(f'v_lshrrev_b32 {v(vR + 8)}, 4, {v(vR)}')
    for j in range(5):
        a(f'v_readlane_b32 {s(sWD + j)}, {v(vR + 2)}, {j}')
    a(f'v_and_b32 {v(vR + 8)}, 0x0f0f0f0f, {v(vR + 8)}')
    a(f'v_and_b32 {v(vR + 9)}, 0x0f0f0f0f, {v(vR)}')
    for j in range(5):
        a(f'v_cmp_lt_u32 vcc, {s(sWD + j)}, {v(vR + 2)}')
        a(f's_bcnt1_i32_b64 {s(sWD + j)}, vcc')
    a(f'v_perm_b32 {v(vR)}, {v(vR + 8)}, {v(vR + 9)}, {s(sPERM0)}')
    a(f'v_perm_b32 {v(vR + 1)}, {v(vR + 8)}, {v(vR + 9)}, {s(sPERM1)}')
    for j in range(5):
        a(f'v_readlane_b32 {s(sWD + j)}, {v(iTB)}, {s(sWD + j)}')
    a(f'v_sad_u8 {v(vR + 8)}, {v(vR)}, 0, 0')
    a(f'v_sad_u8 {v(vR + 9)}, {v(vR + 1)}, 0, {v(vR + 8)}')
    for j in range(5):
        a(f'v_writelane_b32 {v(vR + 3)}, {s(sWD + j)}, {j}')
    a('s_mov_b64 exec, 31')
    a(f'v_bfe_u32 {v(vR + 12)}, {v(vR + 3)}, 6, 6')
    a(f'ds_add_rtn_u64 {v(vR + 6, 2)}, {v(vR + 12)}, {v(vR, 2)} offset:{TOT}')
    a(f'ds_write_b16 {v(iNA)}, {v(vR + 3)} offset:{CODE}')
    a(f'v_mul_lo_u32 {v(vR + 10)}, {v(vR)}, {s(sOFF)}')
    a(f'v_mul_lo_u32 {v(vR + 11)}, {v(vR + 1)}, {s(sOFF)}')
    a(f'v_mul_lo_u32 {v(vR + 8)}, {v(vR + 8)}, {s(sT1)}')
    a(f'v_sub_u32 {v(vR + 9)}, {v(vR + 4)}, {v(vR + 9)}')
    a(f'v_add_u32 {v(vR + 11)}, {v(vR + 11)}, {v(vR + 8)}')
    a(f'ds_add_u64 {v(vR + 12)}, {v(vR + 10, 2)} offset:{TOTP}')
    a(f'v_lshl_add_u32 {v(vR + 4)}, {v(vR + 9)}, 8, {v(vR + 4)}')
    a(f'v_lshrrev_b32 {v(vR + 12)}, 1, {v(vR + 12)}')
    a(f'ds_add_u32 {v(vR + 12)}, {v(vR + 4)} offset:{CNTW}')
    a(f'v_lshrrev_b32 {v(vR + 12)}, 16, {v(vR + 3)}')
    a(f'ds_write_b32 {v(vR + 12)}, {v(iNA)} offset:{NODE}')
    a('s_waitcnt lgkmcnt(4)')
    a(f'ds_write_b64 {v(iNA)}, {v(vR + 6, 2)} offset:{PRE}')
    a('s_mov_b64 exec, -1')
    for r in range(4):
        t = rt[r]
        a(f'v_lshrrev_b32 {v(t + 3)}, 24, {v(vC + r)}')
        a(f'v_lshl_add_u32 {v(t + 3)}, {v(t + 3)}, 4, {v(vB0)}')

    def latecheck():
        a(f's_cmp_lg_u32 {s(sMODE)}, 0')
        a('s_cbranch_scc1 PAY_SLOW')
        a(f's_waitcnt vmcnt({1 if OPT["pfc"] else 0})')
        a.label('LATECHK')
        pairsum(vU, vL)
        a(f'v_xor_b32 {v(vU + 1)}, {s(sBK6)}, {v(vL)}')
        a(f'v_and_b32 {v(vU + 1)}, 0x7ff, {v(vU + 1)}')
        a(f'v_add_u32 {v(vU + 1)}, -1, {v(vU + 1)}')
        a(f'v_cmp_ne_u32 vcc, {v(vTAG)}, {v(vU)}')
        a(f'v_cmp_gt_u32 {s(sM, 2)}, 40, {v(vU + 1)}')
        a(f'v_cmp_ne_u32 {s(sLM, 2)}, 0, {v(vL + 1)}')
        a('s_cbranch_vccnz RELATE')
        a(f's_or_b64 {s(sLM, 2)}, {s(sM, 2)}, {s(sLM, 2)}')
        a('s_cbranch_scc1 LATE_PRE')
        a.label('LATE_OK')
        for r in range(4):
            a(f's_mov_b64 exec, {s(sV + 2 * r, 2)}')
            a('s_cbranch_execz PAY_OUT')
            a(f'buffer_load_dwordx4 {v(vPAY + 4 * r, 4)}, {v(rt[r] + 3)}, {s(sWS, 4)}, 0 offen sc1')
        a.label('PAY_OUT')
        a('s_mov_b64 exec, -1')
        if OPT['pfp']:
            pfload()
        a.label('PAY_JOIN')
        if OPT['stamps']:
            a(f'v_writelane_b32 v255, {s(sCNT)}, 15')

    bar()
    stamp(a, 13, sST)
    if OPT['chkpos'] == 0:
        latecheck()
    for r in range(4):
        t = rt[r]
        a(f'ds_read_u16 {v(t + 7)}, {v(t + 1)} offset:{CODE}')
    for r in range(4):
        t = rt[r]
        a(f'ds_read_u8 {v(t + 6)}, {v(t + 2)} offset:{PRE}')
    if OPT['latepos'] == 1:
        lateload()
    for r in range(4):
        t = rt[r]
        a('s_waitcnt lgkmcnt(7)')
        a(f'v_lshrrev_b32 {v(t + 1)}, 6, {v(t + 7)}')
        a(f'v_and_or_b32 {v(t + 1)}, {v(vC + r)}, 7, {v(t + 1)}')
        a(f'ds_read_u8 {v(t + 5)}, {v(t + 1)} offset:{TOTP}')
    for r in range(4):
        t = rt[r]
        a(f'v_bfi_b32 {v(t + 2)}, {s(sK1FF)}, {v(t + 7)}, {v(vC + r)}')
        a(f'v_and_b32 {v(t + 7)}, 0xe00, {v(t + 7)}')
    a(f'v_lshrrev_b32 {v(vR)}, 7, {v(iEB)}')
    a(f'v_mov_b32 {v(vR + 1)}, 8')
    for r in range(4):
        t = rt[r]
        a(f's_waitcnt lgkmcnt({3 - r})')
        a(f'v_add3_u32 {v(t + 4)}, {v(t + 4)}, {v(t + 5)}, {v(t + 6)}')
        a(f'v_and_b32 {v(t + 4)}, 127, {v(t + 4)}')
        a(f'v_lshl_add_u32 {v(t + 4)}, {v(t + 4)}, 2, {v(t + 7)}')
    for r in range(4):
        t = rt[r]
        a(f's_mov_b64 exec, {s(sV + 2 * r, 2)}')
        a(f'ds_write_b32 {v(t + 4)}, {v(t + 2)} offset:{ENT}')
    a('s_mov_b64 exec, 1')
    a(f'ds_max_u32 {v(vR)}, {v(vR + 1)} offset:{CNTW}')
    a('s_mov_b64 exec, -1')
    if OPT['chkpos'] == 1:
        latecheck()
    bar()
    stamp(a, 14, sST)
    a(f'ds_read_b128 {v(vT, 4)}, {v(iEB)} offset:{ENT}')
    a(f'ds_read_b128 {v(vWD, 4)}, {v(iEB)} offset:{ENT + 16}')
    for r in range(4):
        a(f'v_lshlrev_b32 {v(rt[r] + 4)}, 2, {v(rt[r] + 4)}')
    a(f'v_add_u32 {v(vAT)}, {s(sG)}, {v(vSMA)}')
    a(f'v_mov_b32 {v(vAW)}, {s(sG)}')
    for j_ in range(8):
        if j_ % 4 == 0:
            a(f's_waitcnt lgkmcnt({1 - j_ // 4})')
        a(f'v_and_b32 {v(vT + j_)}, {XM}, {v(vT + j_)}')
        if j_ < OPT['x1']:
            a(f'buffer_load_dwordx4 {v(vX + 4 * j_, 4)}, {v(vT + j_)}, {s(sX, 4)}, 0 offen')
    a(f's_waitcnt vmcnt({OPT["x1"] + (1 if OPT["pfp"] else 0)})')
    for r in range(4):
        a(f's_mov_b64 exec, {s(sV + 2 * r, 2)}')
        a(f'ds_write_b128 {v(rt[r] + 4)}, {v(vPAY + 4 * r, 4)} offset:{RAW}')
    a('s_mov_b64 exec, -1')
    a(f's_cmp_lg_u64 {s(sLM, 2)}, 0')
    a('s_cbranch_scc1 LATE_POST')
    a.label('LATE_END')
    bar()
    stamp(a, 4, sST)
    en = [vG + 10, vG + 11]
    pay = [vG + 12, vG + 16]
    a(f'ds_read_b128 {v(pay[0], 4)}, {v(iRW)} offset:{RAW}')
    a(f'ds_read_b32 {v(vG + 21)}, {v(iCW)} offset:{CNTW}')
    a(f'ds_read2st64_b32 {v(en[0], 2)}, {v(iEO)} offset0:{ENT // 256} offset1:{ENT // 256 + 1}')
    a(f'ds_read_b128 {v(pay[1], 4)}, {v(iRW)} offset:{RAW + 1024}')
    for j_ in range(OPT['x1'], 8):
        a(f'buffer_load_dwordx4 {v(vX + 4 * j_, 4)}, {v(vT + j_)}, {s(sX, 4)}, 0 offen')

    def zmfma(buf, j, rec):
        h = j & 1
        d = vZ + 8 * buf + 4 * h
        if j < 2:
            a(f'v_mfma_f32_4x4x4_16b_bf16 {v(d, 4)}, {v(rec, 2)}, {v(vWH + 2 * h, 2)}, 0 cbsz:4 abid:0')
        else:
            a(f'v_mfma_f32_4x4x4_16b_bf16 {v(d, 4)}, {v(rec, 2)}, {v(vWL + 2 * h, 2)}, {v(d, 4)} cbsz:4 abid:0')

    def tmfma(p):
        for o in range(4):
            a(f'v_mfma_f32_4x4x4_16b_bf16 {v(vTP + 16 + 4 * o, 4)}, {v(vCG, 2)}, {v(p, 2)}, 0 cbsz:4 abid:{o}')

    def tstore(p, st):
        d, c = vTP + 16, vTP
        a(f'ds_write_b64 {v(iBE)}, {v(p + 2, 2)} offset:{128 + 16 * st * BLK_G}')
        a(f'v_and_b32 {v(vG + 20)}, {XM}, {v(en[st])}')
        a(f'ds_write_b8 {v(iBS)}, {v(en[st])} offset:{160 + (16 * st + 1) * BLK_G}')
        a(f'ds_write_b32 {v(iBW)}, {v(vG + 20)} offset:{176 + 16 * st * BLK_G}')
        for o in range(4):
            for m in range(2):
                a(f'v_cvt_pk_bf16_f32 {v(c + 2 * o + m)}, {v(d + 4 * o + 2 * m)}, {v(d + 4 * o + 2 * m + 1)}')
        a(f'ds_write_b128 {v(iBT)}, {v(c, 4)} offset:{16 * st * BLK_G}')
        a(f'ds_write_b128 {v(iBT)}, {v(c + 4, 4)} offset:{16 * st * BLK_G + 16}')

    a('s_waitcnt lgkmcnt(3)')
    tmfma(pay[0])
    for j in range(NZ):
        zmfma(0, j, pay[0] + 2)
    a('s_waitcnt lgkmcnt(1)')
    a(f'v_readlane_b32 {s(sCNT)}, {v(vG + 21)}, {s(sW)}')
    a(f'v_cmp_lt_u32 vcc, 128, {v(vG + 21)}')
    a(f's_and_b32 {s(sT0)}, vcc_lo, 0x1ff')
    a('s_cbranch_scc1 SLOW_ENTER')
    tstore(pay[0], 0)
    a(f'ds_read2_b64 {v(vT, 4)}, {v(vAT)} offset0:0 offset1:{(BLK_G + 128) // 8}')
    a(f'ds_read_b128 {v(vWD, 4)}, {v(vAW)} offset:{176 + BLK_G * 2}')
    for i in range(8):
        a(f'v_exp_f32 {v(vE + i)}, {v(vZ + i)}')
    a(f's_add_u32 {s(sCNT)}, {s(sCNT)}, 3')
    a(f's_lshr_b32 {s(sCNT)}, {s(sCNT)}, 2')
    a(f's_mov_b32 {s(sT1)}, 1')
    for i in range(0, 8, 2):
        a(f'v_pk_fma_f32 {v(vE + i, 2)}, {v(vE + i, 2)}, {v(vONE, 2)}, {v(vONE, 2)}')
    if OPT['prio'] in (3, 4):
        a('s_setprio 1')
    stamp(a, 5, sST)
    if OPT['clk']:
        a(f's_memtime {s(sST, 2)}')
        a('s_waitcnt lgkmcnt(0)')
        a(f'v_writelane_b32 v255, {s(sST)}, 8')

    a.label('LOOP')
    for g in range(2):
        b = g
        if OPT['prio'] == 2:
            a(f's_setprio {g & 1}')
        if OPT['prio'] == 4:
            a(f's_setprio {1 + (g & 1)}')
        a(f's_cmp_lt_u32 {s(sCNT)}, 3')
        a('s_waitcnt vmcnt(4) lgkmcnt(0)')
        a(f's_cbranch_scc1 DRAIN{g}')
        a.label(f'BACK{g}')
        tr = [f'v_rcp_f32 {v(vE + 8 * b + i)}, {v(vE + 8 * b + i)}' for i in range(8)]
        tr += [f'v_exp_f32 {v(vE + 8 * (1 - b) + i)}, {v(vZ + 8 * (1 - b) + i)}' for i in range(8)]
        a(f'v_readlane_b32 {s(sSL)}, {v(vT + 2)}, 4')
        ti = 0
        for j in range(NZ):
            zmfma(1 - b, j, vT + 2)
            a(tr[ti])
            ti += 1
        for j in range(4):
            for h in range(2):
                a(f'v_mfma_f32_4x4x4_16b_bf16 {v(vTP + 8 * j + 4 * h, 4)}, {v(vT, 2)}, {v(vX + 16 * g + 4 * j + 2 * h, 2)}, 0 cbsz:4 abid:{j}')
                a(tr[ti])
                ti += 1
        a(f'ds_read2_b64 {v(vT, 4)}, {v(vAT)} offset0:{BLK_G * (g + 1) // 8} offset1:{(BLK_G * (g + 2) + 128) // 8}')
        a(f's_cbranch_scc1 NOLD{g}')
        for j in range(4):
            a(f'buffer_load_dwordx4 {v(vX + 16 * g + 4 * j, 4)}, {v(vWD + j)}, {s(sX, 4)}, 0 offen')
        a(f'ds_read_b128 {v(vWD, 4)}, {v(vAW)} offset:{176 + BLK_G * (g + 3)}')
        a.label(f'NOLD{g}')
        for x in tr[ti:]:
            a(x)
        for i in range(0, 8, 2):
            a(f'v_pk_mul_f32 {v(vE + 8 * b + i, 2)}, {v(vE + 8 * b + i, 2)}, {v(vZ + 8 * b + i, 2)}')
        for i in range(0, 8, 2):
            a(f'v_pk_fma_f32 {v(vE + 8 * (1 - b) + i, 2)}, {v(vE + 8 * (1 - b) + i, 2)}, {v(vONE, 2)}, {v(vONE, 2)}')
        for j in range(4):
            a(f's_set_gpr_idx_on {s(sSL)}, gpr_idx(SRC2,DST)' if j == 0 else f's_set_gpr_idx_idx {s(sSL)}')
            a.idx_range = (vACC, vACC + 48)
            sel = j & 1
            for h in range(2):
                rp = vE + 8 * b + 4 * h + 2 * (j >> 1)
                for m in range(2):
                    d = vACC + 4 * h + 2 * m
                    a(f'v_pk_fma_f32 {v(d, 2)}, {v(rp, 2)}, {v(vTP + 8 * j + 4 * h + 2 * m, 2)}, {v(d, 2)} op_sel:[{sel},0,0] op_sel_hi:[{sel},1,1]')
                    if h == 0 and m == 0 and j < 3:
                        a(f's_lshr_b32 {s(sSL)}, {s(sSL)}, 8')
            a.idx_range = None
        a('s_set_gpr_idx_off')
        if g == 1:
            a(f'v_add_u32 {v(vAT)}, {BLK_G * 2}, {v(vAT)}')
            a(f'v_add_u32 {v(vAW)}, {BLK_G * 2}, {v(vAW)}')
        a(f's_sub_u32 {s(sCNT)}, {s(sCNT)}, 1')
    a(f's_cmp_eq_u32 {s(sT1)}, 0')
    a('s_cbranch_scc1 LOOP')
    a(f's_mov_b32 {s(sT1)}, 0')
    tmfma(pay[1])
    tstore(pay[1], 1)
    a('s_branch LOOP')
    for g in range(2):
        a.label(f'DRAIN{g}')
        a(f's_cmp_eq_u32 {s(sCNT)}, 2')
        a(f's_cbranch_scc1 BACK{g}')
        a(f's_cmp_eq_u32 {s(sCNT)}, 1')
        a('s_waitcnt vmcnt(0)')
        a(f's_cbranch_scc1 BACK{g}')
        if g == 0:
            a('s_branch LIST_DONE')
    a.label('LIST_DONE')
    a(f's_cmp_lg_u32 {s(sMODE)}, 0')
    a('s_cbranch_scc1 SLOW_NEXT')

    a.label('MIX')
    vD = vE
    vS = vG

    def areg(i):
        return vX + 4 * i if i < 8 else vTP + 4 * (i - 8)
    if OPT['prio'] in (3, 4):
        a('s_setprio 0')
    stamp(a, 6, sST)
    if OPT['clk']:
        a(f's_memtime {s(sST, 2)}')
        a('s_waitcnt lgkmcnt(0)')
        a(f'v_writelane_b32 v255, {s(sST)}, 9')
    vNO = vC
    for t_ in range(5):
        a(f'ds_read_b32 {v(vNO + t_)}, {v(iND)} offset:{NODE + 16 * t_}')
    for sl in range(5):
        for o in range(4):
            a(f'v_cvt_pk_bf16_f32 {v(vACC + 8 * sl + o)}, {v(vACC + 8 * sl + o)}, {v(vACC + 8 * sl + 4 + o)}')
        for o in range(0, 4, 2):
            a(f'ds_write2_b32 {v(vAG)}, {v(vACC + 8 * sl + o)}, {v(vACC + 8 * sl + o + 1)} offset0:{o * AGG_ROW // 4} offset1:{(o + 1) * AGG_ROW // 4}')
        if sl == 2:
            a('s_waitcnt lgkmcnt(4)')
        if sl < 4:
            a(f'v_add_u32 {v(vAG)}, {4 * AGG_ROW}, {v(vAG)}')
    a(f'v_mov_b32 {v(vWD)}, 1')
    a('s_mov_b64 exec, 1')
    a(f'ds_add_u32 {v(vGS)}, {v(vWD)} offset:{GS}')
    a(f's_or_b32 {s(sOFF)}, {s(sW)}, s2')
    a('s_cbranch_scc1 NOBUMP')
    a(f'buffer_store_dword {v(vEP)}, off, {s(sWS, 4)}, 0 sc1')
    a.label('NOBUMP')
    a('s_mov_b64 exec, -1')
    if OPT['tailst']:
        stamp(a, 8, sST)
    a.label('GSYNC')
    a(f'ds_read_b32 {v(vWD + 1)}, {v(vGS)} offset:{GS}')
    a('s_waitcnt lgkmcnt(0)')
    a(f'v_cmp_ne_u32 vcc, 4, {v(vWD + 1)}')
    a('s_cbranch_vccnz GWAIT')

    def aread(i):
        a(f'ds_read_b128 {v(areg(i), 4)}, {v(vAA)} offset:{(i >> 2) * 16 * AGG_ROW + (i & 3) * 64}')
    if OPT['tailst']:
        stamp(a, 9, sST)
    for i in range(12):
        aread(i)
    for t_ in range(5):
        a(f'v_lshl_add_u32 {v(vNO + t_)}, {v(vNO + t_)}, 15, {v(iSB)}')
    pol = ['', ' sc1', ' nt', ' sc0 sc1 nt'][OPT['outpol']]

    def outt(t_):
        d = vD + 8 * (t_ & 1)
        st = vS + 4 * t_
        for r in range(2):
            a(f'v_cvt_pk_bf16_f32 {v(st + 2 * r)}, {v(d + 4 * r)}, {v(d + 4 * r + 1)}')
            a(f'v_cvt_pk_bf16_f32 {v(st + 2 * r + 1)}, {v(d + 4 * r + 2)}, {v(d + 4 * r + 3)}')
        a(f'buffer_store_dwordx4 {v(st, 4)}, {v(vNO + t_)}, {s(sO, 4)}, 0 offen{pol if t_ < 5 - OPT["lastwb"] else ""}')

    for i in range(20):
        t_, kk = i >> 2, i & 3
        a(f's_waitcnt lgkmcnt({min(11, 19 - i)})')
        for r in range(2):
            d = vD + 8 * (t_ & 1) + 4 * r
            a(f'v_mfma_f32_16x16x32_bf16 {v(d, 4)}, {v(areg(i), 4)}, {v(vB + 8 * kk + 4 * r, 4)}, {"0" if kk == 0 else v(d, 4)}')
        if i + 12 < 20:
            aread(i + 12)
        if kk == 2 and t_ > 0:
            outt(t_ - 1)
    outt(4)
    if OPT['tailst']:
        stamp(a, 10, sST)
    if OPT['stamps']:
        a('s_waitcnt vmcnt(0)')
        stamp(a, 7, sST)
        emit_stamps(a, sST, pWS, 4)
    a.label('K_END')
    a('s_endpgm')

    a.label('GWAIT')
    a('s_sleep 1')
    a('s_branch GSYNC')

    def setflag():
        a(f'v_mov_b32 {v(vU)}, {FLAG}')
        a(f'ds_write_b32 {v(vU)}, {v(vU)}')

    a.label('REPOLL')
    a(f's_add_u32 {s(sCNT)}, {s(sCNT)}, {s(sSPIN)}')
    a(f's_lshr_b32 {s(sM)}, {s(sCNT)}, {OPT["spin"]}')
    a('s_cbranch_scc1 GIVEUP')
    a(f'buffer_load_dwordx4 {v(vC, 4)}, {v(vCA)}, {s(sWS, 4)}, {s(sCOFF)} offen sc1')
    a('s_waitcnt vmcnt(0)')
    a('s_branch POLL')
    a.label('GIVEUP')
    for r in range(4):
        a(f'v_mov_b32 {v(vC + r)}, 0')
    setflag()
    a('s_branch BATCH')
    a.label('RELATE')
    a(f's_add_u32 {s(sCNT)}, {s(sCNT)}, 1')
    a(f's_lshr_b32 {s(sM)}, {s(sCNT)}, {OPT["spin"]}')
    a('s_cbranch_scc1 GIVEUP2')
    a(f'buffer_load_dwordx4 {v(vL, 4)}, {v(vFA)}, {s(sWS, 4)}, {s(sLOFF)} offen sc1')
    a('s_waitcnt vmcnt(0)')
    a('s_branch LATECHK')
    a.label('GIVEUP2')
    setflag()
    a(f's_mov_b64 {s(sLM, 2)}, 0')
    a('s_branch LATE_OK')

    a.label('LATE_PRE')
    a(f'v_cndmask_b32 {v(vL + 3)}, {v(vL + 3)}, 0, {s(sODD, 2)}')
    a(f'v_and_b32 {v(vU)}, 63, {v(vL + 1)}')
    a(f'v_cmp_eq_u32 vcc, 63, {v(vU)}')
    a('s_cbranch_vccnz GIVEUP2')
    a(f's_mov_b64 {s(sLM, 2)}, 0')
    for r in range(4):
        a(f'v_xor_b32 {v(vU)}, {s(sBK6)}, {v(vL + r)}')
        a(f'v_and_b32 {v(vU)}, 0x7ff, {v(vU)}')
        a(f'v_add_u32 {v(vU)}, -1, {v(vU)}')
        a(f'v_cmp_gt_u32 vcc, 40, {v(vU)}')
        a(f'v_lshrrev_b32 {v(vU)}, 25, {v(vL + r)}')
        a(f'v_lshl_add_u32 {v(vU)}, {v(vU)}, 4, {v(vB0)}')
        a(f's_mov_b64 {s(sLR + 2 * r, 2)}, vcc')
        a(f's_cbranch_vccz LATE_P{r}')
        a(f's_or_b64 {s(sLM, 2)}, {s(sLM, 2)}, vcc')
        a('s_mov_b64 exec, vcc')
        a(f'buffer_load_dwordx4 {v(vLP + 4 * r, 4)}, {v(vU)}, {s(sWS, 4)}, 0 offen sc1')
        a('s_mov_b64 exec, -1')
        a.label(f'LATE_P{r}')
    a('s_branch LATE_OK')
    a.label('LATE_POST')
    t = rt[0]
    for r in range(4):
        a(f's_mov_b64 exec, {s(sLR + 2 * r, 2)}')
        a(f's_cbranch_execz LATE_Q{r}')
        a(f'v_and_b32 {v(t)}, 63, {v(vL + r)}')
        a(f'v_lshlrev_b32 {v(t)}, 3, {v(t)}')
        a(f'ds_read_u16 {v(t + 1)}, {v(t)} offset:{CODE - 8}')
        a(f'v_mov_b32 {v(t + 2)}, 1')
        a(f'v_lshrrev_b32 {v(t + 5)}, 1, {v(vL + r)}')
        a('s_waitcnt lgkmcnt(0)')
        a(f'v_lshrrev_b32 {v(t)}, 7, {v(t + 1)}')
        a(f'ds_add_rtn_u32 {v(t + 3)}, {v(t)}, {v(t + 2)} offset:{CNTW}')
        a(f'v_bfi_b32 {v(t + 5)}, {s(sK1FF)}, {v(t + 1)}, {v(t + 5)}')
        a(f'v_and_b32 {v(t + 1)}, 0xe00, {v(t + 1)}')
        a('s_waitcnt lgkmcnt(0)')
        a(f'v_min_u32 {v(t + 3)}, 127, {v(t + 3)}')
        a(f'v_lshl_add_u32 {v(t + 3)}, {v(t + 3)}, 2, {v(t + 1)}')
        a(f'ds_write_b32 {v(t + 3)}, {v(t + 5)} offset:{ENT}')
        a(f'v_lshlrev_b32 {v(t + 3)}, 2, {v(t + 3)}')
        a(f'ds_write_b128 {v(t + 3)}, {v(vLP + 4 * r, 4)} offset:{RAW}')
        a.label(f'LATE_Q{r}')
    a('s_mov_b64 exec, -1')
    a('s_branch LATE_END')

    a.label('SLOW_ENTER')
    a(f's_mov_b32 {s(sMODE)}, 1')
    a(f's_mov_b32 {s(sMUL)}, 0')
    a('s_branch SLOW_LOAD')
    a.label('PAY_SLOW')
    a(f'buffer_load_dwordx2 {v(vPAY, 2)}, {v(vB0)}, {s(sY, 4)}, 0 offen')
    a(f'buffer_load_dwordx2 {v(vPAY + 2, 2)}, {v(vB0)}, {s(sE, 4)}, 0 offen')
    a('s_waitcnt vmcnt(0)')
    a('s_branch PAY_JOIN')
    a.label('SLOW_NEXT')
    a(f's_add_u32 {s(sBASE)}, {s(sBASE)}, {SLOWB}')
    a(f's_cmp_ge_u32 {s(sBASE)}, {E}')
    a('s_cbranch_scc1 MIX')
    a.label('SLOW_LOAD')
    a('s_waitcnt vmcnt(0) lgkmcnt(0)')
    a('s_barrier')
    a(f'v_add_lshl_u32 {v(vR + 1)}, v0, {s(sBASE)}, 2')
    a(f'buffer_load_dword {v(vR + 2)}, {v(vR + 1)}, {s(sD, 4)}, 0 offen')
    a(f'buffer_load_dword {v(vR + 3)}, {v(vR + 1)}, {s(sS, 4)}, 0 offen')
    a(f'v_lshlrev_b32 {v(vB0)}, 1, {v(vR + 1)}')
    for r in range(1, 4):
        a(f'v_mov_b32 {v(vC + r)}, 0')
    for i in range(2):
        a(f'ds_write_b128 {v(vT16)}, {v(vZERO, 4)} offset:{RAW + 8192 * i}')
    a(f'v_mov_b32 {v(vR + 6)}, {NULLE}')
    a(f'v_mov_b32 {v(vR + 7)}, {NULLE}')
    a(f'v_lshlrev_b32 {v(vR + 5)}, 3, v0')
    a(f'ds_write_b64 {v(vR + 5)}, {v(vR + 6, 2)} offset:{ENT}')
    a(f'ds_write_b64 {v(vSMA)}, {v(vZERO, 2)} offset:{NCNT}')
    a(f'ds_write_b64 {v(vSMA)}, {v(vZERO, 2)} offset:{NCNT + 256}')
    a(f'v_cmp_gt_u32 vcc, {SLOWB}, v0')
    a(f's_mov_b64 {s(sM, 2)}, vcc')
    a('s_waitcnt vmcnt(0)')
    a(f'v_min_u32 {v(vR + 2)}, {N - 1}, {v(vR + 2)}')
    a(f'v_min_u32 {v(vR + 3)}, {N - 1}, {v(vR + 3)}')
    a(f'v_and_b32 {v(vR + 1)}, 255, {v(vR + 2)}')
    a(f'v_cmp_eq_u32 vcc, {s(sBK)}, {v(vR + 1)}')
    a(f'v_lshrrev_b32 {v(vR + 2)}, 8, {v(vR + 2)}')
    a(f'v_or_b32 {v(vR + 2)}, 64, {v(vR + 2)}')
    a(f'v_lshlrev_b32 {v(vR + 2)}, 3, {v(vR + 2)}')
    a(f'v_lshl_or_b32 {v(vR + 2)}, {v(vR + 3)}, 10, {v(vR + 2)}')
    a(f'v_and_or_b32 {v(vR + 2)}, v0, 7, {v(vR + 2)}')
    a(f's_and_b64 vcc, vcc, {s(sM, 2)}')
    a(f'v_cndmask_b32 {v(vC)}, 0, {v(vR + 2)}, vcc')
    for r in range(4):
        a(f'v_mov_b32 {v(rt[r] + 3)}, 1')
    bar()
    a('s_branch BATCH')
    a('.p2align 2')
    a('.type rank_table,@object')
    a.label('rank_table')
    tb = json.load(open('tbl.json'))[str(OPT['bias'])]
    tb = [(x & 0xffff0000) | ((x >> 10) & 7) << 9 | (x & 0x3f) for x in tb]
    for i in range(0, 80, 8):
        a('.long ' + ', '.join(f'{x:#x}' for x in tb[i:i + 8]))
    a('.size rank_table, 320')
    a.label('CODE_END')
    a('.long 0')
    return a, LDS


emit(kernel)
```

```python
import json
from common import *

parse(dict(dev=1, spin=16, wsoff=0, outpol=1, zlo=1, prio=3, smask=0, clk=0, bias=12, pfstep=8,
           pfd=3, pfc=0, pfp=0, latepos=0, pwait=0, nph=8, x1=4, chkpos=1, pfq=0, pfo=0, tailst=0, spread=1, lastwb=0, shad=1, pollfirst=0, wmpos=1, pre=1, prime=0, pfx=4, rot=0, epos=0, erows=2, ebase=3072, ent=0, run=0, sp1=0, sp2=0, sp3=0, sb1=6144, sb2=2048, sb3=0, sln=8, rbase=3072, rstep=1024))
NULLW = 0x7FFF0000
CSTR = 8192 + 256
PSTR = 16384 + 256
CELL_OFF = 4096
PAY_OFF = 3 << 20
LATE_OFF = 8 << 20
WS_SPAN = 9 << 20
SLOWB = 100


def kernel():
    a = Asm()
    NCNT = 0
    TOT = 512
    TOTP = 576
    CNTW = 640
    FLAG = 672
    GS = 768
    PRE = 1024
    CODE = 1536
    NODE = 2048
    GCNT = 2304
    LCNT = 2336
    LATE = 2560
    TBL = 2816
    PCNT = 3072
    ENT = 4096
    RAW = ENT + 4096
    CST = RAW + 16384 + 4096
    BLK, BLK_G = CST + 3072, 192
    BLK_W = BLK_G * 38
    CELL = BLK
    PST = CELL + 8192
    AGG, AGG_W, AGG_ROW = BLK + 8 * BLK_W + 512, 20 * 272, 272
    IMG, IMG_R = AGG, 288
    LDS = AGG + 8 * AGG_W
    assert PST + 16384 < 65536 and LDS <= 163840 and 128 * IMG_R <= 8 * AGG_W
    sX, sWS, sO, sY, sE, sD, sS = 4, 8, 12, 16, 20, 24, 28
    sPTR = 32
    pX, pSRC, pDST, pY, pEF, pWR, pCG, pWM, pOUT, pDBG, pWS = [sPTR + 2 * i for i in range(11)]
    sBK, sW, sMODE, sBASE, sCNT, sT0, sT1, sOFF, sMUL, sSPIN, sG, sSL, sK1FF, sBK6 = range(54, 68)
    sWD = 68
    sPERM0, sPERM1, sLOFF = 73, 74, 75
    sV = 76
    sM = 84
    sODD = 86
    sLM = 88
    sST = 90
    sPFW, sCOFF = 92, 93
    sLR = 94
    vLN, vL16, vSMA = 1, 2, 3
    vACC = 4
    vX = 52
    vB = 84
    vTP = 116
    vZ = 148
    vE = 164
    vT = 180
    vWD = 184
    vWH = 188
    vWL, vCG, vONE = vWH + 4, vWH + 8, vWH + 10
    vAT, vAW, vTAG, vEP = 200, 201, 202, 203
    vCA, vFA, vB0, vT16 = 204, 205, 206, 207
    vC = 208
    vL = 212
    vZERO = 216
    vSO = 220
    vAA, vAG, vGS = 225, 226, 227
    vPF = 228
    vG = 232
    iEO, iCW, iRW, iBW, iBS, iBE, iBT, iEB, iNA, iKB = range(vG, vG + 10)
    iSB, iND, iTB, vMK = vSO, vSO + 1, vSO + 2, vSO + 3
    vR = vX
    vU = vX + 16
    vIN = vX
    vWM = vX + 12
    vP = vTP
    vQ = vB
    vPAY = vTP
    vLP = vTP + 16
    NULLE = 40
    XM = 0x1ffc00 if OPT['smask'] else 0xfffc00
    NZ = 4 if OPT['zlo'] else 2
    npf = [OPT['pfo']]

    def bar():
        a('s_waitcnt lgkmcnt(0)')
        a('s_barrier')

    def pfissue(rows):
        if not rows:
            return
        a(f's_mul_i32 {s(sM)}, {s(sPFW)}, {rows}')
        a(f's_add_u32 {s(sM)}, {s(sM)}, {npf[0]}')
        a(f'v_min_u32 {v(vPF + 2)}, {rows - 1}, {v(vPF)}')
        a(f'v_add_u32 {v(vPF + 2)}, {s(sM)}, {v(vPF + 2)}')
        a(f'v_mul_u32_u24 {v(vPF + 2)}, {OPT["pfstep"] << 9}, {v(vPF + 2)}')
        a(f'v_and_b32 {v(vPF + 2)}, 0xfffffc00, {v(vPF + 2)}')
        a(f'v_add_u32 {v(vPF + 2)}, {v(vPF + 2)}, {v(vPF + 1)}')
        npf[0] += 256 * rows
        assert npf[0] * OPT['pfstep'] // 2 + 8 < (N // OPT['rot'] if OPT['rot'] else N)

    def pfload():
        a(f'global_load_dword {v(vPF + 3)}, {v(vPF + 2)}, {s(pX, 2)}')

    def pairsum(d, c):
        a(f'v_add3_u32 {v(d)}, {v(c)}, {v(c + 1)}, {v(c + 2)}')
        a(f'v_add_u32 {v(d)}, {v(d)}, {v(c + 3)}')
        a(f'v_add_u32_dpp {v(d)}, {v(d)}, {v(d)} quad_perm:[1,0,3,2] row_mask:0xf bank_mask:0xf')

    rt = [vZ + 8 * r for r in range(4)]
    aT8, aCE, aPS, aGC, aH, aLA, aL0, aL1, aNU, aIW, aIR, aW1, aW2, aW3, aT, aU = [vZ + k for k in (0, 1, 2, 4, 5, 6, 7, 8, 9, 10, 12, 13, 14, 15, 16, 17)]
    sPO, sLS = sWD, sWD + 1
    a('s_cmp_ge_u32 s2, 256')
    a('s_cbranch_scc1 K_END')
    stamp(a, 0, sST)
    a(f's_load_dwordx16 {s(sPTR, 16)}, s[0:1], 0')
    a(f's_load_dwordx4 {s(pOUT, 4)}, s[0:1], 64')
    a(f's_load_dwordx2 {s(pWS, 2)}, s[0:1], 80')
    a(f'v_lshrrev_b32 {v(aT)}, 6, v0')
    a(f'v_and_b32 {v(vLN)}, 63, v0')
    a(f'v_readfirstlane_b32 {s(sW)}, {v(aT)}')
    a(f'v_lshlrev_b32 {v(vT16)}, 4, v0')
    a(f'v_lshlrev_b32 {v(aT8)}, 3, v0')
    a(f's_cmp_lt_u32 {s(sW)}, 6')
    a('s_cbranch_scc1 NOCPF')
    a(f's_getpc_b64 {s(sM, 2)}')
    a.label('CPF_BASE')
    a(f'v_and_b32 {v(vPF + 3)}, 127, v0')
    a(f'v_min_u32 {v(vPF + 3)}, (CODE_END-CPF_BASE)/128, {v(vPF + 3)}')
    a(f'v_lshlrev_b32 {v(vPF + 3)}, 7, {v(vPF + 3)}')
    a(f'global_load_dword {v(vPF + 3)}, {v(vPF + 3)}, {s(sM, 2)}')
    a.label('NOCPF')
    for r in range(0, 4, 2):
        a(f'v_mov_b64 {v(vZERO + r, 2)}, 0')
    a(f'ds_write_b128 {v(vT16)}, {v(vZERO, 4)} offset:{CELL}')
    a(f'ds_write_b64 {v(aT8)}, {v(vZERO, 2)}')
    a(f'v_lshlrev_b32 {v(vL16)}, 4, {v(vLN)}')
    a(f'v_lshlrev_b32 {v(vSMA)}, 3, {v(vLN)}')
    a(f's_mul_i32 {s(sT0)}, s2, 2500')
    a(f's_mul_i32 {s(sT1)}, s2, 5000')
    for d in (sD, sS):
        a(f's_mov_b32 {s(d + 2)}, {E * 4}')
        a(f's_mov_b32 {s(d + 3)}, 0x20000')
    for d in (sY, sE):
        a(f's_mov_b32 {s(d + 2)}, {E * 8}')
        a(f's_mov_b32 {s(d + 3)}, 0x20000')
    a(f's_mov_b32 {s(sWS + 2)}, {WS_SPAN}')
    a(f's_mov_b32 {s(sWS + 3)}, 0x20000')
    a(f's_mov_b32 {s(sODD)}, 0xaaaaaaaa')
    a(f's_mov_b32 {s(sODD + 1)}, 0xaaaaaaaa')
    a('v_cmp_gt_u32 vcc, 313, v0')
    a(f's_mov_b64 {s(sV, 2)}, vcc')
    a('v_cmp_gt_u32 vcc, 312, v0')
    a(f's_mov_b64 {s(sV + 2, 2)}, vcc')
    a(f'v_mov_b32 {v(vP)}, 1')
    for r in range(0, 48, 2):
        a(f'v_mov_b64 {v(vACC + r, 2)}, 0')
    a('s_waitcnt lgkmcnt(0)')
    stamp(a, 8, sST)
    a(f's_mov_b64 {s(sD, 2)}, {s(pDST, 2)}')
    a(f's_mov_b64 {s(sS, 2)}, {s(pSRC, 2)}')
    a(f's_add_u32 {s(sWS)}, {s(pWS)}, {OPT["wsoff"] << 20}')
    a(f's_addc_u32 {s(sWS + 1)}, {s(pWS + 1)}, 0')
    a(f's_cmp_ge_u32 {s(sW)}, 5')
    a('s_cbranch_scc1 NOIN')
    a(f'buffer_load_dwordx2 {v(vIN, 2)}, {v(aT8)}, {s(sD, 4)}, {s(sT0)} offen')
    a(f'buffer_load_dwordx2 {v(vIN + 2, 2)}, {v(aT8)}, {s(sS, 4)}, {s(sT0)} offen')
    a.label('NOIN')
    a(f'buffer_load_dword {v(vEP)}, off, {s(sWS, 4)}, 0')
    a(f's_mov_b64 {s(sY, 2)}, {s(pY, 2)}')
    a(f's_mov_b64 {s(sE, 2)}, {s(pEF, 2)}')
    a('s_barrier')
    a('s_cbranch_scc1 NOIN2')
    a(f'buffer_load_dwordx4 {v(vIN + 4, 4)}, {v(vT16)}, {s(sY, 4)}, {s(sT1)} offen')
    a(f'buffer_load_dwordx4 {v(vIN + 8, 4)}, {v(vT16)}, {s(sE, 4)}, {s(sT1)} offen')
    a.label('NOIN2')
    NC = 4
    for i in range(2):
        a(f'ds_write_b128 {v(vT16)}, {v(vZERO, 4)} offset:{RAW + 8192 * i}')
    a(f'v_mov_b32 {v(aT)}, {NULLE}')
    a(f'v_mov_b32 {v(aU)}, {NULLE}')
    a(f'ds_write_b64 {v(aT8)}, {v(aT, 2)} offset:{ENT}')
    a(f's_lshl_b32 {s(sT0)}, {s(sW)}, 10')
    a(f'v_add_u32 {v(aCE)}, {s(sT0)}, {v(vL16)}')
    a(f'v_add_u32 {v(aPS)}, {s(sT0)}, {v(aCE)}')
    a(f's_lshl_b32 {s(sT0)}, {s(sW)}, 2')
    a(f'v_mov_b32 {v(aGC)}, {s(sT0)}')
    a(f's_lshl_b32 {s(sT0)}, {s(sW)}, 5')
    a(f'v_and_b32 {v(aH)}, 16, {v(vL16)}')
    a(f'v_add_u32 {v(aLA)}, {s(sT0)}, {v(aH)}')
    a(f'v_and_b32 {v(aL0)}, 56, {v(vLN)}')
    a(f'v_add_u32 {v(aL1)}, 64, {v(aL0)}')
    a(f'v_mov_b32 {v(aNU)}, {NULLW}')
    for i, r in enumerate((aW1, aW2, aW3)):
        a(f'v_add_u32 {v(r)}, {8192 * (i + 1)}, {v(vT16)}')
    a(f's_mul_i32 {s(sOFF)}, s2, {CSTR}')
    a(f's_add_u32 {s(sOFF)}, {s(sOFF)}, {CELL_OFF}')
    a(f's_mul_i32 {s(sPO)}, s2, {PSTR}')
    a(f's_add_u32 {s(sPO)}, {s(sPO)}, {PAY_OFF}')
    a(f's_lshl_b32 {s(sLS)}, {s(sW)}, 8')
    a(f's_add_u32 {s(sLS)}, {s(sLS)}, s2')
    a(f's_lshl_b32 {s(sLS)}, {s(sLS)}, 6')
    a(f's_add_u32 {s(sLS)}, {s(sLS)}, {LATE_OFF}')
    a(f's_and_b32 {s(sG)}, s2, 7')
    a(f's_lshl_b32 {s(sT0)}, {s(sG)}, 5')
    a(f's_lshr_b32 {s(sBK6)}, s2, 3')
    a(f's_add_u32 {s(sCOFF)}, {s(sBK6)}, {s(sT0)}')
    a(f's_lshl_b32 {s(sCOFF)}, {s(sCOFF)}, 5')
    a(f's_add_u32 {s(sCOFF)}, {s(sCOFF)}, {CELL_OFF}')
    a(f's_lshl_b32 {s(sPFW)}, {s(sBK6)}, 3')
    a(f's_add_u32 {s(sPFW)}, {s(sPFW)}, {s(sW)}')
    a(f's_lshl_b32 {s(sBK6)}, {s(sBK6)}, 6')
    a(f's_mov_b32 {s(sBK)}, s2')
    a(f'v_lshrrev_b32 {v(vFA)}, 1, v0')
    a(f'v_mul_u32_u24 {v(vCA)}, {CSTR}, {v(vFA)}')
    a(f'v_add_u32 {v(vCA)}, {v(vCA)}, {v(aH)}')
    a(f'v_mul_u32_u24 {v(vB0)}, {PSTR}, {v(vFA)}')
    a(f's_lshl_b32 {s(sT0)}, {s(sG)}, 11')
    a(f's_add_u32 {s(sT0)}, {s(sT0)}, {PAY_OFF}')
    a(f'v_add_u32 {v(vB0)}, {s(sT0)}, {v(vB0)}')
    a(f'v_lshl_add_u32 {v(vFA)}, {v(vFA)}, 6, {v(aH)}')
    a(f's_lshl_b32 {s(sLOFF)}, {s(sG)}, 14')
    a(f's_add_u32 {s(sLOFF)}, {s(sLOFF)}, {LATE_OFF}')
    a(f's_mov_b32 {s(sPERM0)}, 0x05040100')
    a(f's_mov_b32 {s(sPERM1)}, 0x07060302')
    a(f'v_lshrrev_b32 {v(aIW)}, 4, v0')
    a(f'v_mul_u32_u24 {v(aIW)}, {IMG_R}, {v(aIW)}')
    a(f'v_bfe_u32 {v(aIR)}, v0, 2, 2')
    a(f'v_lshl_add_u32 {v(aIW)}, {v(aIR)}, 6, {v(aIW)}')
    a(f'v_and_b32 {v(iBS)}, 3, v0')
    a(f'v_lshl_add_u32 {v(aIW)}, {v(iBS)}, 3, {v(aIW)}')
    a(f'v_add_u32 {v(aIW)}, {IMG}, {v(aIW)}')
    a(f'v_lshrrev_b32 {v(iND)}, 4, {v(vLN)}')
    a(f'v_lshl_add_u32 {v(aIR)}, {v(iND)}, 3, {v(aIR)}')
    a(f'v_mul_u32_u24 {v(aIR)}, {IMG_R}, {v(aIR)}')
    a(f'v_lshl_add_u32 {v(aIR)}, {v(iBS)}, 3, {v(aIR)}')
    a(f's_and_b32 {s(sT1)}, {s(sW)}, 3')
    a(f's_lshl_b32 {s(sT0)}, {s(sT1)}, 6')
    a(f's_add_u32 {s(sT0)}, {s(sT0)}, {IMG}')
    a(f'v_add_u32 {v(aIR)}, {s(sT0)}, {v(aIR)}')
    a(f'v_lshrrev_b32 {v(iCW)}, 1, {v(vSMA)}')

    PR = OPT['prime']
    if PR:
        a(f'buffer_store_dwordx4 {v(vZERO, 4)}, {v(aCE)}, {s(sWS, 4)}, {s(sOFF)} offen sc1')
    if PR > 1:
        a('s_mov_b64 exec, 3')
        a(f'buffer_store_dwordx4 {v(vZERO, 4)}, {v(vL16)}, {s(sWS, 4)}, {s(sLS)} offen sc1')
        a('s_mov_b64 exec, -1')

    EP_ = OPT['epos']
    if EP_:
        assert OPT['ebase'] + 8 * 256 * OPT['erows'] <= N + 8 * 256
        a(f'v_lshrrev_b32 {v(vPF)}, 3, {v(vLN)}')
        a(f'v_min_u32 {v(vPF)}, {OPT["erows"] - 1}, {v(vPF)}')
        a(f's_mul_i32 {s(sT0)}, {s(sPFW)}, {OPT["erows"]}')
        a(f'v_add_lshl_u32 {v(vPF)}, {v(vPF)}, {s(sT0)}, 3')
        a(f's_add_u32 {s(sT0)}, {s(sG)}, {OPT["ebase"]}')
        a(f'v_add_u32 {v(vPF)}, {s(sT0)}, {v(vPF)}')
        a(f'v_min_u32 {v(vPF)}, {N - 1}, {v(vPF)}')
        a(f'v_and_b32 {v(vPF + 1)}, 7, v0')
        a(f'v_lshlrev_b32 {v(vPF + 1)}, 7, {v(vPF + 1)}')
        a(f'v_lshl_add_u32 {v(vAW)}, {v(vPF)}, 10, {v(vPF + 1)}')

    def eload(pos):
        if EP_ == pos:
            a(f'global_load_dword {v(vAW)}, {v(vAW)}, {s(pX, 2)}{" nt" if OPT["ent"] else ""}')

    def spf(rows, base):
        if not rows:
            return
        a(f's_mul_i32 {s(sLR)}, {s(sPFW)}, {8 * rows}')
        a(f's_and_b32 {s(sLR + 1)}, s2, 7')
        a(f's_add_u32 {s(sLR)}, {s(sLR)}, {s(sLR + 1)}')
        a(f's_add_u32 {s(sLR)}, {s(sLR)}, {base}')
        a(f's_min_u32 {s(sLR)}, {s(sLR)}, {N - 1 - 8 * (rows - 1)}')
        a(f's_lshl_b32 {s(sLR)}, {s(sLR)}, 10')
        a(f's_add_u32 {s(sLR)}, {s(pX)}, {s(sLR)}')
        a(f's_addc_u32 {s(sLR + 1)}, {s(pX + 1)}, 0')
        for k in range(rows):
            for l in range(OPT['sln']):
                a(f's_load_dword {s(sLR + 2)}, {s(sLR, 2)}, {k * 8192 + l * (1024 // OPT["sln"])}')
    spf(OPT['sp1'], OPT['sb1'])

    def wmix_loads():
        for i, r in enumerate((vT16, aW1, aW2, aW3)):
            a(f'global_load_dwordx4 {v(vWM + 4 * i, 4)}, {v(r)}, {s(pWM, 2)}')
    a(f's_cmp_ge_u32 {s(sW)}, 5')
    a('s_cbranch_scc1 HELPER')
    a(f's_waitcnt vmcnt({4 + PR})')
    stamp(a, 1, sST)
    for i in range(2):
        t = vP + 2 + 8 * i
        a(f'v_min_u32 {v(vIN + i)}, {N - 1}, {v(vIN + i)}')
        a(f'v_and_b32 {v(t + 2)}, 7, {v(vIN + i)}')
        a(f'v_bfe_u32 {v(t)}, {v(vIN + i)}, 3, 5')
        a(f'v_lshl_or_b32 {v(t)}, {v(t + 2)}, 5, {v(t)}')
        a(f'v_lshlrev_b32 {v(t + 1)}, 2, {v(t)}')
        a(f'v_lshlrev_b32 {v(t + 3)}, 2, {v(t + 2)}')
        a(f's_mov_b64 exec, {s(sV + 2 * i, 2)}')
        a(f'ds_add_rtn_u32 {v(t + 4)}, {v(t + 1)}, {v(vP)} offset:{PCNT}')
        a(f'ds_add_rtn_u32 {v(t + 5)}, {v(t + 3)}, {v(vP)} offset:{GCNT}')
    a(f's_mov_b64 exec, {s(sV, 2)}')
    a(f's_waitcnt vmcnt({3 + PR})')
    for i in range(2):
        t = vP + 2 + 8 * i
        a(f'v_min_u32 {v(vIN + 2 + i)}, {N - 1}, {v(vIN + 2 + i)}')
        a(f'v_mul_u32_u24 {v(t + 6)}, {(OPT["nph"] << 26) // N}, {v(vIN + 2 + i)}')
        a(f'v_lshrrev_b32 {v(t + 6)}, 26, {v(t + 6)}')
        if OPT['rot']:
            a(f'v_mul_u32_u24 {v(t + 7)}, {8 // OPT["rot"]}, {v(t + 2)}')
            a(f'v_sub_u32 {v(t + 6)}, {v(t + 6)}, {v(t + 7)}')
            a(f'v_and_b32 {v(t + 6)}, 7, {v(t + 6)}')
        a(f'v_lshl_or_b32 {v(t + 6)}, {v(vIN + 2 + i)}, 10, {v(t + 6)}')
        a(f'v_lshrrev_b32 {v(t + 7)}, 8, {v(vIN + i)}')
        a(f'v_or_b32 {v(t + 1)}, 64, {v(t + 7)}')
        a(f'v_lshl_or_b32 {v(t + 6)}, {v(t + 1)}, 3, {v(t + 6)}')
    for i in range(2):
        t = vP + 2 + 8 * i
        a('s_waitcnt lgkmcnt(2)' if i == 0 and not OPT['sp1'] else 's_waitcnt lgkmcnt(0)')
        a(f'v_lshrrev_b32 {v(t + 1)}, 4, {v(t + 5)}')
        a(f'v_and_or_b32 {v(t + 1)}, {v(t + 1)}, -8, {v(t + 4)}')
        a(f'v_cmp_gt_u32 vcc, 7, {v(t + 1)}')
        a(f'v_lshl_or_b32 {v(t + 6)}, {v(t + 5)}, 24, {v(t + 6)}')
        a(f'v_mul_u32_u24 {v(t + 1)}, 18, {v(t + 4)}')
        a(f'v_and_b32 {v(t + 1)}, 28, {v(t + 1)}')
        a(f'v_lshl_add_u32 {v(t + 1)}, {v(t)}, 5, {v(t + 1)}')
        a(f's_andn2_b64 {s(sV + 4 + 2 * i, 2)}, {s(sV + 2 * i, 2)}, vcc')
        a(f's_and_b64 exec, {s(sV + 2 * i, 2)}, vcc')
        a(f'ds_write_b32 {v(t + 1)}, {v(t + 6)} offset:{CELL}')
        a(f's_mov_b64 exec, {s(sV, 2)}' if i == 0 else 's_mov_b64 exec, -1')
    if OPT['wmpos'] == 1:
        wmix_loads()
    a(f's_waitcnt vmcnt({2 + PR + (NC if OPT["wmpos"] == 1 else 0)})')
    a('s_branch JOIN2')
    a.label('HELPER')
    a(f's_cmp_eq_u32 {s(sW)}, 7')
    a('s_cbranch_scc1 HELP7')
    for k in range(4):
        a(f'global_load_dword {v(vIN + k)}, {v(iCW)}, {s(pWR, 2)} offset:{k * 256}')
    a(f'global_load_dword {v(vIN + 4)}, {v(iCW)}, {s(pWR, 2)}')
    a('s_branch HELP_W')
    a.label('HELP7')
    a(f'v_lshlrev_b32 {v(aT)}, 5, {v(iBS)}')
    a(f'v_bfe_u32 {v(aU)}, v0, 2, 2')
    a(f'v_lshl_add_u32 {v(aT)}, {v(aU)}, 1, {v(aT)}')
    for f in range(4):
        a(f'global_load_ushort {v(vIN + 4 + f)}, {v(aT)}, {s(pCG, 2)} offset:{f * 8}')
    a(f's_getpc_b64 {s(sM, 2)}')
    a.label('TBL_BASE')
    a(f'v_min_u32 {v(aT)}, 39, {v(vLN)}')
    a('s_and_b32 s3, s2, 0xf0')
    a('s_cselect_b32 s3, 0, 160')
    a('s_add_u32 s3, s3, rank_table-TBL_BASE')
    a(f'v_lshl_add_u32 {v(aT)}, {v(aT)}, 2, s3')
    a(f'global_load_dword {v(vIN + 8)}, {v(aT)}, {s(sM, 2)}')
    a.label('HELP_W')
    if OPT['wmpos'] == 1:
        wmix_loads()
    a(f's_waitcnt vmcnt({5 + PR + (NC if OPT["wmpos"] == 1 else 0)})')
    a.label('JOIN2')
    a(f'v_add_u32 {v(vEP)}, 1, {v(vEP)}')
    a(f'v_lshl_or_b32 {v(vTAG)}, {v(vEP)}, 1, 1')
    a(f's_mov_b32 {s(sT0)}, 0x9e3779b1')
    a(f'v_mul_lo_u32 {v(vMK)}, {v(vEP)}, {s(sT0)}')
    a(f'v_cndmask_b32 {v(vMK)}, {v(vMK)}, 0, {s(sODD, 2)}')
    bar()
    p0 = vP + 24
    a(f'ds_read_b128 {v(vC, 4)}, {v(aCE)} offset:{CELL}')
    a(f'ds_read_b32 {v(aGC)}, {v(aGC)} offset:{GCNT}')
    a('s_waitcnt lgkmcnt(1)')
    a(f'v_add_u32 {v(vC)}, {v(vC)}, {v(vMK)}')
    pairsum(aT, vC)
    a(f'v_sub_u32 {v(aT)}, {v(vTAG)}, {v(aT)}')
    a(f'v_cndmask_b32 {v(vC + 3)}, {v(vC + 3)}, {v(aT)}, {s(sODD, 2)}')
    a(f'buffer_store_dwordx4 {v(vC, 4)}, {v(aCE)}, {s(sWS, 4)}, {s(sOFF)} offen sc1')
    stamp(a, 2, sST)
    if OPT['wmpos'] == 2:
        wmix_loads()
    eload(1)
    a(f's_cmp_ge_u32 {s(sW)}, 5')
    a(f's_waitcnt vmcnt({NC + 1 + (EP_ == 1)})')
    a('s_cbranch_scc1 CONSTS')
    a(f's_mov_b64 exec, {s(sV, 2)}')
    for i in range(2):
        t = vP + 2 + 8 * i
        a(f'v_and_b32 {v(t + 4)}, 127, {v(t + 5)}')
        a(f'v_lshl_or_b32 {v(t + 4)}, {v(t + 2)}, 7, {v(t + 4)}')
        a(f'v_lshlrev_b32 {v(t + 4)}, 4, {v(t + 4)}')
    a(f'v_swap_b32 {v(vIN + 6)}, {v(vIN + 8)}')
    a(f'v_swap_b32 {v(vIN + 7)}, {v(vIN + 9)}')
    for i in range(2):
        t = vP + 2 + 8 * i
        if i:
            a(f's_mov_b64 exec, {s(sV + 2, 2)}')
        a(f'ds_write_b128 {v(t + 4)}, {v(vIN + 4 + 4 * i, 4)} offset:{PST}')
    a('s_mov_b64 exec, -1')
    a('s_branch NOSTAGE')
    a.label('CONSTS')
    t = vP + 8
    a(f's_cmp_eq_u32 {s(sW)}, 7')
    a('s_cbranch_scc1 CONST7')
    a(f's_sub_u32 {s(sT0)}, 6, {s(sW)}')
    a(f's_lshl_b32 {s(sT0)}, {s(sT0)}, 4')
    for k in range(4):
        a(f'v_lshlrev_b32 {v(t + k)}, {s(sT0)}, {v(vIN + k)}')
        a(f'v_and_b32 {v(t + k)}, 0xffff0000, {v(t + k)}')
        a(f'v_mul_f32 {v(t + k)}, 0xbfb8aa3b, {v(t + k)}')
    for m in range(2):
        a(f'v_cvt_pk_bf16_f32 {v(vWH + m)}, {v(t + 2 * m)}, {v(t + 2 * m + 1)}')
        a(f'v_lshlrev_b32 {v(t + 4)}, 16, {v(vWH + m)}')
        a(f'v_and_b32 {v(t + 5)}, 0xffff0000, {v(vWH + m)}')
        a(f'v_sub_f32 {v(t + 4)}, {v(t + 2 * m)}, {v(t + 4)}')
        a(f'v_sub_f32 {v(t + 5)}, {v(t + 2 * m + 1)}, {v(t + 5)}')
        a(f'v_cvt_pk_bf16_f32 {v(vWL + m)}, {v(t + 4)}, {v(t + 5)}')
    a(f's_sub_u32 {s(sT0)}, {s(sW)}, 5')
    a(f's_lshl_b32 {s(sT0)}, {s(sT0)}, 3')
    a(f'v_add_u32 {v(t)}, {s(sT0)}, {v(vL16)}')
    a(f'ds_write_b64 {v(t)}, {v(vWH, 2)} offset:{CST}')
    a(f'ds_write_b64 {v(t)}, {v(vWL, 2)} offset:{CST + 1024}')
    a('s_branch NOSTAGE')
    a.label('CONST7')
    a(f'v_lshl_or_b32 {v(vCG)}, {v(vIN + 5)}, 16, {v(vIN + 4)}')
    a(f'v_lshl_or_b32 {v(vCG + 1)}, {v(vIN + 7)}, 16, {v(vIN + 6)}')
    a(f'v_mov_b32 {v(vONE)}, 0xbfb8aa3b')
    a(f'v_mov_b32 {v(vONE + 1)}, 0xbfb8aa3b')
    a(f'ds_write_b128 {v(vL16)}, {v(vCG, 4)} offset:{CST + 2048}')
    a(f'ds_write_b32 {v(iCW)}, {v(vIN + 8)} offset:{TBL}')
    a.label('NOSTAGE')
    bar()
    for i in range(2):
        a(f'ds_read_b128 {v(p0 + 4 * i, 4)}, {v(aPS)} offset:{PST + 1024 * i}')
    a(f'v_cmp_lt_u32 vcc, {v(aL0)}, {v(aGC)}')
    a(f'v_cmp_lt_u32 {s(sM, 2)}, {v(aL1)}, {v(aGC)}')
    a(f's_cmp_ge_u32 {s(sW)}, 5')
    a(f'v_cndmask_b32 {v(aL0)}, {v(aNU)}, {v(aPS)}, vcc')
    a(f'v_cndmask_b32 {v(aL1)}, {v(aNU)}, {v(aPS)}, {s(sM, 2)}')
    for i, r in enumerate((aL0, aL1)):
        a(f's_waitcnt lgkmcnt({1 - i})')
        a(f'buffer_store_dwordx4 {v(p0 + 4 * i, 4)}, {v(r)}, {s(sWS, 4)}, {s(sPO)} offen offset:{1024 * i} sc1')
    eload(2)
    stamp(a, 9, sST)
    a('s_cbranch_scc1 LATE_DONE')
    a(f's_or_b64 {s(sM, 2)}, {s(sV + 4, 2)}, {s(sV + 6, 2)}')
    a('s_cbranch_scc0 LATE_DONE')
    for i in range(2):
        t = vP + 2 + 8 * i
        a(f's_mov_b64 exec, {s(sV + 4 + 2 * i, 2)}')
        a(f'ds_add_rtn_u32 {v(t + 4)}, {v(t + 3)}, {v(vP)} offset:{LCNT}')
    a('s_mov_b64 exec, -1')
    for i in range(2):
        t = vP + 2 + 8 * i
        a(f'v_add_u32 {v(t + 7)}, 1, {v(t + 7)}')
        a(f'v_and_b32 {v(t + 1)}, 31, {v(t)}')
        a(f'v_lshl_or_b32 {v(t + 7)}, {v(t + 1)}, 6, {v(t + 7)}')
        a(f'v_lshrrev_b32 {v(t + 6)}, 10, {v(t + 6)}')
        a(f'v_lshl_or_b32 {v(t + 7)}, {v(t + 6)}, 11, {v(t + 7)}')
        a(f'v_lshrrev_b32 {v(t + 1)}, 4, {v(t + 5)}')
    a('s_waitcnt lgkmcnt(0)')
    for i in range(2):
        t = vP + 2 + 8 * i
        a(f'v_and_or_b32 {v(t + 1)}, {v(t + 1)}, -8, {v(t + 4)}')
        a(f'v_cmp_gt_u32 vcc, 7, {v(t + 1)}')
        a(f'v_mul_u32_u24 {v(t + 1)}, 18, {v(t + 4)}')
        a(f'v_and_b32 {v(t + 1)}, 28, {v(t + 1)}')
        a(f'v_cndmask_b32 {v(t + 1)}, 4, {v(t + 1)}, vcc')
        a(f'v_cndmask_b32 {v(t + 7)}, 63, {v(t + 7)}, vcc')
        a(f'v_lshl_add_u32 {v(t + 1)}, {v(t + 2)}, 5, {v(t + 1)}')
        a(f's_mov_b64 exec, {s(sV + 4 + 2 * i, 2)}')
        a(f'ds_or_b32 {v(t + 1)}, {v(t + 7)} offset:{LATE}')
        a('s_mov_b64 exec, -1')
    a.label('LATE_DONE')
    spf(OPT['sp2'], OPT['sb2'])
    a(f's_waitcnt vmcnt({(3 if OPT["wmpos"] == 1 else 2) + (EP_ in (1, 2))})')
    for i in range(4):
        t = vQ + 4 * i
        w = vWM + 4 * i
        a(f'v_perm_b32 {v(t)}, {v(w + 1)}, {v(w)}, {s(sPERM0)}')
        a(f'v_perm_b32 {v(t + 1)}, {v(w + 3)}, {v(w + 2)}, {s(sPERM0)}')
        a(f'v_perm_b32 {v(t + 2)}, {v(w + 1)}, {v(w)}, {s(sPERM1)}')
        a(f'v_perm_b32 {v(t + 3)}, {v(w + 3)}, {v(w + 2)}, {s(sPERM1)}')
        a(f'ds_write2_b64 {v(aIW)}, {v(t, 2)}, {v(t + 2, 2)} offset0:0 offset1:4')
        if i < 3:
            a(f'v_add_u32 {v(aIW)}, {32 * IMG_R}, {v(aIW)}')

    def setup1():
        srd(a, sO, pOUT, N * 1024)
        a(f's_mov_b32 {s(sX)}, {s(pX)}')
        a(f's_or_b32 {s(sX + 1)}, {s(pX + 1)}, 0x100000')
        a(f's_mov_b32 {s(sX + 2)}, 64')
        a(f's_mov_b32 {s(sX + 3)}, 0x800000')
        a(f's_mov_b32 {s(sMODE)}, 0')
        a(f's_mov_b32 {s(sBASE)}, 0')
        a(f's_mov_b32 {s(sMUL)}, 64')
        a(f's_mov_b32 {s(sK1FF)}, 0x1ff')
        a(f's_mov_b32 {s(sPERM0)}, 0x05010400')
        a(f's_mov_b32 {s(sPERM1)}, 0x07030602')
        a('s_cmp_eq_u32 s2, 0')
        a(f's_cselect_b32 {s(sSPIN)}, {OPT["dev"]}, 1')
        a(f's_mov_b32 {s(sCNT)}, 0')
        a(f's_and_b32 {s(sT0)}, {s(sW)}, 4')
        a(f'v_mov_b32 {v(vGS)}, {s(sT0)}')
        a(f'v_and_b32 {v(iSB)}, 15, {v(vLN)}')
        a(f'v_mul_u32_u24 {v(vAA)}, {AGG_ROW}, {v(iSB)}')
        a(f'v_lshl_add_u32 {v(vAA)}, {v(iND)}, 4, {v(vAA)}')
        a(f's_mul_i32 {s(sOFF)}, {s(sT0)}, {AGG_W}')
        a(f's_add_u32 {s(sOFF)}, {s(sOFF)}, {AGG}')
        a(f'v_add_u32 {v(vAA)}, {s(sOFF)}, {v(vAA)}')
        a(f's_mul_i32 {s(sOFF)}, {s(sT0)}, 20')
        a(f'v_lshl_add_u32 {v(iND)}, {v(iND)}, 2, {s(sOFF)}')
        a(f's_mul_i32 {s(sOFF)}, {s(sW)}, {AGG_W}')
        a(f's_add_u32 {s(sOFF)}, {s(sOFF)}, {AGG}')
        a(f'v_add_u32 {v(vAG)}, {s(sOFF)}, {v(iCW)}')
        a(f's_lshl_b32 {s(sOFF)}, {s(sBK)}, 10')
        a(f's_lshl_b32 {s(sT1)}, {s(sT1)}, 8')
        a(f's_add_u32 {s(sOFF)}, {s(sOFF)}, {s(sT1)}')
        a(f'v_lshl_add_u32 {v(iSB)}, {v(iSB)}, 4, {s(sOFF)}')

    def setup2():
        a(f's_lshl_b32 {s(sT0)}, {s(sW)}, 9')
        a(f'v_mov_b32 {v(iEB)}, {s(sT0)}')
        a(f'v_add_u32 {v(iEO)}, {s(sT0)}, {v(iCW)}')
        a(f'v_lshlrev_b32 {v(iRW)}, 2, {v(iEO)}')
        a(f's_mul_i32 {s(sG)}, {s(sW)}, {BLK_W}')
        a(f's_add_u32 {s(sG)}, {s(sG)}, {BLK}')
        a(f'v_lshrrev_b32 {v(vU + 3)}, 2, {v(vLN)}')
        a(f'v_mul_u32_u24 {v(vU + 3)}, {BLK_G}, {v(vU + 3)}')
        a(f'v_add_u32 {v(vU + 3)}, {s(sG)}, {v(vU + 3)}')
        a(f'v_lshl_add_u32 {v(iBW)}, {v(iBS)}, 2, {v(vU + 3)}')
        a(f'v_lshl_add_u32 {v(iBE)}, {v(iBS)}, 3, {v(vU + 3)}')
        a(f'v_lshl_add_u32 {v(iBT)}, {v(iBS)}, 5, {v(vU + 3)}')
        a(f'v_add_u32 {v(iBS)}, {v(iBS)}, {v(vU + 3)}')
        a(f's_mul_i32 {s(sT0)}, {s(sW)}, 5')
        a(f'v_add_u32 {v(iNA)}, {s(sT0)}, {v(vLN)}')
        a(f'v_cmp_gt_u32 vcc, 40, {v(vLN)}')
        a(f'v_subrev_u32 {v(iKB)}, 40, {v(iNA)}')
        a(f'v_min_u32 {v(iNA)}, {v(iNA)}, {v(iKB)}')
        a(f'v_cndmask_b32 {v(iNA)}, 63, {v(iNA)}, vcc')
        a(f'v_sub_u32 {v(iKB)}, 63, {v(iNA)}')
        a(f'v_lshlrev_b32 {v(iNA)}, 3, {v(iNA)}')
        a(f'v_lshrrev_b32 {v(vPF)}, 3, {v(vLN)}')
        a(f'v_and_b32 {v(vPF + 1)}, 7, v0')
        a(f'v_lshlrev_b32 {v(vPF + 1)}, 7, {v(vPF + 1)}')
        if OPT['pfx'] > 1:
            a(f's_and_b32 {s(sT0)}, s2, {OPT["pfx"] - 1}')
            a(f's_lshl_b32 {s(sT0)}, {s(sT0)}, 10')
            a(f'v_add_u32 {v(vPF + 1)}, {s(sT0)}, {v(vPF + 1)}')
        if OPT['rot']:
            a(f's_and_b32 {s(sT0)}, s2, {OPT["rot"] - 1}')
            a(f's_mul_i32 {s(sT0)}, {s(sT0)}, {N // OPT["rot"] * 1024}')
            a(f'v_add_u32 {v(vPF + 1)}, {s(sT0)}, {v(vPF + 1)}')
        pfissue(OPT['pfd'] or OPT['pfc'] or OPT['pfp'])
        if OPT['run']:
            a(f'v_min_u32 {v(vPF)}, {OPT["run"] - 1}, {v(vLN)}')
            a(f's_mul_i32 {s(sT0)}, {s(sPFW)}, {OPT["run"]}')
            a(f'v_add_u32 {v(vPF)}, {s(sT0)}, {v(vPF)}')
            a(f'v_and_b32 {v(vPF + 1)}, 7, {v(vPF)}')
            a(f'v_and_b32 {v(vPF)}, -8, {v(vPF)}')
            a(f's_and_b32 {s(sT0)}, s2, 7')
            a(f's_add_u32 {s(sT0)}, {s(sT0)}, {OPT["rbase"]}')
            a(f'v_add_lshl_u32 {v(vPF)}, {v(vPF)}, {s(sT0)}, 10')
            a(f'v_lshl_add_u32 {v(vPF)}, {v(vPF + 1)}, 7, {v(vPF)}')
        for r in range(4):
            a(f'v_mov_b32 {v(rt[r] + 3)}, 1')

    def runpf():
        if OPT['run']:
            a(f'buffer_load_dword {v(vPF + 1)}, {v(vPF)}, {s(sD, 4)}, 0 offen')
            a(f'v_add_u32 {v(vPF)}, {OPT["rstep"] * 1024}, {v(vPF)}')

    if OPT['pre'] >= 1:
        setup1()
    if OPT['pre'] >= 2:
        setup2()
    bar()
    a(f'ds_read_b128 {v(vL, 4)}, {v(aLA)} offset:{LATE}')

    def poll():
        stamp(a, 11, sST)
        a(f'buffer_load_dwordx4 {v(vC, 4)}, {v(vCA)}, {s(sWS, 4)}, {s(sCOFF)} offen sc1')
    if OPT['pollfirst']:
        a('s_waitcnt vmcnt(2)')
        poll()
    a('s_waitcnt lgkmcnt(0)')
    a(f'v_add_u32 {v(vL)}, {v(vL)}, {v(vMK)}')
    pairsum(aT, vL)
    a(f'v_sub_u32 {v(aT)}, {v(vTAG)}, {v(aT)}')
    a(f'v_cndmask_b32 {v(vL + 3)}, {v(vL + 3)}, {v(aT)}, {s(sODD, 2)}')
    a('s_mov_b64 exec, 3')
    assert not (EP_ and OPT['pollfirst'])
    a(f's_waitcnt vmcnt({OPT["pollfirst"] + (EP_ == 2)})')
    a(f'buffer_store_dwordx4 {v(vL, 4)}, {v(vL16)}, {s(sWS, 4)}, {s(sLS)} offen sc1')
    a('s_mov_b64 exec, -1')
    stamp(a, 10, sST)
    if not OPT['pollfirst']:
        if OPT['pwait']:
            a('s_waitcnt vmcnt(0)')
        poll()
    a(f'ds_read_b32 {v(iTB)}, {v(iCW)} offset:{TBL}')
    for i in range(3):
        a(f'ds_read_b128 {v(vWH + 4 * i, 4)}, {v(vL16)} offset:{CST + 1024 * i}')
    for kk in range(4):
        for r in range(2):
            for hf in range(2):
                a(f'ds_read_b64_tr_b16 {v(vB + 8 * kk + 4 * r + 2 * hf, 2)}, {v(aIR)} offset:{(32 * kk + 4 * hf) * IMG_R + 32 * r}')
        if kk == 1:
            if OPT['pre'] < 1:
                setup1()
            a('s_waitcnt lgkmcnt(4)')
            eload(3)
    if OPT['pre'] < 2:
        setup2()
    spf(OPT['sp3'], OPT['sb3'])
    stamp(a, 12, sST)
    a(f's_waitcnt vmcnt({OPT["pollfirst"] + (EP_ == 3)})')
    a.label('POLL')
    pairsum(vR, vC)
    a(f'v_sub_u32 {v(vC)}, {v(vC)}, {v(vMK)}')
    a(f'v_cmp_ne_u32 vcc, {v(vTAG)}, {v(vR)}')
    a('s_cbranch_vccnz REPOLL')
    if OPT['pfd']:
        pfload()
    stamp(a, 3, sST)
    a(f'v_cndmask_b32 {v(vC + 3)}, {v(vC + 3)}, 0, {s(sODD, 2)}')

    a.label('BATCH')
    for r in range(4):
        t, e = rt[r], vC + r
        a(f'v_cmp_ne_u32 {s(sV + 2 * r, 2)}, 0, {v(e)}')
        a(f'v_lshlrev_b32 {v(t)}, 2, {v(e)}')
        a(f'v_and_b32 {v(t + 1)}, 0x1f8, {v(e)}')
        a(f'v_lshlrev_b32 {v(t + 2)}, {v(t)}, 1')
    for r in range(4):
        t = rt[r]
        a(f's_mov_b64 exec, {s(sV + 2 * r, 2)}')
        a(f'ds_add_rtn_u64 {v(t + 4, 2)}, {v(t + 1)}, {v(t + 2, 2)} offset:{NCNT}')
    a('s_mov_b64 exec, -1')
    a(f's_mov_b64 {s(sLM, 2)}, 0')
    a(f's_mov_b32 {s(sOFF)}, 0x01010100')
    a(f's_mov_b32 {s(sT1)}, 0x01010101')
    bar()
    a(f'ds_read_b64 {v(vR, 2)}, {v(iNA)} offset:{NCNT}')

    def lateload():
        a(f'buffer_load_dwordx4 {v(vL, 4)}, {v(vFA)}, {s(sWS, 4)}, {s(sLOFF)} offen sc1')
        if OPT['pfc']:
            pfload()
    if OPT['latepos'] == 0:
        lateload()
    for r in range(4):
        t = rt[r]
        a(f'v_and_b32 {v(t + 2)}, 0x1ff, {v(vC + r)}')
        a(f'v_bfe_u32 {v(t + 4)}, {v(t + 4)}, {v(t)}, 4')
    a('s_waitcnt lgkmcnt(0)')
    a(f'v_min_u32 {v(vR + 4)}, 0xffff, {v(vR + 1)}')
    a(f'v_mad_u32_u24 {v(vR + 2)}, {v(vR + 4)}, {s(sMUL)}, {v(iKB)}')
    a(f'v_lshrrev_b32 {v(vR + 8)}, 4, {v(vR)}')
    for j in range(5):
        a(f'v_readlane_b32 {s(sWD + j)}, {v(vR + 2)}, {j}')
    a(f'v_and_b32 {v(vR + 8)}, 0x0f0f0f0f, {v(vR + 8)}')
    a(f'v_and_b32 {v(vR + 9)}, 0x0f0f0f0f, {v(vR)}')
    for j in range(5):
        a(f'v_cmp_lt_u32 vcc, {s(sWD + j)}, {v(vR + 2)}')
        a(f's_bcnt1_i32_b64 {s(sWD + j)}, vcc')
    a(f'v_perm_b32 {v(vR)}, {v(vR + 8)}, {v(vR + 9)}, {s(sPERM0)}')
    a(f'v_perm_b32 {v(vR + 1)}, {v(vR + 8)}, {v(vR + 9)}, {s(sPERM1)}')
    for j in range(5):
        a(f'v_readlane_b32 {s(sWD + j)}, {v(iTB)}, {s(sWD + j)}')
    a(f'v_sad_u8 {v(vR + 8)}, {v(vR)}, 0, 0')
    a(f'v_sad_u8 {v(vR + 9)}, {v(vR + 1)}, 0, {v(vR + 8)}')
    for j in range(5):
        a(f'v_writelane_b32 {v(vR + 3)}, {s(sWD + j)}, {j}')
    a('s_mov_b64 exec, 31')
    a(f'v_bfe_u32 {v(vR + 12)}, {v(vR + 3)}, 6, 6')
    a(f'ds_add_rtn_u64 {v(vR + 6, 2)}, {v(vR + 12)}, {v(vR, 2)} offset:{TOT}')
    a(f'ds_write_b16 {v(iNA)}, {v(vR + 3)} offset:{CODE}')
    a(f'v_mul_lo_u32 {v(vR + 10)}, {v(vR)}, {s(sOFF)}')
    a(f'v_mul_lo_u32 {v(vR + 11)}, {v(vR + 1)}, {s(sOFF)}')
    a(f'v_mul_lo_u32 {v(vR + 8)}, {v(vR + 8)}, {s(sT1)}')
    a(f'v_sub_u32 {v(vR + 9)}, {v(vR + 4)}, {v(vR + 9)}')
    a(f'v_add_u32 {v(vR + 11)}, {v(vR + 11)}, {v(vR + 8)}')
    a(f'ds_add_u64 {v(vR + 12)}, {v(vR + 10, 2)} offset:{TOTP}')
    a(f'v_lshl_add_u32 {v(vR + 4)}, {v(vR + 9)}, 8, {v(vR + 4)}')
    a(f'v_lshrrev_b32 {v(vR + 12)}, 1, {v(vR + 12)}')
    a(f'ds_add_u32 {v(vR + 12)}, {v(vR + 4)} offset:{CNTW}')
    a(f'v_lshrrev_b32 {v(vR + 12)}, 16, {v(vR + 3)}')
    a(f'ds_write_b32 {v(vR + 12)}, {v(iNA)} offset:{NODE}')
    a('s_waitcnt lgkmcnt(4)')
    a(f'ds_write_b64 {v(iNA)}, {v(vR + 6, 2)} offset:{PRE}')
    a('s_mov_b64 exec, -1')
    for r in range(4):
        t = rt[r]
        a(f'v_lshrrev_b32 {v(t + 3)}, 24, {v(vC + r)}')
        a(f'v_lshl_add_u32 {v(t + 3)}, {v(t + 3)}, 4, {v(vB0)}')

    def latecheck():
        a(f's_cmp_lg_u32 {s(sMODE)}, 0')
        a('s_cbranch_scc1 PAY_SLOW')
        a(f's_waitcnt vmcnt({1 if OPT["pfc"] else 0})')
        a.label('LATECHK')
        pairsum(vU, vL)
        a(f'v_sub_u32 {v(vL)}, {v(vL)}, {v(vMK)}')
        a(f'v_xor_b32 {v(vU + 1)}, {s(sBK6)}, {v(vL)}')
        a(f'v_and_b32 {v(vU + 1)}, 0x7ff, {v(vU + 1)}')
        a(f'v_add_u32 {v(vU + 1)}, -1, {v(vU + 1)}')
        a(f'v_cmp_ne_u32 vcc, {v(vTAG)}, {v(vU)}')
        a(f'v_cmp_gt_u32 {s(sM, 2)}, 40, {v(vU + 1)}')
        a(f'v_cmp_ne_u32 {s(sLM, 2)}, 0, {v(vL + 1)}')
        a('s_cbranch_vccnz RELATE')
        a(f's_or_b64 {s(sLM, 2)}, {s(sM, 2)}, {s(sLM, 2)}')
        a('s_cbranch_scc1 LATE_PRE')
        a.label('LATE_OK')
        for r in range(4):
            a(f's_mov_b64 exec, {s(sV + 2 * r, 2)}')
            a('s_cbranch_execz PAY_OUT')
            a(f'buffer_load_dwordx4 {v(vPAY + 4 * r, 4)}, {v(rt[r] + 3)}, {s(sWS, 4)}, 0 offen sc1')
        a.label('PAY_OUT')
        a('s_mov_b64 exec, -1')
        if OPT['pfp']:
            pfload()
        a.label('PAY_JOIN')
        if OPT['stamps']:
            a(f'v_writelane_b32 v255, {s(sCNT)}, 15')

    bar()
    stamp(a, 13, sST)
    if OPT['chkpos'] == 0:
        latecheck()
    for r in range(4):
        t = rt[r]
        a(f'ds_read_u16 {v(t + 7)}, {v(t + 1)} offset:{CODE}')
    for r in range(4):
        t = rt[r]
        a(f'ds_read_u8 {v(t + 6)}, {v(t + 2)} offset:{PRE}')
    if OPT['latepos'] == 1:
        lateload()
    for r in range(4):
        t = rt[r]
        a('s_waitcnt lgkmcnt(7)')
        a(f'v_lshrrev_b32 {v(t + 1)}, 6, {v(t + 7)}')
        a(f'v_and_or_b32 {v(t + 1)}, {v(vC + r)}, 7, {v(t + 1)}')
        a(f'ds_read_u8 {v(t + 5)}, {v(t + 1)} offset:{TOTP}')
    for r in range(4):
        t = rt[r]
        a(f'v_bfi_b32 {v(t + 2)}, {s(sK1FF)}, {v(t + 7)}, {v(vC + r)}')
        a(f'v_and_b32 {v(t + 7)}, 0xe00, {v(t + 7)}')
    a(f'v_lshrrev_b32 {v(vR)}, 7, {v(iEB)}')
    a(f'v_mov_b32 {v(vR + 1)}, 8')
    for r in range(4):
        t = rt[r]
        a(f's_waitcnt lgkmcnt({3 - r})')
        a(f'v_add3_u32 {v(t + 4)}, {v(t + 4)}, {v(t + 5)}, {v(t + 6)}')
        a(f'v_and_b32 {v(t + 4)}, 127, {v(t + 4)}')
        a(f'v_lshl_add_u32 {v(t + 4)}, {v(t + 4)}, 2, {v(t + 7)}')
    for r in range(4):
        t = rt[r]
        a(f's_mov_b64 exec, {s(sV + 2 * r, 2)}')
        a(f'ds_write_b32 {v(t + 4)}, {v(t + 2)} offset:{ENT}')
    a('s_mov_b64 exec, 1')
    a(f'ds_max_u32 {v(vR)}, {v(vR + 1)} offset:{CNTW}')
    a('s_mov_b64 exec, -1')
    if OPT['chkpos'] == 1:
        latecheck()
    bar()
    stamp(a, 14, sST)
    a(f'ds_read_b128 {v(vT, 4)}, {v(iEB)} offset:{ENT}')
    a(f'ds_read_b128 {v(vWD, 4)}, {v(iEB)} offset:{ENT + 16}')
    for r in range(4):
        a(f'v_lshlrev_b32 {v(rt[r] + 4)}, 2, {v(rt[r] + 4)}')
    a(f'v_add_u32 {v(vAT)}, {s(sG)}, {v(vSMA)}')
    if EP_ >= 4:
        a(f'v_mov_b32 {v(vPF)}, {v(vAW)}')
    a(f'v_mov_b32 {v(vAW)}, {s(sG)}')
    for j_ in range(8):
        if j_ % 4 == 0:
            a(f's_waitcnt lgkmcnt({1 - j_ // 4})')
        a(f'v_and_b32 {v(vT + j_)}, {XM}, {v(vT + j_)}')
        if j_ < OPT['x1']:
            a(f'buffer_load_dwordx4 {v(vX + 4 * j_, 4)}, {v(vT + j_)}, {s(sX, 4)}, 0 offen')
    a(f's_waitcnt vmcnt({OPT["x1"] + (1 if OPT["pfp"] else 0)})')
    for r in range(4):
        a(f's_mov_b64 exec, {s(sV + 2 * r, 2)}')
        a(f'ds_write_b128 {v(rt[r] + 4)}, {v(vPAY + 4 * r, 4)} offset:{RAW}')
    a('s_mov_b64 exec, -1')
    a(f's_cmp_lg_u64 {s(sLM, 2)}, 0')
    a('s_cbranch_scc1 LATE_POST')
    a.label('LATE_END')
    bar()
    stamp(a, 4, sST)
    en = [vG + 10, vG + 11]
    pay = [vG + 12, vG + 16]
    a(f'ds_read_b128 {v(pay[0], 4)}, {v(iRW)} offset:{RAW}')
    a(f'ds_read_b32 {v(vG + 21)}, {v(iCW)} offset:{CNTW}')
    a(f'ds_read2st64_b32 {v(en[0], 2)}, {v(iEO)} offset0:{ENT // 256} offset1:{ENT // 256 + 1}')
    a(f'ds_read_b128 {v(pay[1], 4)}, {v(iRW)} offset:{RAW + 1024}')
    for j_ in range(OPT['x1'], 8):
        a(f'buffer_load_dwordx4 {v(vX + 4 * j_, 4)}, {v(vT + j_)}, {s(sX, 4)}, 0 offen')
    if OPT['run']:
        a(f's_mov_b64 {s(sD, 2)}, {s(pX, 2)}')
        a(f's_mov_b32 {s(sD + 2)}, {N * 1024}')
        runpf()

    def zmfma(buf, j, rec):
        h = j & 1
        d = vZ + 8 * buf + 4 * h
        if j < 2:
            a(f'v_mfma_f32_4x4x4_16b_bf16 {v(d, 4)}, {v(rec, 2)}, {v(vWH + 2 * h, 2)}, 0 cbsz:4 abid:0')
        else:
            a(f'v_mfma_f32_4x4x4_16b_bf16 {v(d, 4)}, {v(rec, 2)}, {v(vWL + 2 * h, 2)}, {v(d, 4)} cbsz:4 abid:0')

    def tmfma(p):
        for o in range(4):
            a(f'v_mfma_f32_4x4x4_16b_bf16 {v(vTP + 16 + 4 * o, 4)}, {v(vCG, 2)}, {v(p, 2)}, 0 cbsz:4 abid:{o}')

    def tstore(p, st):
        d, c = vTP + 16, vTP
        a(f'ds_write_b64 {v(iBE)}, {v(p + 2, 2)} offset:{128 + 16 * st * BLK_G}')
        a(f'v_and_b32 {v(vG + 20)}, {XM}, {v(en[st])}')
        a(f'ds_write_b8 {v(iBS)}, {v(en[st])} offset:{160 + (16 * st + 1) * BLK_G}')
        a(f'ds_write_b32 {v(iBW)}, {v(vG + 20)} offset:{176 + 16 * st * BLK_G}')
        for o in range(4):
            for m in range(2):
                a(f'v_cvt_pk_bf16_f32 {v(c + 2 * o + m)}, {v(d + 4 * o + 2 * m)}, {v(d + 4 * o + 2 * m + 1)}')
        a(f'ds_write_b128 {v(iBT)}, {v(c, 4)} offset:{16 * st * BLK_G}')
        a(f'ds_write_b128 {v(iBT)}, {v(c + 4, 4)} offset:{16 * st * BLK_G + 16}')

    a('s_waitcnt lgkmcnt(3)')
    tmfma(pay[0])
    for j in range(NZ):
        zmfma(0, j, pay[0] + 2)
    a('s_waitcnt lgkmcnt(1)')
    a(f'v_readlane_b32 {s(sCNT)}, {v(vG + 21)}, {s(sW)}')
    a(f'v_cmp_lt_u32 vcc, 128, {v(vG + 21)}')
    a(f's_and_b32 {s(sT0)}, vcc_lo, 0x1ff')
    a('s_cbranch_scc1 SLOW_ENTER')
    tstore(pay[0], 0)
    a(f'ds_read2_b64 {v(vT, 4)}, {v(vAT)} offset0:0 offset1:{(BLK_G + 128) // 8}')
    a(f'ds_read_b128 {v(vWD, 4)}, {v(vAW)} offset:{176 + BLK_G * 2}')
    for i in range(8):
        a(f'v_exp_f32 {v(vE + i)}, {v(vZ + i)}')
    a(f's_add_u32 {s(sCNT)}, {s(sCNT)}, 3')
    a(f's_lshr_b32 {s(sCNT)}, {s(sCNT)}, 2')
    a(f's_mov_b32 {s(sT1)}, 1')
    for i in range(0, 8, 2):
        a(f'v_pk_fma_f32 {v(vE + i, 2)}, {v(vE + i, 2)}, {v(vONE, 2)}, {v(vONE, 2)}')
    if OPT['prio'] in (3, 4):
        a('s_setprio 1')
    stamp(a, 5, sST)
    if OPT['clk']:
        a(f's_memtime {s(sST, 2)}')
        a('s_waitcnt lgkmcnt(0)')
        a(f'v_writelane_b32 v255, {s(sST)}, 8')

    a.label('LOOP')
    for g in range(2):
        b = g
        if OPT['prio'] == 2:
            a(f's_setprio {g & 1}')
        if OPT['prio'] == 4:
            a(f's_setprio {1 + (g & 1)}')
        a(f's_cmp_lt_u32 {s(sCNT)}, 3')
        a(f's_waitcnt vmcnt({5 if OPT["run"] else 4}) lgkmcnt(0)')
        a(f's_cbranch_scc1 DRAIN{g}')
        a.label(f'BACK{g}')
        tr = [f'v_rcp_f32 {v(vE + 8 * b + i)}, {v(vE + 8 * b + i)}' for i in range(8)]
        tr += [f'v_exp_f32 {v(vE + 8 * (1 - b) + i)}, {v(vZ + 8 * (1 - b) + i)}' for i in range(8)]
        a(f'v_readlane_b32 {s(sSL)}, {v(vT + 2)}, 4')
        ti = 0
        for j in range(NZ):
            zmfma(1 - b, j, vT + 2)
            a(tr[ti])
            ti += 1
        for j in range(4):
            for h in range(2):
                a(f'v_mfma_f32_4x4x4_16b_bf16 {v(vTP + 8 * j + 4 * h, 4)}, {v(vT, 2)}, {v(vX + 16 * g + 4 * j + 2 * h, 2)}, 0 cbsz:4 abid:{j}')
                a(tr[ti])
                ti += 1
        a(f'ds_read2_b64 {v(vT, 4)}, {v(vAT)} offset0:{BLK_G * (g + 1) // 8} offset1:{(BLK_G * (g + 2) + 128) // 8}')
        a(f's_cbranch_scc1 NOLD{g}')
        for j in range(4):
            a(f'buffer_load_dwordx4 {v(vX + 16 * g + 4 * j, 4)}, {v(vWD + j)}, {s(sX, 4)}, 0 offen')
        if g == 1:
            runpf()
        a(f'ds_read_b128 {v(vWD, 4)}, {v(vAW)} offset:{176 + BLK_G * (g + 3)}')
        a.label(f'NOLD{g}')
        for x in tr[ti:]:
            a(x)
        for i in range(0, 8, 2):
            a(f'v_pk_mul_f32 {v(vE + 8 * b + i, 2)}, {v(vE + 8 * b + i, 2)}, {v(vZ + 8 * b + i, 2)}')
        for i in range(0, 8, 2):
            a(f'v_pk_fma_f32 {v(vE + 8 * (1 - b) + i, 2)}, {v(vE + 8 * (1 - b) + i, 2)}, {v(vONE, 2)}, {v(vONE, 2)}')
        for j in range(4):
            a(f's_set_gpr_idx_on {s(sSL)}, gpr_idx(SRC2,DST)' if j == 0 else f's_set_gpr_idx_idx {s(sSL)}')
            a.idx_range = (vACC, vACC + 48)
            sel = j & 1
            for h in range(2):
                rp = vE + 8 * b + 4 * h + 2 * (j >> 1)
                for m in range(2):
                    d = vACC + 4 * h + 2 * m
                    a(f'v_pk_fma_f32 {v(d, 2)}, {v(rp, 2)}, {v(vTP + 8 * j + 4 * h + 2 * m, 2)}, {v(d, 2)} op_sel:[{sel},0,0] op_sel_hi:[{sel},1,1]')
                    if h == 0 and m == 0 and j < 3:
                        a(f's_lshr_b32 {s(sSL)}, {s(sSL)}, 8')
            a.idx_range = None
        a('s_set_gpr_idx_off')
        if g == 1:
            a(f'v_add_u32 {v(vAT)}, {BLK_G * 2}, {v(vAT)}')
            a(f'v_add_u32 {v(vAW)}, {BLK_G * 2}, {v(vAW)}')
        a(f's_sub_u32 {s(sCNT)}, {s(sCNT)}, 1')
    a(f's_cmp_eq_u32 {s(sT1)}, 0')
    a('s_cbranch_scc1 LOOP')
    a(f's_mov_b32 {s(sT1)}, 0')
    if EP_ == 5:
        a(f's_cmp_lg_u32 {s(sMODE)}, 0')
        a('s_cbranch_scc1 NOE5')
        a(f'global_load_dword {v(vPF + 3)}, {v(vPF)}, {s(pX, 2)}{" nt" if OPT["ent"] else ""}')
        a.label('NOE5')
    tmfma(pay[1])
    tstore(pay[1], 1)
    a('s_branch LOOP')
    for g in range(2):
        a.label(f'DRAIN{g}')
        a(f's_cmp_eq_u32 {s(sCNT)}, 2')
        a(f's_cbranch_scc1 BACK{g}')
        a(f's_cmp_eq_u32 {s(sCNT)}, 1')
        a('s_waitcnt vmcnt(0)')
        a(f's_cbranch_scc1 BACK{g}')
        if g == 0:
            a('s_branch LIST_DONE')
    a.label('LIST_DONE')
    a(f's_cmp_lg_u32 {s(sMODE)}, 0')
    a('s_cbranch_scc1 SLOW_NEXT')

    a.label('MIX')
    vD = vE
    vS = vG

    def areg(i):
        return vX + 4 * i if i < 8 else vTP + 4 * (i - 8)
    if OPT['prio'] in (3, 4):
        a('s_setprio 0')
    stamp(a, 6, sST)
    if OPT['clk']:
        a(f's_memtime {s(sST, 2)}')
        a('s_waitcnt lgkmcnt(0)')
        a(f'v_writelane_b32 v255, {s(sST)}, 9')
    vNO = vC
    for t_ in range(5):
        a(f'ds_read_b32 {v(vNO + t_)}, {v(iND)} offset:{NODE + 16 * t_}')
    for sl in range(5):
        for o in range(4):
            a(f'v_cvt_pk_bf16_f32 {v(vACC + 8 * sl + o)}, {v(vACC + 8 * sl + o)}, {v(vACC + 8 * sl + 4 + o)}')
        for o in range(0, 4, 2):
            a(f'ds_write2_b32 {v(vAG)}, {v(vACC + 8 * sl + o)}, {v(vACC + 8 * sl + o + 1)} offset0:{o * AGG_ROW // 4} offset1:{(o + 1) * AGG_ROW // 4}')
        if sl == 2:
            a('s_waitcnt lgkmcnt(4)')
        if sl < 4:
            a(f'v_add_u32 {v(vAG)}, {4 * AGG_ROW}, {v(vAG)}')
    a(f'v_mov_b32 {v(vWD)}, 1')
    a('s_mov_b64 exec, 1')
    a(f'ds_add_u32 {v(vGS)}, {v(vWD)} offset:{GS}')
    a(f's_or_b32 {s(sOFF)}, {s(sW)}, s2')
    a('s_cbranch_scc1 NOBUMP')
    a(f'buffer_store_dword {v(vEP)}, off, {s(sWS, 4)}, 0 sc1')
    a.label('NOBUMP')
    a('s_mov_b64 exec, -1')
    if OPT['tailst']:
        stamp(a, 8, sST)
    a.label('GSYNC')
    a(f'ds_read_b32 {v(vWD + 1)}, {v(vGS)} offset:{GS}')
    a('s_waitcnt lgkmcnt(0)')
    a(f'v_cmp_ne_u32 vcc, 4, {v(vWD + 1)}')
    a('s_cbranch_vccnz GWAIT')

    def aread(i):
        a(f'ds_read_b128 {v(areg(i), 4)}, {v(vAA)} offset:{(i >> 2) * 16 * AGG_ROW + (i & 3) * 64}')
    if OPT['tailst']:
        stamp(a, 9, sST)
    for i in range(12):
        aread(i)
    for t_ in range(5):
        a(f'v_lshl_add_u32 {v(vNO + t_)}, {v(vNO + t_)}, 15, {v(iSB)}')
    pol = ['', ' sc1', ' nt', ' sc0 sc1 nt'][OPT['outpol']]

    def outt(t_):
        d = vD + 8 * (t_ & 1)
        st = vS + 4 * t_
        for r in range(2):
            a(f'v_cvt_pk_bf16_f32 {v(st + 2 * r)}, {v(d + 4 * r)}, {v(d + 4 * r + 1)}')
            a(f'v_cvt_pk_bf16_f32 {v(st + 2 * r + 1)}, {v(d + 4 * r + 2)}, {v(d + 4 * r + 3)}')
        a(f'buffer_store_dwordx4 {v(st, 4)}, {v(vNO + t_)}, {s(sO, 4)}, 0 offen{pol if t_ < 5 - OPT["lastwb"] else ""}')

    for i in range(20):
        t_, kk = i >> 2, i & 3
        a(f's_waitcnt lgkmcnt({min(11, 19 - i)})')
        for r in range(2):
            d = vD + 8 * (t_ & 1) + 4 * r
            a(f'v_mfma_f32_16x16x32_bf16 {v(d, 4)}, {v(areg(i), 4)}, {v(vB + 8 * kk + 4 * r, 4)}, {"0" if kk == 0 else v(d, 4)}')
        if i + 12 < 20:
            aread(i + 12)
        if kk == 2 and t_ > 0:
            outt(t_ - 1)
    outt(4)
    if OPT['tailst']:
        stamp(a, 10, sST)
    if OPT['stamps']:
        a('s_waitcnt vmcnt(0)')
        stamp(a, 7, sST)
        emit_stamps(a, sST, pWS, 4)
    a.label('K_END')
    a('s_endpgm')

    a.label('GWAIT')
    a('s_sleep 1')
    a('s_branch GSYNC')

    def setflag():
        a(f'v_mov_b32 {v(vU)}, {FLAG}')
        a(f'ds_write_b32 {v(vU)}, {v(vU)}')

    a.label('REPOLL')
    a(f's_add_u32 {s(sCNT)}, {s(sCNT)}, {s(sSPIN)}')
    a(f's_lshr_b32 {s(sM)}, {s(sCNT)}, {OPT["spin"]}')
    a('s_cbranch_scc1 GIVEUP')
    a(f'buffer_load_dwordx4 {v(vC, 4)}, {v(vCA)}, {s(sWS, 4)}, {s(sCOFF)} offen sc1')
    a('s_waitcnt vmcnt(0)')
    a('s_branch POLL')
    a.label('GIVEUP')
    for r in range(4):
        a(f'v_mov_b32 {v(vC + r)}, 0')
    setflag()
    a('s_branch BATCH')
    a.label('RELATE')
    a(f's_add_u32 {s(sCNT)}, {s(sCNT)}, 1')
    a(f's_lshr_b32 {s(sM)}, {s(sCNT)}, {OPT["spin"]}')
    a('s_cbranch_scc1 GIVEUP2')
    a(f'buffer_load_dwordx4 {v(vL, 4)}, {v(vFA)}, {s(sWS, 4)}, {s(sLOFF)} offen sc1')
    a('s_waitcnt vmcnt(0)')
    a('s_branch LATECHK')
    a.label('GIVEUP2')
    setflag()
    a(f's_mov_b64 {s(sLM, 2)}, 0')
    a('s_branch LATE_OK')

    a.label('LATE_PRE')
    a(f'v_cndmask_b32 {v(vL + 3)}, {v(vL + 3)}, 0, {s(sODD, 2)}')
    a(f'v_and_b32 {v(vU)}, 63, {v(vL + 1)}')
    a(f'v_cmp_eq_u32 vcc, 63, {v(vU)}')
    a('s_cbranch_vccnz GIVEUP2')
    a(f's_mov_b64 {s(sLM, 2)}, 0')
    for r in range(4):
        a(f'v_xor_b32 {v(vU)}, {s(sBK6)}, {v(vL + r)}')
        a(f'v_and_b32 {v(vU)}, 0x7ff, {v(vU)}')
        a(f'v_add_u32 {v(vU)}, -1, {v(vU)}')
        a(f'v_cmp_gt_u32 vcc, 40, {v(vU)}')
        a(f'v_lshrrev_b32 {v(vU)}, 25, {v(vL + r)}')
        a(f'v_lshl_add_u32 {v(vU)}, {v(vU)}, 4, {v(vB0)}')
        a(f's_mov_b64 {s(sLR + 2 * r, 2)}, vcc')
        a(f's_cbranch_vccz LATE_P{r}')
        a(f's_or_b64 {s(sLM, 2)}, {s(sLM, 2)}, vcc')
        a('s_mov_b64 exec, vcc')
        a(f'buffer_load_dwordx4 {v(vLP + 4 * r, 4)}, {v(vU)}, {s(sWS, 4)}, 0 offen sc1')
        a('s_mov_b64 exec, -1')
        a.label(f'LATE_P{r}')
    a('s_branch LATE_OK')
    a.label('LATE_POST')
    t = rt[0]
    for r in range(4):
        a(f's_mov_b64 exec, {s(sLR + 2 * r, 2)}')
        a(f's_cbranch_execz LATE_Q{r}')
        a(f'v_and_b32 {v(t)}, 63, {v(vL + r)}')
        a(f'v_lshlrev_b32 {v(t)}, 3, {v(t)}')
        a(f'ds_read_u16 {v(t + 1)}, {v(t)} offset:{CODE - 8}')
        a(f'v_mov_b32 {v(t + 2)}, 1')
        a(f'v_lshrrev_b32 {v(t + 5)}, 1, {v(vL + r)}')
        a('s_waitcnt lgkmcnt(0)')
        a(f'v_lshrrev_b32 {v(t)}, 7, {v(t + 1)}')
        a(f'ds_add_rtn_u32 {v(t + 3)}, {v(t)}, {v(t + 2)} offset:{CNTW}')
        a(f'v_bfi_b32 {v(t + 5)}, {s(sK1FF)}, {v(t + 1)}, {v(t + 5)}')
        a(f'v_and_b32 {v(t + 1)}, 0xe00, {v(t + 1)}')
        a('s_waitcnt lgkmcnt(0)')
        a(f'v_min_u32 {v(t + 3)}, 127, {v(t + 3)}')
        a(f'v_lshl_add_u32 {v(t + 3)}, {v(t + 3)}, 2, {v(t + 1)}')
        a(f'ds_write_b32 {v(t + 3)}, {v(t + 5)} offset:{ENT}')
        a(f'v_lshlrev_b32 {v(t + 3)}, 2, {v(t + 3)}')
        a(f'ds_write_b128 {v(t + 3)}, {v(vLP + 4 * r, 4)} offset:{RAW}')
        a.label(f'LATE_Q{r}')
    a('s_mov_b64 exec, -1')
    a('s_branch LATE_END')

    a.label('SLOW_ENTER')
    a(f's_mov_b32 {s(sMODE)}, 1')
    a(f's_mov_b32 {s(sMUL)}, 0')
    a('s_branch SLOW_LOAD')
    a.label('PAY_SLOW')
    a(f'buffer_load_dwordx2 {v(vPAY, 2)}, {v(vB0)}, {s(sY, 4)}, 0 offen')
    a(f'buffer_load_dwordx2 {v(vPAY + 2, 2)}, {v(vB0)}, {s(sE, 4)}, 0 offen')
    a('s_waitcnt vmcnt(0)')
    a('s_branch PAY_JOIN')
    a.label('SLOW_NEXT')
    a(f's_add_u32 {s(sBASE)}, {s(sBASE)}, {SLOWB}')
    a(f's_cmp_ge_u32 {s(sBASE)}, {E}')
    a('s_cbranch_scc1 MIX')
    a.label('SLOW_LOAD')
    if OPT['run']:
        a(f's_mov_b64 {s(sD, 2)}, {s(pDST, 2)}')
        a(f's_mov_b32 {s(sD + 2)}, {E * 4}')
        a(f'v_mov_b32 {v(vPF)}, {NULLW}')
    a('s_waitcnt vmcnt(0) lgkmcnt(0)')
    a('s_barrier')
    a(f'v_add_lshl_u32 {v(vR + 1)}, v0, {s(sBASE)}, 2')
    a(f'buffer_load_dword {v(vR + 2)}, {v(vR + 1)}, {s(sD, 4)}, 0 offen')
    a(f'buffer_load_dword {v(vR + 3)}, {v(vR + 1)}, {s(sS, 4)}, 0 offen')
    a(f'v_lshlrev_b32 {v(vB0)}, 1, {v(vR + 1)}')
    for r in range(1, 4):
        a(f'v_mov_b32 {v(vC + r)}, 0')
    for i in range(2):
        a(f'ds_write_b128 {v(vT16)}, {v(vZERO, 4)} offset:{RAW + 8192 * i}')
    a(f'v_mov_b32 {v(vR + 6)}, {NULLE}')
    a(f'v_mov_b32 {v(vR + 7)}, {NULLE}')
    a(f'v_lshlrev_b32 {v(vR + 5)}, 3, v0')
    a(f'ds_write_b64 {v(vR + 5)}, {v(vR + 6, 2)} offset:{ENT}')
    a(f'ds_write_b64 {v(vSMA)}, {v(vZERO, 2)} offset:{NCNT}')
    a(f'ds_write_b64 {v(vSMA)}, {v(vZERO, 2)} offset:{NCNT + 256}')
    a(f'v_cmp_gt_u32 vcc, {SLOWB}, v0')
    a(f's_mov_b64 {s(sM, 2)}, vcc')
    a('s_waitcnt vmcnt(0)')
    a(f'v_min_u32 {v(vR + 2)}, {N - 1}, {v(vR + 2)}')
    a(f'v_min_u32 {v(vR + 3)}, {N - 1}, {v(vR + 3)}')
    a(f'v_and_b32 {v(vR + 1)}, 255, {v(vR + 2)}')
    a(f'v_cmp_eq_u32 vcc, {s(sBK)}, {v(vR + 1)}')
    a(f'v_lshrrev_b32 {v(vR + 2)}, 8, {v(vR + 2)}')
    a(f'v_or_b32 {v(vR + 2)}, 64, {v(vR + 2)}')
    a(f'v_lshlrev_b32 {v(vR + 2)}, 3, {v(vR + 2)}')
    a(f'v_lshl_or_b32 {v(vR + 2)}, {v(vR + 3)}, 10, {v(vR + 2)}')
    a(f'v_and_or_b32 {v(vR + 2)}, v0, 7, {v(vR + 2)}')
    a(f's_and_b64 vcc, vcc, {s(sM, 2)}')
    a(f'v_cndmask_b32 {v(vC)}, 0, {v(vR + 2)}, vcc')
    for r in range(4):
        a(f'v_mov_b32 {v(rt[r] + 3)}, 1')
    bar()
    a('s_branch BATCH')
    a('.p2align 2')
    a('.type rank_table,@object')
    a.label('rank_table')
    tb = json.load(open('tbl.json'))[str(OPT['bias'])]
    tb = [(x & 0xffff0000) | ((x >> 10) & 7) << 9 | (x & 0x3f) for x in tb]
    for i in range(0, 80, 8):
        a('.long ' + ', '.join(f'{x:#x}' for x in tb[i:i + 8]))
    a('.size rank_table, 320')
    a.label('CODE_END')
    a('.long 0')
    return a, LDS


emit(kernel)
```
